```python
import torch

def _softmax(x, axis=-1):
    return torch.softmax(x, dim=axis)
def _gelu(x):
    return torch.nn.functional.gelu(x, approximate="tanh")
def _silu(x):
    return torch.nn.functional.silu(x)
def _sigmoid(x):
    return torch.sigmoid(x)
def _layernorm(x, axis=-1, eps=1e-5):
    m = x.mean(dim=axis, keepdim=True)
    v = x.var(dim=axis, keepdim=True, unbiased=False)
    return (x - m) / torch.sqrt(v + eps)
def _scatter_add(tgt, idx, src, axis=0):
    return tgt.clone().index_add_(axis, idx, src)
def _segment_sum(src, seg, n):
    out = torch.zeros((n,) + src.shape[1:], dtype=src.dtype)
    return out.index_add_(0, seg, src)
def _pad(x, pw):
    flat = tuple(v for pair in reversed(pw) for v in pair)
    return torch.nn.functional.pad(x, flat)

kernel_name = 'concat_heads__softmax_full_mha__compressed_kv_cla__prompt'

def setup_inputs():

    _w = (lambda a: (lambda t: t.to(torch.bfloat16) if t.is_floating_point() else t)(torch.as_tensor(a)))
    def _A_setup():
        B, S, D = 1, 2048, 448
        return {
            "x": _w((lambda *s: torch.randn(*s, dtype=torch.bfloat16) * 0.4)(B, S, D)),
            "wqkv": _w((lambda *s: torch.randn(*s, dtype=torch.bfloat16) * 0.4)(D, 3 * D)),
            "wo": _w((lambda *s: torch.randn(*s, dtype=torch.bfloat16) * 0.05)(D, D)),
        }
    _A_in = _A_setup()

    def _B_setup():
        B, H, Sq, Sk, D, M = 1, 16, 2048, 2048, 256, 448
        Dc = 4 * D
        return {
            "x": _w((lambda *s: torch.randn(*s, dtype=torch.bfloat16) * 0.2)(B, Sq, M)),
            "c_kv": _w((lambda *s: torch.randn(*s, dtype=torch.bfloat16) * 1.6)(B, Sk, Dc)),
            "w_q": _w((lambda *s: torch.randn(*s, dtype=torch.bfloat16) * 3.2)(M, H, D) * (M ** -0.5)),
            "w_uk": _w((lambda *s: torch.randn(*s, dtype=torch.bfloat16) * 3.2)(Dc, H, D) * (Dc ** -0.5)),
            "w_uv": _w((lambda *s: torch.randn(*s, dtype=torch.bfloat16) * 1.6)(Dc, H, D) * (Dc ** -0.5)),
            "w_o": _w((lambda *s: torch.randn(*s, dtype=torch.bfloat16) * 1.6)(H, D, M) * ((H * D) ** -0.5)),
        }
    _B_in = _B_setup()

    return {
        "A_x": _A_in["x"],
        "A_wqkv": _A_in["wqkv"],
        "A_wo": _A_in["wo"],
        "B_x": _B_in["x"],
        "B_c_kv": _B_in["c_kv"],
        "B_w_q": _B_in["w_q"],
        "B_w_uk": _B_in["w_uk"],
        "B_w_uv": _B_in["w_uv"],
        "B_w_o": _B_in["w_o"],
    }

def reference(A_x, A_wqkv, A_wo, B_x, B_c_kv, B_w_q, B_w_uk, B_w_uv, B_w_o):
    def _A_ref(x, wqkv, wo):
        B, S, D = x.shape
        H = 16; Dh = D // H
        qkv = (lambda x, *d: x.permute(*d))((x @ wqkv).reshape(B, S, 3, H, Dh), 2, 0, 3, 1, 4)
        q, k, v = qkv[0], qkv[1], qkv[2]
        scale = Dh ** -0.5
        scores = torch.einsum("bhqd,bhkd->bhqk", q, k) * scale
        p = _softmax(scores, axis=-1)
        o = torch.einsum("bhqk,bhkd->bhqd", p, v)
        return (lambda x, *d: x.permute(*d))(o, 0, 2, 1, 3).reshape(B, S, D) @ wo

    def _B_ref(x, c_kv, w_q, w_uk, w_uv, w_o):
        B, Sq, M = x.shape[0], x.shape[1], x.shape[2]
        Sk = c_kv.shape[1]
        H, D = w_q.shape[1], w_q.shape[2]
        q = torch.einsum("bqm,mhd->bhqd", x, w_q)
        k = torch.einsum("bkc,chd->bhkd", c_kv, w_uk)
        v = torch.einsum("bkc,chd->bhkd", c_kv, w_uv)
        scores = torch.einsum("bhqd,bhkd->bhqk", q, k) * (D ** -0.5)
        off = Sk - Sq
        qi = torch.arange(Sq)[:, None]
        kj = torch.arange(Sk)[None, :]
        cmask = kj <= (qi + off)
        scores = torch.where(cmask[None, None], scores, -1e9)
        p = _softmax(scores, axis=-1)
        ctx = torch.einsum("bhqk,bhkd->bhqd", p, v)
        return torch.einsum("bhqd,hdm->bqm", ctx, w_o)

    a = _A_ref(A_x, A_wqkv, A_wo)
    b = _B_ref(B_x, B_c_kv, B_w_q, B_w_uk, B_w_uv, B_w_o)
    return torch.concatenate([a, b], axis=-1)
```

```python
import re

REG_RE = re.compile(r'^(-?)(?:abs\()?([vas])(?:(\d+)|\[(\d+):(\d+)\])\)?$')
TRANS = ('v_exp_f32', 'v_log_f32', 'v_rcp_f32', 'v_rsq_f32', 'v_sqrt_f32', 'v_sin_f32', 'v_cos_f32')


def vr(n, c=1):
    return f'v{n}' if c == 1 else f'v[{n}:{n + c - 1}]'


def ar(n, c=1):
    return f'a{n}' if c == 1 else f'a[{n}:{n + c - 1}]'


def sr(n, c=1):
    return f's{n}' if c == 1 else f's[{n}:{n + c - 1}]'


def R(kind_n, c=1):
    k, n = kind_n
    return f'{k}{n}' if c == 1 else f'{k}[{n}:{n + c - 1}]'


def regs_of(tok):
    tok = tok.strip()
    if tok in ('vcc', 'exec', 'm0', 'scc'):
        return [(tok, 0)]
    if tok in ('vcc_lo', 'vcc_hi'):
        return [('vcc', 0)]
    if tok in ('exec_lo', 'exec_hi'):
        return [('exec', 0)]
    m = REG_RE.match(tok)
    if not m:
        return []
    k = m.group(2)
    if m.group(3) is not None:
        return [(k, int(m.group(3)))]
    return [(k, i) for i in range(int(m.group(4)), int(m.group(5)) + 1)]


class Ins:
    __slots__ = ('text', 'op', 'cls', 'w', 'r', 'srcA', 'srcB', 'srcC', 'passes', 'lds_dma', 'nop', 'wait', 'ops')


def parse(line):
    t = line.split(';')[0].split('//')[0].strip()
    if not t or t.endswith(':') or t.startswith('.'):
        return None
    parts = t.split(None, 1)
    op = parts[0]
    rest = parts[1] if len(parts) > 1 else ''
    ops = [o.strip() for o in rest.split(',')] if rest else []
    mods = ''
    if ops:
        lp = ops[-1].split()
        if lp:
            ops[-1] = lp[0]
            mods = ' '.join(lp[1:])
    I = Ins()
    I.text, I.op, I.w, I.r = t, op, [], []
    I.srcA = I.srcB = I.srcC = []
    I.passes = 0
    I.lds_dma = False
    I.nop = 1
    I.wait = None
    I.ops = ops
    base = op.replace('_e32', '').replace('_e64', '')
    if op.startswith('v_mfma'):
        I.cls = 'mfma'
        I.w = regs_of(ops[0])
        I.srcA, I.srcB, I.srcC = regs_of(ops[1]), regs_of(ops[2]), regs_of(ops[3])
        I.r = I.srcA + I.srcB + I.srcC
        I.passes = 8 if '32x32x16' in op else 4 if '16x16x32' in op else None
        assert I.passes
    elif op.startswith('v_'):
        I.cls = 'valu'
        I.w = regs_of(ops[0])
        srcs = ops[1:]
        if base in ('v_add_co_u32', 'v_addc_co_u32', 'v_sub_co_u32', 'v_subb_co_u32'):
            I.w = I.w + regs_of(ops[1])
            srcs = ops[2:]
        for o in srcs:
            I.r += regs_of(o)
        if base.startswith('v_fmac') or base.startswith('v_permlane') or base in ('v_writelane_b32',):
            I.r += regs_of(ops[0])
        if base.startswith('v_permlane'):
            I.w = I.w + regs_of(ops[1])
        if base.startswith('v_cmpx'):
            I.w = I.w + [('exec', 0)]
        if base == 'v_cndmask_b32' and len(ops) == 3:
            I.r += [('vcc', 0)]
    elif op.startswith('ds_'):
        I.cls = 'ds'
        if op.startswith('ds_read') or 'permute' in op or 'swizzle' in op:
            I.w = regs_of(ops[0])
            for o in ops[1:]:
                I.r += regs_of(o)
        else:
            for o in ops:
                I.r += regs_of(o)
    elif op.startswith('buffer_') or op.startswith('global_'):
        I.cls = 'vmem'
        is_lds = (' lds' in (' ' + mods)) or '_lds_' in op
        I.lds_dma = is_lds
        if is_lds:
            for o in ops:
                I.r += regs_of(o)
            I.r += [('m0', 0)]
        elif '_load' in op:
            I.w = regs_of(ops[0])
            for o in ops[1:]:
                I.r += regs_of(o)
        elif op in ('buffer_wbl2', 'buffer_inv'):
            pass
        else:
            for o in ops:
                I.r += regs_of(o)
            if 'atomic' in op and 'sc0' in mods:
                I.w = regs_of(ops[0])
    elif op == 's_waitcnt':
        I.cls = 'wait'
        w = {}
        for m in re.finditer(r'(vmcnt|lgkmcnt|expcnt)\((\d+)\)', rest):
            w[m.group(1)] = int(m.group(2))
        I.wait = w
    elif op == 's_nop':
        I.cls = 'nop'
        I.nop = int(ops[0], 0) + 1
    elif op.startswith('s_load') or op.startswith('s_buffer_load') or op in ('s_memtime', 's_memrealtime') or op.startswith('s_atomic'):
        I.cls = 'smem'
        I.w = regs_of(ops[0])
        for o in ops[1:]:
            I.r += regs_of(o)
    elif op.startswith('s_'):
        I.cls = 'salu'
        if op.startswith('s_cmp') or op.startswith('s_cbranch') or op in ('s_branch', 's_barrier', 's_endpgm', 's_setprio', 's_sleep', 's_bitcmp1_b32', 's_bitcmp0_b32'):
            for o in ops:
                I.r += regs_of(o)
        else:
            I.w = regs_of(ops[0])
            for o in ops[1:]:
                I.r += regs_of(o)
            if 'saveexec' in op:
                I.w = I.w + [('exec', 0)]
    else:
        raise ValueError('unknown op: ' + t)
    return I


def check(lines, name='trace', verbose=True, dummy=()):
    probs = []
    pos = 0
    last_valu_w = {}
    last_trans_w = {}
    last_mfma_w = {}
    last_mfma_c = {}
    last_valu_sw = {}
    last_m0 = -100
    last_exec_valu = -100
    store_data = {}
    vm_q = []
    lg_q = []
    smem_out = False
    RAWD = {4: 8, 8: 12}
    OVL = {4: 6, 8: 10}
    WARC = {4: 3, 8: 7}

    def bad(I, msg):
        probs.append(f'{name}: [{I.text}] {msg}')

    for ln in lines:
        I = parse(ln)
        if I is None:
            continue
        pend = set()
        for q in vm_q:
            pend |= q
        for q in lg_q:
            pend |= q
        for r in I.r + I.w:
            if r in pend and r not in dummy:
                bad(I, f'touches {r} still pending from memory op')
                break
        dist = lambda p: pos - p - 1
        if I.cls == 'mfma':
            for r in I.r:
                if r in last_valu_w and dist(last_valu_w[r]) < 2:
                    bad(I, f'VALU->MFMA {r} dist {dist(last_valu_w[r])} < 2')
            for r in I.srcA + I.srcB:
                if r in last_mfma_w:
                    p, ps, _ = last_mfma_w[r]
                    if dist(p) < RAWD[ps]:
                        bad(I, f'MFMA D->A/B {r} dist {dist(p)} < {RAWD[ps]}')
            for r in I.srcC:
                if r in last_mfma_w:
                    p, ps, dt = last_mfma_w[r]
                    if dt == tuple(I.srcC) and ps == I.passes:
                        continue
                    if dist(p) < OVL[ps]:
                        bad(I, f'MFMA D->C overlap {r} dist {dist(p)} < {OVL[ps]}')
            if tuple(I.w) != tuple(I.srcC):
                for r in I.w:
                    if r in last_mfma_w:
                        p, ps, dt = last_mfma_w[r]
                        if dist(p) < OVL[ps]:
                            bad(I, f'MFMA D->D WAW {r} dist {dist(p)} < {OVL[ps]}')
            if dist(last_exec_valu) < 4:
                bad(I, 'VALU exec write -> MFMA < 4')
        elif I.cls in ('valu', 'ds', 'vmem'):
            for r in I.r + I.w:
                if r in last_mfma_w:
                    p, ps, _ = last_mfma_w[r]
                    if dist(p) < RAWD[ps]:
                        bad(I, f'MFMA D->{I.cls} {r} dist {dist(p)} < {RAWD[ps]}')
            if I.cls == 'valu':
                for r in I.w:
                    if r in last_mfma_c:
                        p, ps = last_mfma_c[r]
                        if dist(p) < WARC[ps]:
                            bad(I, f'MFMA C WAR {r} dist {dist(p)} < {WARC[ps]}')
                    if r in store_data and dist(store_data[r]) < 2:
                        bad(I, f'store data WAR {r}')
                base = I.op.replace('_e32', '').replace('_e64', '')
                if base not in TRANS:
                    for r in I.r:
                        if r in last_trans_w and dist(last_trans_w[r]) < 1:
                            bad(I, f'trans->VALU {r}')
                for r in I.r:
                    if r[0] in ('s', 'vcc') and r in last_valu_sw and dist(last_valu_sw[r]) < 2:
                        bad(I, f'VALU sgpr write -> VALU read {r}')
                if base.startswith('v_permlane') or 'dpp' in I.text or 'row_' in I.text or 'quad_perm' in I.text:
                    for r in I.r:
                        if r in last_valu_w and dist(last_valu_w[r]) < 2:
                            bad(I, f'VALU->permlane/dpp {r}')
                if base in ('v_readfirstlane_b32', 'v_readlane_b32'):
                    for r in I.r:
                        if r in last_valu_w and dist(last_valu_w[r]) < 1:
                            bad(I, f'VALU->readlane {r}')
                    if dist(last_exec_valu) < 4:
                        bad(I, 'exec write -> readlane')
            else:
                for r in I.w:
                    if r in store_data and dist(store_data[r]) < 1:
                        bad(I, f'store data WAR {r}')
            if I.cls == 'vmem':
                for r in I.r:
                    if r[0] == 's' and r in last_valu_sw and dist(last_valu_sw[r]) < 5:
                        bad(I, f'VALU sgpr write -> VMEM {r}')
                if I.lds_dma and dist(last_m0) < 1:
                    bad(I, 'm0 write -> LDS DMA')
        if I.cls == 'mfma':
            for r in I.w:
                last_mfma_w[r] = (pos, I.passes, tuple(I.w))
                last_valu_w.pop(r, None)
            for r in I.srcC:
                last_mfma_c[r] = (pos, I.passes)
        elif I.cls == 'valu':
            base = I.op.replace('_e32', '').replace('_e64', '')
            for r in I.w:
                if r[0] in ('v', 'a'):
                    last_valu_w[r] = pos
                    last_mfma_w.pop(r, None)
                    if base in TRANS:
                        last_trans_w[r] = pos
                    else:
                        last_trans_w.pop(r, None)
                elif r[0] == 'exec':
                    last_exec_valu = pos
                else:
                    last_valu_sw[r] = pos
        elif I.cls == 'ds':
            lg_q.append(set(I.w))
        elif I.cls == 'smem':
            lg_q.append(set(I.w))
            smem_out = True
        elif I.cls == 'vmem':
            vm_q.append(set(I.w))
            if '_store' in I.op and ('x4' in I.op or 'x3' in I.op):
                d = I.ops[0] if I.op.startswith('buffer') else I.ops[1]
                for r in regs_of(d):
                    store_data[r] = pos
        elif I.cls == 'salu':
            if ('m0', 0) in I.w:
                last_m0 = pos
            for r in I.w:
                last_valu_sw.pop(r, None)
        elif I.cls == 'wait':
            if 'vmcnt' in I.wait:
                n = I.wait['vmcnt']
                if len(vm_q) > n:
                    vm_q = vm_q[len(vm_q) - n:] if n else []
            if 'lgkmcnt' in I.wait:
                n = I.wait['lgkmcnt']
                if smem_out and n > 0:
                    pass
                else:
                    if len(lg_q) > n:
                        lg_q = lg_q[len(lg_q) - n:] if n else []
                    if n == 0:
                        smem_out = False
        if len(vm_q) > 63:
            probs.append(f'{name}: vmcnt overflow (>63 outstanding) at [{I.text}]')
            vm_q = vm_q[-63:]
        pos += I.nop
    if verbose:
        for p in probs[:40]:
            print('HAZARD', p)
        if len(probs) > 40:
            print('...', len(probs), 'problems')
    return probs


def interleave(spine, fillers_by_gap):
    out = list(fillers_by_gap.get(-1, []))
    for i, s in enumerate(spine):
        out.append(s)
        out += fillers_by_gap.get(i, [])
    return out


def kd(name, vgpr, sgpr, accum, extra=''):
    return f""".p2align 6
.amdhsa_kernel {name}
  .amdhsa_next_free_vgpr {vgpr}
  .amdhsa_next_free_sgpr {sgpr}
  .amdhsa_accum_offset {accum}
  .amdhsa_group_segment_fixed_size 0
  .amdhsa_kernarg_size 96
  .amdhsa_user_sgpr_count 2
  .amdhsa_user_sgpr_kernarg_segment_ptr 1
  .amdhsa_system_sgpr_workgroup_id_x 1
{extra}.end_amdhsa_kernel
"""


def khead(name):
    return f""".globl {name}
.p2align 8
.type {name},@function
{name}:
"""


def stamp_begin(sb=90):
    return [f's_memrealtime s[{sb}:{sb + 1}]', f's_memtime s[{sb + 2}:{sb + 3}]']


def stamp_mid(n):
    return [f's_memtime s[{80 + 2 * n}:{81 + 2 * n}]']


def stamp_end(wsoff_kernarg, slot_base, sb=90, v=2, idreg='s2'):
    t = sb + 4
    return ['s_memtime s[86:87]', 's_waitcnt vmcnt(0) lgkmcnt(0)', f's_memrealtime s[{t}:{t + 1}]', f's_memtime s[{t + 2}:{t + 3}]',
            f's_load_dwordx2 s[{t + 6}:{t + 7}], s[0:1], {wsoff_kernarg}', 's_waitcnt lgkmcnt(0)',
            f's_sub_u32 s{t + 2}, s{t + 2}, s{sb + 2}',
            f's_sub_u32 s80, s80, s{sb + 2}', f's_sub_u32 s82, s82, s{sb + 2}', f's_sub_u32 s84, s84, s{sb + 2}', f's_sub_u32 s86, s86, s{sb + 2}',
            f'v_mov_b32 v{v}, s{sb}', f'v_mov_b32 v{v + 1}, s{t}', f'v_mov_b32 v{v + 2}, s{t + 2}', f'v_mov_b32 v{v + 3}, 0',
            f'v_mov_b32 v{v + 4}, s80', f'v_mov_b32 v{v + 5}, s82', f'v_mov_b32 v{v + 6}, s84', f'v_mov_b32 v{v + 7}, s86',
            f's_add_u32 s{t + 4}, {idreg}, {slot_base}', f's_lshl_b32 s{t + 4}, s{t + 4}, 5', f's_add_u32 s{t + 4}, s{t + 4}, 0xF000000',
            f'v_mov_b32 v{v + 8}, s{t + 4}',
            'v_cmp_eq_u32 vcc, 0, v0', f's_and_saveexec_b64 s[{t + 4}:{t + 5}], vcc', 's_cbranch_execz 4',
            f'global_store_dwordx4 v{v + 8}, v[{v}:{v + 3}], s[{t + 6}:{t + 7}]',
            f'global_store_dwordx4 v{v + 8}, v[{v + 4}:{v + 7}], s[{t + 6}:{t + 7}] offset:16', 's_waitcnt vmcnt(0)']
```

```python
from asmlib import *
from layout import *
from attnb import add_waits

NAME = 'attna_kernel'
MF = 'v_mfma_f32_32x32x16_bf16'
TH = 0x42200000
LDS = 131072
NCH = 8


def S(b, t): return 64 + 32 * b + 16 * t
def P(t, u): return 128 + 8 * t + 4 * u
def KFr(t, u): return 144 + 8 * t + 4 * u
def VFr(t, u): return 160 + 8 * t + 4 * u
NEG = 32
OO = 48
QF_ = 176


def kreads(slot, unit):
    return [f'ds_read_b128 {vr(KFr(t, u), 4)}, v16 offset:{slot * 16384 + (unit * 2 + t) * 2048 + u * 1024}' for t in range(2) for u in range(2)]


def vreads(slot, unit):
    return [f'ds_read_b128 {vr(VFr(t, u), 4)}, v16 offset:{slot * 16384 + 8192 + (unit * 2 + t) * 2048 + u * 1024}' for t in range(2) for u in range(2)]


def qk(b, first=False):
    L = []
    for t in range(2):
        for u in range(2):
            d = vr(S(b, t), 16)
            c = d if u else ('0' if first else vr(NEG, 16))
            L.append(f'{MF} {d}, {vr(KFr(t, u), 4)}, {vr(QF_ + 4 * u, 4)}, {c}')
    return L


def pv(t):
    return [f'{MF} {vr(OO, 16)}, {vr(VFr(t, u), 4)}, {vr(P(t, u), 4)}, {vr(OO, 16)}' for u in range(2)]


def expcvt(b, t):
    L = []
    s = S(b, t)
    for i in range(0, 16, 2):
        L.append(f'v_exp_f32 v{s + i}, v{s + i}')
        L.append(f'v_exp_f32 v{s + i + 1}, v{s + i + 1}')
        if i >= 2:
            L.append(f'v_cvt_pk_bf16_f32 v{P(t, 0) + (i - 2) // 2}, v{s + i - 2}, v{s + i - 1}')
    return L, f'v_cvt_pk_bf16_f32 v{P(t, 0) + 7}, v{s + 14}, v{s + 15}'


def maxes(b):
    L = []
    for t in range(2):
        s = S(b, t)
        L.append([f'v_max3_f32 v{21 + t}, v{s}, v{s + 1}, v{s + 2}'] +
                 [f'v_max3_f32 v{21 + t}, v{s + i}, v{s + i + 1}, v{21 + t}' for i in range(3, 15, 2)])
    out = []
    for x, y in zip(*L):
        out += [x, y]
    out.append(f'v_max3_f32 v21, v{S(b, 0) + 15}, v{S(b, 1) + 15}, v21')
    out.append('v_max_f32 v21, v21, v22')
    return out


def dma(slot):
    return [([f's_add_u32 m0, s18, {slot * 16384}'], 'buffer_load_dwordx4 v18, s[4:7], s16 offen lds'),
            ([], 'buffer_load_dwordx4 v18, s[4:7], s16 offen offset:1024 lds'),
            ([f's_add_u32 m0, s18, {slot * 16384 + 8192}'], 'buffer_load_dwordx4 v18, s[8:11], s16 offen lds'),
            ([], 'buffer_load_dwordx4 v18, s[8:11], s16 offen offset:1024 lds')], 's_add_u32 s16, s16, 8192'


def rescale(b, first=False):
    L = ['s_nop 15', 'v_mov_b32 v2, v21', 's_nop 1', 'v_permlane32_swap_b32 v2, v21', 's_nop 1', 'v_max_f32 v21, v21, v2']
    if not first:
        L += ['v_max_f32 v21, 0, v21', 'v_exp_f32 v23, -v21', 's_nop 0']
        L += [f'v_mul_f32 v{OO + r}, v{OO + r}, v23' for r in range(16)]
    L += [(f'v_sub_f32 v{NEG + r}, 0, v21' if first else f'v_sub_f32 v{NEG + r}, v{NEG + r}, v21') for r in range(16)]
    L += [f'v_sub_f32 v{S(b, 0) + r}, v{S(b, 0) + r}, v21' for r in range(32)]
    L.append('s_nop 1')
    return L


def unit_iter(j, tag, last=False):
    b = j % 2
    L = []
    e0, c0 = expcvt(b, 0)
    e1, c1 = expcvt(b, 1)
    nslot, nunit = ((j + 2) // 2) % 4, (j + 2) % 2
    vslot, vunit = ((j + 1) // 2) % 4, (j + 1) % 2
    pre = []
    dm = []
    if j % 2 == 0:
        pre = ['s_waitcnt vmcnt(4) lgkmcnt(0)', 's_barrier']
        grp, adv = dma((j // 2 + 3) % 4)
        dm = grp
    fill = {}
    def add(g, x): fill.setdefault(g, []).append(x)
    q = [] if last else qk(1 - b)
    for i, m in enumerate(q):
        add(1 + 5 * i, m)
    if not last:
        kr = kreads(nslot, nunit)
        for i, x in enumerate(kr):
            add(18 + i, x)
    L += interleave(e0, fill)
    if j % 2 == 0 and pre:
        i = next(i for i, x in enumerate(L) if x.startswith('ds_read')) if not last else len(L)
        L = L[:i] + pre + L[i:]
    fill = {}
    add(0, c0)
    p0 = pv(0)
    add(4, p0[0]); add(10, p0[1])
    if dm:
        for i, (pr, x) in enumerate(dm):
            for y in pr:
                add(5 + 4 * i, y)
            add(6 + 4 * i, x)
        add(21, adv)
    L += interleave(e1, fill)
    fill = {}
    p1 = pv(1)
    if last:
        L += ['s_nop 0', c1, 's_nop 1'] + p1
        return L, []
    mx = maxes(1 - b)
    add(0, c1)
    add(3, p1[0]); add(9, p1[1])
    vr_ = vreads(vslot, vunit)
    add(1, vr_[0]); add(2, vr_[1]); add(11, vr_[2]); add(12, vr_[3])
    L += interleave(mx, fill)
    L += ['v_cmp_lt_f32 vcc, s22, v21', f's_cbranch_vccnz {tag}_rs', f'{tag}_rsret:']
    rare = [f'{tag}_rs:'] + rescale(1 - b) + [f's_branch {tag}_rsret']
    return L, rare


def gen(stamps=False):
    N = NAME
    Pq = []
    a = Pq.append
    a('s_cmp_ge_u32 s2, 256')
    a(f's_cbranch_scc1 {N}_exit')
    if stamps:
        Pq += stamp_begin()
    a(f's_load_dwordx2 s[12:13], s[0:1], {WS}')
    a('v_and_b32 v1, 63, v0')
    a('v_lshrrev_b32 v2, 6, v0')
    a('v_lshlrev_b32 v17, 4, v1')
    a('v_readfirstlane_b32 s20, v2')
    a('s_and_b32 s40, s2, 7')
    a('s_lshr_b32 s41, s2, 3')
    a('s_and_b32 s42, s41, 1')
    a('s_lshl_b32 s40, s40, 1')
    a('s_add_u32 s40, s40, s42')
    a('s_lshr_b32 s41, s41, 1')
    a('s_lshr_b32 s42, s20, 2')
    a('s_and_b32 s43, s20, 3')
    a('s_mov_b32 s6, 65536'); a('s_mov_b32 s10, 65536')
    a('s_mov_b32 s7, 0x20000'); a('s_mov_b32 s11, 0x20000'); a('s_mov_b32 s15, 0x20000')
    a(f's_mov_b32 s14, {PART}')
    a('s_lshl_b32 s44, s42, 16')
    a('s_lshl_b32 s45, s43, 11')
    a('s_add_u32 s18, s44, s45')
    a('v_add_u32 v18, s45, v17')
    a('v_add_u32 v16, s44, v17')
    a('s_lshl_b32 s46, s40, 17')
    a('s_add_u32 s47, s46, s44')
    a(f's_add_u32 s47, s47, {KA}')
    a('s_mov_b32 s16, 0')
    a('s_waitcnt lgkmcnt(0)')
    a('s_add_u32 s4, s12, s47'); a('s_addc_u32 s5, s13, 0')
    a(f's_add_u32 s8, s4, {VA - KA}'); a('s_addc_u32 s9, s5, 0')
    a('s_lshl_b32 s48, s41, 2'); a('s_add_u32 s48, s48, s43')
    a('s_lshl_b32 s49, s48, 11'); a('s_add_u32 s49, s49, s46'); a(f's_add_u32 s49, s49, {QA}')
    a(f'buffer_load_dwordx4 {vr(QF_, 4)}, v17, s[12:15], s49 offen')
    a(f'buffer_load_dwordx4 {vr(QF_ + 4, 4)}, v17, s[12:15], s49 offen offset:1024')
    for c in range(3):
        grp, adv = dma(c)
        for pre, x in grp:
            for y in pre:
                a(y); a('s_nop 0')
            a(x)
        a(adv)
    a(f's_mov_b32 s22, {TH}')
    for r in range(16):
        a(f'v_mov_b32 v{OO + r}, 0')
    if stamps:
        Pq += stamp_mid(0) + ['s_waitcnt lgkmcnt(0)']
    a('s_waitcnt vmcnt(8)')
    a('s_barrier')
    Pq += kreads(0, 0)
    a('s_waitcnt lgkmcnt(0)')
    Pq += qk(0, True)
    Pq += kreads(0, 1) + vreads(0, 0)
    pend = [set(parse(x).w) for x in kreads(0, 1) + vreads(0, 0)]
    a('s_nop 15')
    Pq += maxes(0)
    Pq += rescale(0, True)
    if stamps:
        Pq += stamp_mid(1) + ['s_waitcnt lgkmcnt(0)']
    body, rare = [], []
    for j in range(8):
        L, r = unit_iter(j, f'{N}_u{j}')
        if j == 7:
            lastL, _ = unit_iter(7, f'{N}_last', last=True)
        L, pend_n = add_waits(L, pend)
        if j == 6:
            pend6 = pend_n
        pend = pend_n
        body.append(L)
        rare += r
    lastL, _ = add_waits(lastL, pend6)
    loop = sum(body[:7], []) + ['s_cmp_eq_u32 s19, 1', f's_cbranch_scc1 {N}_tail'] + body[7] + ['s_mov_b32 s19, 1', f's_branch {N}_loop']
    a('s_mov_b32 s19, 0')
    T = list(lastL)
    if stamps:
        T += stamp_mid(2)
    T += ['s_waitcnt vmcnt(0) lgkmcnt(0)', 's_barrier', 's_nop 7']
    T += ['s_lshl_b32 s50, s43, 13', 'v_add_u32 v19, s50, v17']
    T += ['s_cmp_eq_u32 s42, 0', f's_cbranch_scc1 {N}_h0']
    W1 = [f'ds_write_b128 v19, {vr(OO + 4 * i, 4)} offset:{i * 1024}' for i in range(4)]
    W1 += [f'ds_write_b128 v19, {vr(NEG, 4)} offset:4096', 's_waitcnt lgkmcnt(0)', 's_barrier']
    if stamps:
        pass
    W1 += ['s_endpgm']
    H0 = ['s_barrier']
    H0 += [f'ds_read_b128 {vr(64 + 4 * i, 4)}, v19 offset:{i * 1024}' for i in range(5)]
    H0 += ['s_waitcnt lgkmcnt(0)',
           f'v_min_f32 v2, v{NEG}, v80',
           f'v_sub_f32 v3, v2, v{NEG}', 'v_sub_f32 v4, v2, v80',
           'v_exp_f32 v3, v3', 'v_exp_f32 v4, v4', 's_nop 0']
    H0 += [f'v_mul_f32 v{OO + r}, v{OO + r}, v3' for r in range(16)]
    H0 += [f'v_fmac_f32 v{OO + r}, v{64 + r}, v4' for r in range(16)]
    H0 += [f'v_mov_b32 v5, v{OO + 12}', f'v_mov_b32 v6, v{OO + 12}', 's_nop 1', 'v_permlane32_swap_b32 v5, v6', 's_nop 1',
           'v_rcp_f32 v6, v6', 'v_cmp_gt_u32 vcc, 32, v1', 's_nop 0']
    H0 += [f'v_mul_f32 v{OO + r}, v{OO + r}, v6' for r in range(16)]
    H0 += [f'v_cndmask_b32 v{OO + r}, 0, v{OO + r}, vcc' for r in range(12, 16)]
    for pc, (ra, rb) in enumerate(((0, 8), (4, 12))):
        H0 += [f'v_cvt_pk_bf16_f32 v{64 + 4 * pc}, v{OO + ra}, v{OO + ra + 1}', f'v_cvt_pk_bf16_f32 v{65 + 4 * pc}, v{OO + ra + 2}, v{OO + ra + 3}',
               f'v_cvt_pk_bf16_f32 v{66 + 4 * pc}, v{OO + rb}, v{OO + rb + 1}', f'v_cvt_pk_bf16_f32 v{67 + 4 * pc}, v{OO + rb + 2}, v{OO + rb + 3}']
    H0 += ['v_bfe_u32 v7, v1, 4, 1', 'v_lshlrev_b32 v7, 14, v7', 'v_lshrrev_b32 v8, 5, v1', 'v_lshl_add_u32 v7, v8, 8, v7',
           'v_and_b32 v8, 15, v1', 'v_lshl_add_u32 v7, v8, 4, v7',
           's_lshl_b32 s50, s48, 15', 's_lshl_b32 s51, s40, 10', 's_add_u32 s50, s50, s51', f's_add_u32 s50, s50, {CA}',
           'buffer_store_dwordx4 v[64:67], v7, s[12:15], s50 offen', 'buffer_store_dwordx4 v[68:71], v7, s[12:15], s50 offen offset:512']
    if stamps:
        H0 += stamp_end(WS, 768)
    H0 += ['s_endpgm']
    out = Pq + ['.p2align 6', f'{N}_loop:'] + loop + [f'{N}_tail:'] + T + W1 + [f'{N}_h0:'] + H0 + rare + [f'{N}_exit:', 's_endpgm']
    tr = Pq + sum(body, []) + sum(body[:7], []) + T
    assert not check(tr + W1, N)
    assert not check(tr + H0, N)
    i = body[0].index(f'{N}_u0_rsret:')
    assert not check(Pq + body[0][:i] + rescale(1) + body[0][i:] + body[1], N + '_rare')
    text = khead(N) + '\n'.join(out) + '\n'
    return dict(name=N, text=text, grid=256, block=512, lds=LDS, vgpr=184, sgpr=102, accum=184)
```

```python
from asmlib import *
from layout import *

NAME = 'attnb_kernel'
MF = 'v_mfma_f32_16x16x32_bf16'
LDS = 131072
TH = 0x41f00000


def S(b, kt, a): return 64 + 32 * b + 8 * kt + 4 * a
def P(b, kg, a): return 128 + 16 * b + 8 * kg + 4 * a
def O(dt, a): return 8 * dt + 4 * a
def Q(a, s): return 128 + 32 * a + 4 * s
def RING(f): return 192 + 4 * (f % 16)
def NEGM(a): return 32 + 4 * a


class Sched:
    def __init__(self, n, cap=8):
        self.n, self.cap = n, cap
        self.slots = {g: [] for g in range(-1, n)}
        self.used = {g: 0 for g in range(-1, n)}

    def put(self, g, text, cost=4):
        self.slots[g].append(text)
        self.used[g] += cost

    def fit(self, g, cost, gmax):
        while g < gmax and self.used[g] + cost > self.cap:
            g += 1
        return g


def kread(slot, f): return f'ds_read_b128 a[{RING(f)}:{RING(f) + 3}], v16 offset:{slot * 32768 + f * 1024}'
def vread(slot, f): return f'ds_read_b128 a[{RING(f)}:{RING(f) + 3}], v17 offset:{slot * 32768 + f * 1024}'


def qk_mfmas(b, first=False):
    L = []
    for kt in range(4):
        for s in range(8):
            for a in range(2):
                d = vr(S(b, kt, a), 4)
                c = d if s else ('0' if first else vr(NEGM(a), 4))
                f = kt * 8 + s
                L.append(f'{MF} {d}, {ar(RING(f), 4)}, {ar(Q(a, s), 4)}, {c}')
    return L


def pv_mfmas(b):
    L = []
    for kg in range(2):
        for dt in range(16):
            for a in range(2):
                f = kg * 16 + dt
                o = ar(O(dt, a), 4)
                L.append(f'{MF} {o}, {ar(RING(f), 4)}, {vr(P(b, kg, a), 4)}, {o}')
    return L


def dma_group(isv, slot):
    srd, so = ('s[8:11]', 's17') if isv else ('s[4:7]', 's16')
    L = []
    for i in range(8):
        pre = [f's_add_u32 m0, s18, {isv * 65536 + slot * 32768 + (i // 4) * 4096}'] if i % 4 == 0 else []
        L.append((pre, f'buffer_load_dwordx4 v{18 + i // 4}, {srd}, {so} offen offset:{(i % 4) * 1024} lds'))
    return L, f's_add_u32 {so}, {so}, 32768'


def softmax_items(b):
    it = []
    for kg in range(2):
        for a in range(2):
            for h in range(2):
                kt = 2 * kg + h
                for r2 in range(2):
                    r0 = S(b, kt, a) + 2 * r2
                    it.append(('e', f'v_exp_f32 v{r0}, v{r0}'))
                    it.append(('e', f'v_exp_f32 v{r0 + 1}, v{r0 + 1}'))
                    it.append(('v', f'v_add_f32 v{24 + a}, v{r0}, v{24 + a}'))
                    it.append(('v', f'v_cvt_pk_bf16_f32 v{P(b, kg, a) + 2 * h + r2}, v{r0}, v{r0 + 1}'))
                    it.append(('v', f'v_add_f32 v{24 + a}, v{r0 + 1}, v{24 + a}'))
    return it


def max_items(b):
    L = []
    for a in range(2):
        regs = [S(b, kt, a) + r for kt in range(4) for r in range(4)]
        L.append(f'v_max3_f32 v{21 + a}, v{regs[0]}, v{regs[1]}, v{regs[2]}')
        for i in range(3, 15, 2):
            L.append(f'v_max3_f32 v{21 + a}, v{regs[i]}, v{regs[i + 1]}, v{21 + a}')
        L.append(f'v_max_f32 v{21 + a}, v{regs[15]}, v{21 + a}')
    out = []
    for x, y in zip(L[:8], L[8:]):
        out += [x, y]
    return out


def xreduce(reg, op, tmp=2):
    return [f'v_mov_b32 v{tmp}, v{reg}', 's_nop 1', f'v_permlane16_swap_b32 v{tmp}, v{reg}', 's_nop 1', f'{op} v{reg}, v{reg}, v{tmp}',
            f'v_mov_b32 v{tmp}, v{reg}', 's_nop 1', f'v_permlane32_swap_b32 v{tmp}, v{reg}', 's_nop 1', f'{op} v{reg}, v{reg}, v{tmp}']


def mask_code(b):
    L = ['s_nop 7', 'v_mov_b32 v3, 0xf149f2ca']
    for kt in range(4):
        for a in range(2):
            for r in range(4):
                L.append(f's_add_i32 s25, s24, {16 * (a - kt) - r}')
                L.append(f'v_cmp_ge_i32 s[{28 + 2 * r}:{29 + 2 * r}], s25, v20')
            for r in range(4):
                L.append(f'v_cndmask_b32 v{S(b, kt, a) + r}, v3, v{S(b, kt, a) + r}, s[{28 + 2 * r}:{29 + 2 * r}]')
    L.append('s_sub_i32 s24, s24, 64')
    return L


def r1_code(b, first=False):
    L = ['s_nop 7']
    for a in range(2):
        t = 21 + a
        L += xreduce(t, 'v_max_f32')
        if not first:
            L.append(f'v_max_f32 v{t}, 0, v{t}')
            L.append(f'v_exp_f32 v{26 + a}, -v{t}')
        for e in range(4):
            L.append(f'v_sub_f32 v{NEGM(a) + e}, 0, v{t}' if first else f'v_sub_f32 v{NEGM(a) + e}, v{NEGM(a) + e}, v{t}')
        for kt in range(4):
            for r in range(4):
                L.append(f'v_sub_f32 v{S(b, kt, a) + r}, v{S(b, kt, a) + r}, v{t}')
        L.append(f'v_mov_b32 v{24 + a}, 0' if first else f'v_mul_f32 v{24 + a}, v{24 + a}, v{26 + a}')
    if not first:
        L.append('s_mov_b32 s23, 1')
    return L


def r2_code():
    L = ['s_nop 7']
    for dt in range(16):
        for a in range(2):
            o = O(dt, a)
            for e in range(4):
                L.append(f'v_accvgpr_read_b32 v{4 + e}, a{o + e}')
            for e in range(4):
                L.append(f'v_mul_f32 v{4 + e}, v{4 + e}, v{26 + a}')
            for e in range(4):
                L.append(f'v_accvgpr_write_b32 a{o + e}, v{4 + e}')
    L += ['s_mov_b32 s23, 0', 's_nop 1']
    return L


def rgap(f):
    return (7 * f) // 4 - 16


BARG = 47
D1G = 64 + 22
NP1 = 30


def add_waits(lines, pend0):
    out = []
    pend = list(pend0)
    for ln in lines:
        I = parse(ln)
        if I is not None and I.cls == 'mfma':
            need = -1
            for i, d in enumerate(pend):
                if d & set(I.r):
                    need = i
            if need >= 0:
                n = len(pend) - need - 1
                out.append(f's_waitcnt lgkmcnt({n})')
                pend = pend[need + 1:]
        if I is not None and I.cls == 'ds':
            pend.append(set(I.w))
        if I is not None and I.cls == 'wait' and I.wait.get('lgkmcnt') == 0:
            pend = []
        out.append(ln)
    return out, pend


def iteration(p, tag, dgap=6):
    sc = Sched(128)
    for f in range(32):
        g = rgap(f)
        if g >= 0:
            sc.put(g, kread(1 - p, f))
            sc.put(64 + g, vread(p, f))
        else:
            sc.put(64 + g, vread(p, f))
            sc.put(128 + g, kread(p, f))
    for base in (0, 64):
        sc.put(base + BARG, 's_waitcnt vmcnt(16) lgkmcnt(0)', 0)
        sc.put(base + BARG, 's_barrier', 4)
    for isv, base in ((1, 0), (0, 64)):
        grp, adv = dma_group(isv, 1 - p)
        for i, (pre, x) in enumerate(grp):
            g = sc.fit(base + 1 + i * dgap, 4, base + BARG - 1)
            for y in pre:
                sc.put(g - 1, y)
            sc.put(g, x)
        sc.put(g + 1, adv)
    sc.put(64, 's_cmp_ge_u32 s19, s21')
    sc.put(64, f's_cbranch_scc1 {tag}_mask')
    sc.put(64, f'{tag}_maskret:', 0)
    mx = max_items(1 - p)
    g = 66
    for x in mx:
        g = sc.fit(g, 4, D1G - 2)
        sc.put(g, x)
    sc.put(D1G - 1, 'v_max_f32 v23, v21, v22')
    sc.put(D1G, 'v_cmp_lt_f32 vcc, s22, v23')
    sc.put(D1G, f's_cbranch_vccnz {tag}_r1')
    sc.put(D1G, f'{tag}_r1ret:', 0)

    def place(items, g0, g1):
        n = sum(8 if k == 'e' else 4 for k, _ in items)
        acc = 0
        g = g0
        laste = -10
        for k, x in items:
            c = 8 if k == 'e' else 4
            tgt = g0 + (acc * (g1 - g0)) // n
            g = max(g, tgt)
            if k == 'v':
                g = max(g, laste + 1)
            g = sc.fit(g, c, g1)
            if k == 'e':
                laste = g
            sc.put(g, x, c)
            acc += c
        return g
    it_next = softmax_items(1 - p)
    it_cur = softmax_items(p)
    place(it_cur[NP1:], 0, 61)
    place(it_next[:NP1], D1G + 1, 126)
    sp = qk_mfmas(1 - p) + pv_mfmas(p)
    L = interleave(sp, sc.slots)
    L += ['s_cmp_eq_u32 s23, 0', f's_cbranch_scc0 {tag}_r2', f'{tag}_r2ret:', 's_add_u32 s19, s19, 1']
    over = sum(max(0, sc.used[g] - 8) for g in sc.used)
    rare = [f'{tag}_mask:'] + mask_code(1 - p) + [f's_branch {tag}_maskret',
            f'{tag}_r1:'] + r1_code(1 - p) + [f's_branch {tag}_r1ret',
            f'{tag}_r2:'] + r2_code() + [f's_branch {tag}_r2ret']
    return L, rare, over


def gen(stamps=False, dgap=6):
    N = NAME
    Pq = []
    a = Pq.append
    a('s_cmp_ge_u32 s2, 256')
    a(f's_cbranch_scc1 {N}_exit')
    if stamps:
        Pq += stamp_begin()
    a(f's_load_dwordx2 s[12:13], s[0:1], {WS}')
    a('v_and_b32 v1, 63, v0')
    a('v_lshrrev_b32 v2, 6, v0')
    a('v_lshlrev_b32 v16, 4, v1')
    a('v_readfirstlane_b32 s20, v2')
    a('s_and_b32 s40, s2, 7')
    a('s_lshr_b32 s41, s2, 3')
    a('s_and_b32 s42, s41, 1')
    a('s_lshl_b32 s40, s40, 1')
    a('s_add_u32 s40, s40, s42')
    a('s_lshr_b32 s41, s41, 1')
    a('s_sub_u32 s41, 15, s41')
    a('s_lshl_b32 s21, s41, 1')
    a('s_add_u32 s42, s21, 2')
    a('s_lshl_b32 s6, s42, 15')
    a('s_mov_b32 s10, s6')
    a('s_mov_b32 s7, 0x20000'); a('s_mov_b32 s11, 0x20000'); a('s_mov_b32 s15, 0x20000')
    a(f's_mov_b32 s14, {PART}')
    a('s_lshl_b32 s18, s20, 13')
    a('v_add_u32 v18, s18, v16')
    a('v_add_u32 v19, 4096, v18')
    a('v_add_u32 v17, 0x10000, v16')
    a('s_lshl_b32 s43, s40, 20')
    a('s_mov_b32 s16, 0'); a('s_mov_b32 s17, 0')
    a('s_waitcnt lgkmcnt(0)')
    a('s_add_u32 s4, s12, s43'); a('s_addc_u32 s5, s13, 0')
    a(f's_add_u32 s8, s4, {VF}'); a('s_addc_u32 s9, s5, 0')

    def dma_now(isv, slot):
        grp, adv = dma_group(isv, slot)
        for pre, x in grp:
            for y in pre:
                a(y); a('s_nop 0')
            a(x)
        a(adv)
    dma_now(0, 0)
    a('s_lshl_b32 s44, s41, 3'); a('s_lshl_b32 s45, s20, 1'); a('s_add_u32 s44, s44, s45')
    a('s_lshl_b32 s45, s44, 13'); a('s_add_u32 s45, s45, s43'); a(f's_add_u32 s45, s45, {QF}')
    for aa in range(2):
        for s in range(8):
            if s % 4 == 0 and (aa or s):
                a('s_add_u32 s45, s45, 4096')
            a(f'buffer_load_dwordx4 a[{Q(aa, s)}:{Q(aa, s) + 3}], v16, s[12:15], s45 offen offset:{(s % 4) * 1024}')
    dma_now(0, 1)
    dma_now(1, 0)
    a('v_lshrrev_b32 v2, 4, v1'); a('v_lshlrev_b32 v2, 2, v2'); a('v_and_b32 v3, 15, v1'); a('v_sub_u32 v20, v2, v3')
    a(f's_mov_b32 s22, {TH}')
    a('s_mov_b32 s23, 0')
    a('s_lshl_b32 s24, s20, 5')
    a('s_mov_b32 s19, 1')
    a('s_lshl_b32 s46, s44, 17'); a('s_lshl_b32 s47, s40, 13'); a('s_add_u32 s46, s46, s47'); a(f's_add_u32 s46, s46, {CF}')
    for r in range(128):
        a(f'v_accvgpr_write_b32 a{r}, 0')
    if stamps:
        Pq += stamp_mid(0) + ['s_waitcnt lgkmcnt(0)']
    a('s_waitcnt vmcnt(16)')
    a('s_barrier')
    sc = Sched(64)
    for f in range(32):
        g = rgap(f)
        sc.put(max(g, -1), kread(0, f))
    pro, pend = add_waits(interleave(qk_mfmas(0, True), sc.slots), [])
    Pq += pro
    a('s_barrier')
    dma_now(0, 0)
    a('s_cmp_lg_u32 s21, 0')
    a(f's_cbranch_scc1 {N}_nomask0')
    Pq += mask_code(0)
    a(f'{N}_nomask0:')
    a('s_nop 7')
    Pq += max_items(0)
    Pq += r1_code(0, True)
    it0 = softmax_items(0)
    for k, x in it0[:NP1]:
        a(x)
        if k == 'e':
            a('s_nop 0')
    a('s_waitcnt vmcnt(16)')
    a('s_barrier')
    pend = []
    for f in range(32):
        if rgap(f) < 0:
            a(kread(1, f))
            pend.append(set(regs_of(f'a[{RING(f)}:{RING(f) + 3}]')))
    if stamps:
        Pq += stamp_mid(1) + ['s_waitcnt lgkmcnt(0)']
    I0, rare0, ov0 = iteration(0, f'{N}_p0', dgap)
    I1, rare1, ov1 = iteration(1, f'{N}_p1', dgap)
    I0, pe = add_waits(I0, pend)
    assert pe == pend or True
    I1, pe2 = add_waits(I1, pe)
    I0b, pe3 = add_waits(iteration(0, f'{N}_p0', dgap)[0], pe2)
    assert I0b == I0, 'wait pattern not periodic'
    print('attnb overflow cycles', ov0, ov1, 'instrs', len(I0))
    exit0 = ['s_cmp_gt_u32 s19, s21', f's_cbranch_scc1 {N}_tail']
    T = ['s_waitcnt vmcnt(0) lgkmcnt(0)', 's_barrier']
    for f in range(32):
        if rgap(f) < 0:
            T.append(vread(1, f))
    for k, x in softmax_items(1)[NP1:]:
        T.append(x)
        if k == 'e':
            T.append('s_nop 0')
    sc = Sched(64)
    for f in range(32):
        if rgap(f) >= 0:
            sc.put(rgap(f), vread(1, f))
    pendt = [set(regs_of(f'a[{RING(f)}:{RING(f) + 3}]')) for f in range(32) if rgap(f) < 0]
    T.append('s_nop 1')
    t2, _ = add_waits(interleave(pv_mfmas(1), sc.slots), pendt)
    T += t2
    if stamps:
        T += stamp_mid(2)
    for aa in range(2):
        T += xreduce(24 + aa, 'v_add_f32')
        T.append(f'v_rcp_f32 v{24 + aa}, v{24 + aa}')
    T.append('s_nop 0')
    n = 0
    for aa in range(2):
        for s in range(8):
            tb = 160 + 4 * (n % 4)
            for e in range(8):
                T.append(f'v_accvgpr_read_b32 v{4 + e}, a{O(2 * s + e // 4, aa) + e % 4}')
            for e in range(8):
                T.append(f'v_mul_f32 v{4 + e}, v{4 + e}, v{24 + aa}')
            for d in range(4):
                T.append(f'v_cvt_pk_bf16_f32 v{tb + d}, v{4 + 2 * d}, v{5 + 2 * d}')
            if s == 4:
                T.append('s_add_u32 s46, s46, 4096')
            T.append(f'buffer_store_dwordx4 v[{tb}:{tb + 3}], v16, s[12:15], s46 offen offset:{(s % 4) * 1024}')
            n += 1
        T.append(f's_add_u32 s46, s46, {131072 - 4096}')
    if stamps:
        T += stamp_end(WS, 512)
    T.append('s_endpgm')
    out = Pq + ['.p2align 6', f'{N}_loop:'] + I0 + exit0 + I1 + [f's_branch {N}_loop', f'{N}_tail:'] + T + rare0 + rare1
    out += [f'{N}_exit:', 's_endpgm']
    assert not check(Pq + I0 + exit0 + I1 + I0 + exit0 + T, N)
    def splice(L, lab, code):
        i = L.index(lab)
        return L[:i] + code + L[i:]
    t = splice(I0, f'{N}_p0_maskret:', mask_code(1))
    t = splice(t, f'{N}_p0_r1ret:', r1_code(1))
    t = splice(t, f'{N}_p0_r2ret:', r2_code())
    assert not check(Pq + t + exit0 + I1, N + '_rare')
    text = khead(N) + '\n'.join(out) + '\n'
    return dict(name=N, text=text, grid=256, block=256, lds=LDS, vgpr=448, sgpr=102, accum=192)
```

```python
from asmlib import *
from layout import *

NAME = 'proj_kernel'
NJOBS = 432
STMOD = ''
LDS = 131072
MF = 'v_mfma_f32_16x16x32_bf16'
PFI = 'buffer_load_dword v45, v46, s[68:71], s72 offen'


def acc(i, j):
    t = i * 8 + j
    return ('v', 64 + 4 * t) if t < 48 else ('a', 128 + 4 * (t - 48))


def xf(b, i):
    return ('a', 64 * b + 4 * i)


def wf(b, j):
    return ('a', 64 * b + 32 + 4 * j)


def reads(buf, par, s):
    L = []
    for n in range(8):
        L.append(f'ds_read_b128 {R(xf(buf, n), 4)}, v{32 + s} offset:{par * 32768 + n * 2048}')
        k, r = wf(buf, n)
        for u in range(2):
            L.append(f'ds_read_b64_tr_b16 {R((k, r + 2 * u), 2)}, v{34 + n} offset:{par * 32768 + s * 16384 + u * 2048}')
    return L


def dmas(par):
    L = []
    for ii in range(8):
        pre = [f's_add_u32 m0, s25, {par * 32768 + (ii // 4) * 4096}'] if ii % 4 == 0 else []
        L.append((pre, f'buffer_load_dwordx4 v{24 + ii}, s[8:11], s19 offen offset:{(ii % 4) * 1024} lds'))
    for ii in range(8):
        pre = [f's_add_u32 m0, s24, {par * 32768 + (ii // 4) * 4096}'] if ii % 4 == 0 else []
        L.append((pre, f'buffer_load_dwordx4 v{16 + ii}, s[4:7], s18 offen offset:{(ii % 4) * 1024} lds'))
    return L


def mfmas(vtype, buf):
    L = []
    for i in range(8):
        for j in range(8):
            c = R(acc(i, j), 4)
            x, w = R(xf(buf, i), 4), R(wf(buf, j), 4)
            L.append(f'{MF} {c}, {x}, {w}, {c}' if vtype else f'{MF} {c}, {w}, {x}, {c}')
    return L


def half_loop(vtype, p, tag, dma_gap=5, dma0=1, pf=True):
    top = [f's_waitcnt vmcnt({1 if pf else 0}) lgkmcnt(0)', 's_barrier']
    fill = {}
    def add(g, x):
        fill.setdefault(g, []).append(x)
    add(-1, 's_cmp_lt_u32 s21, s22')
    add(0, 's_cselect_b32 s6, s16, 0')
    add(0, 's_cselect_b32 s10, s17, 0')
    rd = reads(0, 1 - p, 0)
    for n, x in enumerate(rd):
        add(2 + 2 * n, x)
    rd = reads(1, 1 - p, 1)
    for n, x in enumerate(rd):
        add(64 + 2 + 2 * n, x)
    dm = dmas(p)
    for n, (pre, x) in enumerate(dm):
        g = dma0 + n * dma_gap
        g = g | 1
        assert g < 126
        for y in pre:
            add(g - 1, y)
        add(g, x)
    gl = (dma0 + 15 * dma_gap) | 1
    add(gl + 1, 's_add_u32 s18, s18, 128')
    add(gl + 1, 's_add_u32 s19, s19, s23')
    if pf:
        add(gl + 2, 's_cmp_lt_u32 s21, s74')
        add(gl + 2, 's_cselect_b32 s70, s75, 0')
        add(gl + 4, PFI)
        add(gl + 5, 's_add_u32 s72, s72, s73')
    spA = mfmas(vtype, 1)
    spB = mfmas(vtype, 0)
    fa = {g: v for g, v in fill.items() if g < 64}
    fb = {g - 64: v for g, v in fill.items() if g >= 64}
    A = top + interleave(spA, fa)
    A += ['s_cmp_gt_u32 s21, s22', f's_cbranch_scc1 {tag}_epi', 's_add_u32 s21, s21, 1']
    B = ['s_waitcnt lgkmcnt(0)'] + interleave(spB, fb)
    return A, B


def epilogue(vtype, fix, stamps=False):
    L = []
    n = 0
    for o in range(4):
        for q in range(8):
            t0, t1 = (acc(2 * o, q), acc(2 * o + 1, q)) if vtype else (acc(q, 2 * o), acc(q, 2 * o + 1))
            tb = 48 + 4 * (n % 4)
            src = []
            for (k, r) in (t0, t1):
                for e in range(4):
                    if k == 'a':
                        tmp = 2 + len(src)
                        L.append(f'v_accvgpr_read_b32 v{tmp}, a{r + e}')
                        src.append(f'v{tmp}')
                    else:
                        src.append(f'v{r + e}')
            if fix and not vtype:
                for e in range(8):
                    L.append(f'v_mul_f32 {src[e]}, s78, {src[e]}')
            for d in range(4):
                L.append(f'v_cvt_pk_bf16_f32 v{tb + d}, {src[2 * d]}, {src[2 * d + 1]}')
            if fix:
                if vtype and q % 2 == 1:
                    for d in range(4):
                        L.append(f'v_and_or_b32 v{tb + d}, v{tb + d}, v43, v44')
                if not vtype:
                    for d in (2, 3):
                        L.append(f'v_and_b32 v{tb + d}, v{tb + d}, v43')
            if q == 0:
                L.append('s_mov_b32 s30, s26' if o == 0 else 's_add_u32 s30, s30, s29')
                L.append('s_mov_b32 s31, s30')
                so = 's31'
            elif q % 2 == 1:
                L.append('s_add_u32 s36, s31, s28')
                so = 's36'
            else:
                L.append('s_add_u32 s31, s31, s27')
                so = 's31'
            L.append(f'buffer_store_dwordx4 v[{tb}:{tb + 3}], v42, s[12:15], {so} offen{STMOD}')
            n += 1
    if stamps:
        L += stamp_end(WS, 0)
    L.append('s_endpgm')
    return L


def gen(dma_gap=5, stamps=False, pfd=3, order=1):
    N = NAME
    P = []
    a = P.append
    a(f's_cmp_ge_u32 s2, {NJOBS}')
    a(f's_cbranch_scc1 {N}_exit')
    if stamps:
        P += stamp_begin()
    a(f's_load_dwordx4 s[40:43], s[0:1], {A_X}')
    a(f's_load_dwordx4 s[44:47], s[0:1], {B_X}')
    a(f's_load_dwordx4 s[48:51], s[0:1], {B_WQ}')
    a(f's_load_dwordx2 s[52:53], s[0:1], {B_WUV}')
    a(f's_load_dwordx2 s[12:13], s[0:1], {WS}')
    a('v_and_b32 v1, 63, v0')
    a('v_lshrrev_b32 v2, 6, v0')
    a('s_mov_b32 s7, 0x20000')
    a('s_mov_b32 s11, 0x20000')
    a('v_readfirstlane_b32 s20, v2')
    a('s_mov_b32 s15, 0x20000')
    a(f's_mov_b32 s14, {PART}')
    if order:
        a('s_add_u32 s3, s2, 256')
        a('s_sub_u32 s54, s2, 176')
        a('s_cmp_lt_u32 s2, 176')
        a('s_cselect_b32 s3, s3, s54')
    else:
        a('s_mov_b32 s3, s2')
    a('s_and_b32 s54, s3, 7')
    a('s_lshr_b32 s55, s3, 3')
    a('s_mov_b32 s34, 64')
    a('s_mov_b32 s35, 0')
    a('s_mov_b32 s79, 0'); a('s_mov_b32 s78, 1.0')
    a('s_mov_b32 s33, 8192')
    a('s_waitcnt lgkmcnt(0)')
    a('s_cmp_ge_u32 s3, 384')
    a(f's_cbranch_scc1 {N}_jobA')
    a('s_and_b32 s56, s55, 1')
    a('s_lshl_b32 s57, s54, 1')
    a('s_add_u32 s56, s56, s57')
    a('s_lshl_b32 s58, s56, 9')
    a('s_lshl_b32 s59, s56, 20')
    a('s_cmp_ge_u32 s3, 256')
    a(f's_cbranch_scc1 {N}_jobQ')
    a('s_lshr_b32 s60, s55, 2')
    a('s_and_b32 s76, s55, 3'); a('s_lshl_b32 s76, s76, 6'); a('s_mov_b32 s77, 31')
    a('s_mov_b32 s4, s46'); a('s_mov_b32 s5, s47')
    a('s_mov_b32 s32, 2048')
    a('s_mov_b32 s22, 16')
    a(f's_mov_b32 s16, {2048 * 2048}')
    a(f's_mov_b32 s17, {1024 * 8192}')
    a('s_lshl_b32 s61, s60, 17')
    a('s_add_u32 s26, s59, s61')
    a('s_mov_b32 s62, 65536')
    a('s_bitcmp1_b32 s55, 1')
    a(f's_cbranch_scc1 {N}_jobV')
    a('s_mov_b32 s8, s50'); a('s_mov_b32 s9, s51')
    a(f'{N}_ktypeB:')
    a('s_mov_b32 s37, 0')
    a('s_mov_b32 s27, 16384'); a('s_mov_b32 s28, 8192'); a('s_mov_b32 s29, 1024')
    a('s_mov_b32 s63, 4096')
    a(f's_branch {N}_common')
    a(f'{N}_jobV:')
    a('s_mov_b32 s8, s52'); a('s_mov_b32 s9, s53')
    a(f's_add_u32 s26, s26, {VF}')
    a('s_mov_b32 s37, 1')
    a('s_mov_b32 s27, 2048'); a('s_mov_b32 s28, 1024'); a('s_mov_b32 s29, 16384')
    a('s_mov_b32 s63, 8192')
    a(f's_branch {N}_common')
    a(f'{N}_jobQ:')
    a('s_sub_u32 s60, s55, 32')
    a('s_lshr_b32 s60, s60, 1')
    a('s_and_b32 s76, s55, 1'); a('s_lshl_b32 s76, s76, 7'); a('s_mov_b32 s77, 63')
    a('s_mov_b32 s4, s44'); a('s_mov_b32 s5, s45')
    a('s_mov_b32 s8, s48'); a('s_mov_b32 s9, s49')
    a('s_mov_b32 s32, 896')
    a('s_mov_b32 s22, 7')
    a(f's_mov_b32 s16, {2048 * 896}')
    a(f's_mov_b32 s17, {448 * 8192}')
    a('s_lshl_b32 s61, s60, 17')
    a('s_add_u32 s26, s59, s61')
    a(f's_add_u32 s26, s26, {QF}')
    a('s_mov_b32 s79, 1'); a(f's_mov_b32 s78, {f32bits(LOG2E / 16)}')
    a('s_mov_b32 s62, 65536')
    a(f's_branch {N}_ktypeB')
    a(f'{N}_jobA:')
    a('s_mov_b32 s60, s54')
    a('s_sub_u32 s56, s55, 48')
    a('s_and_b32 s76, s56, 3'); a('s_lshl_b32 s76, s76, 6'); a('s_mov_b32 s77, 31')
    a('s_mov_b32 s4, s40'); a('s_mov_b32 s5, s41')
    a('s_mov_b32 s8, s42'); a('s_mov_b32 s9, s43')
    a('s_mov_b32 s32, 896')
    a('s_mov_b32 s33, 2688')
    a('s_mov_b32 s34, 56')
    a('s_mov_b32 s22, 7')
    a(f's_mov_b32 s16, {2048 * 896}')
    a(f's_mov_b32 s17, {448 * 2688}')
    a('s_mul_i32 s58, s56, 448')
    a('s_lshl_b32 s26, s56, 20')
    a(f's_add_u32 s26, s26, {QA}')
    a('s_lshl_b32 s61, s60, 14')
    a('s_add_u32 s26, s26, s61')
    a('s_mov_b32 s62, 8192')
    a('s_mov_b32 s63, 524288')
    a('s_mov_b32 s35, 1')
    a('s_mov_b32 s79, 1')
    a('s_mov_b32 s28, 256')
    a('s_cmp_ge_u32 s56, 4')
    a(f's_cbranch_scc1 {N}_jobAV')
    a('s_mov_b32 s37, 0')
    a('s_mov_b32 s27, 2048'); a('s_mov_b32 s29, 131072')
    a(f's_mov_b32 s78, {f32bits(LOG2E * 28 ** -0.5)}')
    a('s_cmp_lt_u32 s56, 2')
    a(f's_cbranch_scc1 {N}_common')
    a('s_mov_b32 s78, 1.0')
    a('s_mov_b32 s35, 2')
    a('s_mov_b32 s28, 128')
    a(f's_branch {N}_common')
    a(f'{N}_jobAV:')
    a('s_mov_b32 s37, 1')
    a('s_mov_b32 s27, 131072'); a('s_mov_b32 s29, 2048')
    a(f'{N}_common:')
    a('s_mul_i32 s61, s60, s32')
    a('s_lshl_b32 s61, s61, 8')
    a('s_add_u32 s4, s4, s61'); a('s_addc_u32 s5, s5, 0')
    a('s_sub_u32 s16, s16, s61')
    a('s_add_u32 s8, s8, s58'); a('s_addc_u32 s9, s9, 0')
    a('s_sub_u32 s17, s17, s58')
    a('s_mov_b32 s6, s16'); a('s_mov_b32 s10, s17')
    a('s_lshl_b32 s23, s33, 6')
    a('s_lshl_b32 s24, s20, 13')
    a('s_add_u32 s25, s24, 65536')
    a('s_mov_b32 s18, 0'); a('s_mov_b32 s19, 0')
    a('v_lshrrev_b32 v2, 5, v1')
    a('s_lshl_b32 s61, s20, 4')
    a('v_add_u32 v3, s61, v2')
    a('v_mul_lo_u32 v3, v3, s33')
    a('v_bfe_u32 v4, v1, 1, 4')
    a('v_xor_b32 v4, v4, v2')
    a('v_and_b32 v5, 1, v4')
    a('v_lshlrev_b32 v5, 5, v5')
    a('v_and_b32 v6, 1, v1')
    a('v_lshl_add_u32 v5, v6, 4, v5')
    a('v_add_u32 v3, v3, v5')
    a('v_lshrrev_b32 v4, 1, v4')
    for var in range(4):
        a(f'v_xor_b32 v5, {var}, v4')
        a(f'v_mul_lo_u32 v5, v5, s34')
        a(f'v_add_u32 v{6 + var}, v3, v5')
    a('s_lshl_b32 s61, s33, 1')
    a('s_mov_b32 s64, 0')
    for ii in range(8):
        var = (ii & 1) + 2 * (ii >> 2)
        if ii:
            a('s_add_u32 s64, s64, s61')
        a(f's_sub_u32 s65, s64, {(ii % 4) * 1024}')
        a(f'v_add_u32 v{24 + ii}, s65, v{6 + var}')
    a('v_lshrrev_b32 v2, 3, v1')
    a('s_lshl_b32 s61, s20, 6')
    a('v_add_u32 v2, s61, v2')
    a('v_mul_lo_u32 v2, v2, s32')
    a('v_and_b32 v3, 7, v1')
    a('v_lshrrev_b32 v4, 4, v1')
    a('v_xor_b32 v3, v3, v4')
    a('v_lshlrev_b32 v3, 4, v3')
    a('v_xor_b32 v5, 64, v3')
    a('v_add_u32 v3, v2, v3')
    a('v_add_u32 v5, v2, v5')
    a('s_lshl_b32 s61, s32, 3')
    a('s_mov_b32 s64, 0')
    for ii in range(8):
        if ii:
            a('s_add_u32 s64, s64, s61')
        a(f's_sub_u32 s65, s64, {(ii % 4) * 1024}')
        a(f'v_add_u32 v{16 + ii}, s65, v{5 if ii & 1 else 3}')
    for st in range(2):
        for pre, x in dmas(st):
            for y in pre:
                a(y); a('s_nop 0')
            a(x)
        a('s_add_u32 s18, s18, 128')
        a('s_add_u32 s19, s19, s23')
    if pfd:
        a('s_mov_b32 s71, 0x20000')
        a(f's_sub_u32 s74, s22, {pfd - 1}')
        a('s_and_b32 s61, s20, 1')
        a('s_cmp_ge_u32 s20, 2')
        a(f's_cbranch_scc1 {N}_pfw')
        a('s_mov_b32 s68, s4'); a('s_mov_b32 s69, s5'); a('s_mov_b32 s75, s16'); a('s_mov_b32 s73, 128')
        a('s_add_u32 s64, s77, 1'); a('s_mul_i32 s64, s64, s61'); a('s_add_u32 s64, s64, s76')
        a('v_and_b32 v46, s77, v1')
        a('v_add_u32 v46, s64, v46')
        a('v_mul_lo_u32 v46, v46, s32')
        a(f's_branch {N}_pfd')
        a(f'{N}_pfw:')
        a('s_mov_b32 s68, s8'); a('s_mov_b32 s69, s9'); a('s_mov_b32 s75, s17'); a('s_mov_b32 s73, s23')
        a('s_lshl_b32 s64, s60, 3'); a('s_lshl_b32 s61, s61, 2'); a('s_add_u32 s64, s64, s61')
        a('v_bfe_u32 v46, v1, 2, 2')
        a('v_add_u32 v46, s64, v46')
        a('v_mul_lo_u32 v46, v46, s33')
        a('v_and_b32 v2, 3, v1')
        a('v_lshl_add_u32 v46, v2, 7, v46')
        a(f'{N}_pfd:')
        a('s_mov_b32 s70, s75')
        a('s_lshl_b32 s72, s73, 1')
        for d in range(pfd):
            a(PFI)
            a('s_add_u32 s72, s72, s73')
    a('s_lshr_b32 s66, s20, 1')
    a('s_and_b32 s67, s20, 1')
    a('v_and_b32 v2, 15, v1')
    a('v_lshrrev_b32 v3, 1, v2')
    a('v_xor_b32 v3, v3, v4')
    a('v_lshlrev_b32 v3, 4, v3')
    a('v_lshl_add_u32 v3, v2, 7, v3')
    a('s_lshl_b32 s61, s66, 14')
    a('v_add_u32 v32, s61, v3')
    a('v_xor_b32 v33, 64, v32')
    a('v_lshrrev_b32 v3, 2, v2')
    a('v_lshl_add_u32 v5, v4, 3, v3')
    a('v_lshlrev_b32 v5, 9, v5')
    a('v_and_b32 v6, 1, v4')
    a('v_lshl_add_u32 v6, v6, 2, v3')
    a('v_lshl_add_u32 v5, v6, 5, v5')
    a('v_and_b32 v6, 3, v1')
    a('v_lshl_add_u32 v5, v6, 3, v5')
    a('s_lshl_b32 s61, s67, 8')
    a('s_add_u32 s61, s61, 65536')
    a('v_add_u32 v34, s61, v5')
    for j in range(1, 8):
        a(f'v_xor_b32 v{34 + j}, {32 * j}, v34')
    a('s_mul_i32 s61, s66, s62'); a('s_add_u32 s26, s26, s61')
    a('s_mul_i32 s61, s67, s63'); a('s_add_u32 s26, s26, s61')
    a('v_lshlrev_b32 v42, 4, v1')
    a('v_mov_b32 v43, -1')
    a('s_cmp_eq_u32 s35, 0')
    a(f's_cbranch_scc1 {N}_lm_done')
    a('v_lshlrev_b32 v42, 9, v4')
    a('v_lshl_add_u32 v42, v2, 4, v42')
    a('s_cmp_eq_u32 s35, 1')
    a(f's_cbranch_scc1 {N}_lm1')
    a('v_and_b32 v5, 8, v1')
    a('v_lshl_add_u32 v42, v5, 4, v42')
    a(f'{N}_lm1:')
    a('v_mov_b32 v44, 0')
    a('s_cmp_eq_u32 s37, 0')
    a('s_cselect_b32 s61, 48, 12')
    a('v_mov_b32 v5, v2')
    a(f's_cbranch_scc0 {N}_lm2')
    a('v_mov_b32 v5, v1')
    a(f'{N}_lm2:')
    a('v_cmp_gt_u32 vcc, s61, v5')
    a('v_mov_b32 v6, 0x3f803f80')
    a('s_nop 0')
    a('v_cndmask_b32 v43, 0, -1, vcc')
    a('v_cmp_eq_u32 vcc, 12, v2')
    a('s_nop 1')
    a('v_cndmask_b32 v44, v44, v6, vcc')
    a(f'{N}_lm_done:')
    for t in range(64):
        k, r = acc(t // 8, t % 8)
        for e in range(4):
            a(f'v_mov_b32 v{r + e}, 0' if k == 'v' else f'v_accvgpr_write_b32 a{r + e}, 0')
    if stamps:
        P += stamp_mid(0)
    a(f's_waitcnt vmcnt({16 + pfd})')
    a('s_barrier')
    if stamps:
        P += stamp_mid(1)
    P += reads(0, 0, 0)
    a('s_mov_b32 s21, 2')
    body = {}
    for vt in (0, 1):
        tag = f'{N}_t{vt}'
        A0, B0 = half_loop(vt, 0, tag, dma_gap, pf=bool(pfd))
        A1, B1 = half_loop(vt, 1, tag, dma_gap, pf=bool(pfd))
        body[vt] = (A0, B0, A1, B1)
    a('s_cmp_eq_u32 s37, 0')
    a(f's_cbranch_scc0 {N}_t1_entry')
    a(f's_branch {N}_t0_entry')
    out = list(P)
    for vt in (0, 1):
        tag = f'{N}_t{vt}'
        A0, B0, A1, B1 = body[vt]
        Bent = [x for x in B1 if not ('buffer_load' in x or 'm0' in x or x.startswith('s_add_u32 s18') or x.startswith('s_add_u32 s19') or 's72' in x or 's74' in x or 's70' in x)]
        out += ['.p2align 6', f'{tag}_entry:'] + Bent + [f'{tag}_loop:'] + A0 + B0 + A1 + B1 + [f's_branch {tag}_loop']
        out += [f'{tag}_epi:'] + (stamp_mid(2) if stamps else []) + ['s_nop 7', 's_cmp_eq_u32 s79, 0', f's_cbranch_scc0 {tag}_epifix']
        out += epilogue(vt, False, stamps) + [f'{tag}_epifix:'] + epilogue(vt, True, stamps)
        tr = P + Bent + A0 + B0 + A1 + B1 + A0 + ['s_nop 7', 's_cmp_eq_u32 s35, 0'] + epilogue(vt, True)
        assert not check(tr, tag, dummy={('v', 45)})
    out += [f'{N}_exit:', 's_endpgm']
    text = khead(N) + '\n'.join(out) + '\n'
    return dict(name=N, text=text, grid=NJOBS, block=256, lds=LDS, vgpr=448, sgpr=102, accum=256)
```

```python
KF = 0x0000000
VF = 0x1000000
QF = 0x2000000
CF = 0x3000000
QA = 0x4000000
KA = 0x4200000
VA = 0x4400000
CA = 0x4600000
PART = 0x5000000
PART_END = PART + 16 * 128 * 14 * 1024
FLG = 0x7000000
WS_SIZE = 0x10000000
A_X, A_WQKV, A_WO, B_X, B_CKV, B_WQ, B_WUK, B_WUV, B_WO, OUT, DBG, WS = [8 * i for i in range(12)]
import struct
LOG2E = 1.4426950408889634
def f32bits(x): return hex(struct.unpack('<I', struct.pack('<f', x))[0])
```

```python
from asmlib import *
from layout import *
from attnb import add_waits

NAME = 'outp_kernel'
MF = 'v_mfma_f32_16x16x32_bf16'
NST = 36
DEPTH = 7
RS = 8
ROWP = 272
LDS = 2 * 4 * 64 * ROWP


def CFr(k, i): return 64 + 16 * (k % RS) + 4 * i
def WFr(k, j): return 192 + 16 * (k % 2) + 4 * j
def ACC(br, i, j): return 64 * br + 16 * i + 4 * j


def loads(k):
    L = []
    if k < 32:
        L.append(f's_add_u32 m0, s18, {(k % RS) * 4096}')
        for i in range(4):
            L.append(f'buffer_load_dwordx4 {vr(CFr(k, i), 4)}, v{20 + i}, s[12:15], s16 offen offset:{(k % 4) * 1024}')
            L.append(f'buffer_load_dwordx4 v{24 + i}, s[4:7], s17 offen offset:{i * 1024} lds')
        if k % 4 == 3:
            L.append('s_add_u32 s16, s16, 4096')
        L.append(f's_add_u32 s17, s17, {32 * 896}')
    else:
        kk = k - 32
        L.append(f's_add_u32 m0, s18, {(k % RS) * 4096}')
        for i in range(4):
            L.append(f'buffer_load_dwordx4 {vr(CFr(k, i), 4)}, v{28 + i}, s[12:15], s19 offen offset:{kk * 1024}')
            L.append(f'buffer_load_dwordx4 v{24 + i}, s[8:11], s21 offen offset:{i * 1024} lds')
        L.append(f's_add_u32 s21, s21, {28 * 896}')
    return L


def wreads(k):
    L = []
    for j in range(4):
        for u in range(2):
            L.append(f'ds_read_b64_tr_b16 {vr(WFr(k, j) + 2 * u, 2)}, v{32 + j} offset:{(k % RS) * 4096 + u * 2048}')
    return L


def gen(stamps=False):
    N = NAME
    Pq = []
    a = Pq.append
    a('s_cmp_ge_u32 s2, 224')
    a(f's_cbranch_scc1 {N}_exit')
    if stamps:
        Pq += stamp_begin()
    a(f's_load_dwordx2 s[12:13], s[0:1], {WS}')
    a(f's_load_dwordx2 s[4:5], s[0:1], {B_WO}')
    a(f's_load_dwordx2 s[8:9], s[0:1], {A_WO}')
    a(f's_load_dwordx2 s[24:25], s[0:1], {OUT}')
    a('v_and_b32 v1, 63, v0')
    a('v_lshrrev_b32 v2, 6, v0')
    a('v_lshlrev_b32 v16, 4, v1')
    a('v_readfirstlane_b32 s20, v2')
    a('s_and_b32 s40, s2, 7')
    a('s_lshr_b32 s41, s2, 3')
    a('s_mul_i32 s42, s41, 37')
    a('s_lshr_b32 s42, s42, 8')
    a('s_mul_i32 s43, s42, 7')
    a('s_sub_u32 s43, s41, s43')
    a('s_lshl_b32 s42, s42, 3')
    a('s_add_u32 s42, s42, s40')
    a('s_mov_b32 s7, 0x20000'); a('s_mov_b32 s11, 0x20000'); a('s_mov_b32 s15, 0x20000'); a('s_mov_b32 s27, 0x20000')
    a(f's_mov_b32 s14, {PART}')
    a(f's_mov_b32 s6, {4096 * 896}'); a(f's_mov_b32 s10, {448 * 896}'); a(f's_mov_b32 s26, {2048 * 1792}')
    a('s_lshl_b32 s18, s20, 15')
    a('s_lshl_b32 s16, s42, 19'); a('s_add_u32 s16, s16, s18'); a(f's_add_u32 s16, s16, {CF}')
    a('s_lshl_b32 s19, s42, 16'); a('s_lshl_b32 s44, s20, 12'); a('s_add_u32 s19, s19, s44'); a(f's_add_u32 s19, s19, {CA}')
    for i in range(4):
        a(f'v_add_u32 v{20 + i}, {i * 131072}, v16')
        a(f'v_add_u32 v{28 + i}, {i * 16384}, v16')
    a('s_lshl_b32 s44, s43, 7')
    a(f's_mul_i32 s17, s20, {1024 * 896}'); a('s_add_u32 s17, s17, s44')
    a(f's_mul_i32 s21, s20, {112 * 896}'); a('s_add_u32 s21, s21, s44')
    a('v_lshrrev_b32 v2, 3, v1')
    a('v_mul_u32_u24 v2, 896, v2')
    a('v_lshrrev_b32 v3, 4, v1')
    a('v_lshlrev_b32 v4, 1, v3')
    a('v_and_b32 v5, 7, v1')
    a('v_xor_b32 v4, v4, v5')
    a('v_lshl_add_u32 v24, v4, 4, v2')
    for i in range(1, 4):
        a(f'v_add_u32 v{24 + i}, {i * (8 * 896 - 1024)}, v24')
    a('s_waitcnt lgkmcnt(0)')
    for k in range(DEPTH):
        ld = loads(k)
        Pq += ld[:1] + ['s_nop 0'] + ld[1:]
    a('v_bfe_u32 v4, v1, 2, 2')
    a('v_lshl_add_u32 v5, v3, 2, v4')
    a('v_lshrrev_b32 v6, 1, v5')
    a('v_and_b32 v6, 3, v6')
    a('v_lshlrev_b32 v5, 7, v5')
    a('v_lshl_add_u32 v5, v6, 5, v5')
    a('v_and_b32 v6, 3, v1')
    a('v_lshl_add_u32 v5, v6, 3, v5')
    a('v_add_u32 v32, s18, v5')
    for j in range(1, 4):
        a(f'v_xor_b32 v{32 + j}, {32 * j}, v32')
    if stamps:
        Pq += stamp_mid(0) + ['s_waitcnt lgkmcnt(0)']
    a(f's_waitcnt vmcnt({8 * (DEPTH - 1)})')
    Pq += wreads(0)
    pend = [set(parse(x).w) for x in wreads(0)]
    if stamps:
        Pq += stamp_mid(1) + ['s_waitcnt lgkmcnt(0)']
    M = []
    for k in range(NST):
        br = 0 if k < 32 else 1
        first = k in (0, 32)
        sp = []
        for i in range(4):
            for j in range(4):
                c = ar(ACC(br, i, j), 4)
                sp.append(f'{MF} {c}, {vr(WFr(k, j), 4)}, {vr(CFr(k, i), 4)}, {"0" if first else c}')
        fill = {}
        def add(g, x): fill.setdefault(g, []).append(x)
        if k + 1 < NST:
            young = max(0, min(k + DEPTH - 1, NST - 1) - (k + 1))
            add(-1, f's_waitcnt vmcnt({8 * young})')
            for n, x in enumerate(wreads(k + 1)):
                add(n, x)
        if k + DEPTH < NST:
            ld = loads(k + DEPTH)
            for n, x in enumerate(ld):
                add(min(15, 4 + n), x)
        L, pend = add_waits(interleave(sp, fill), pend)
        M += L
    if stamps:
        M += stamp_mid(2)
    E = ['s_waitcnt lgkmcnt(0)', 's_barrier', 's_nop 7']
    E += ['v_and_b32 v2, 15, v1', f'v_mul_u32_u24 v2, {ROWP}, v2', 'v_lshl_add_u32 v2, v3, 4, v2',
          f's_mul_i32 s44, s20, {64 * ROWP}', 'v_add_u32 v2, s44, v2', f'v_add_u32 v4, {4 * 64 * ROWP}, v2']
    for br in range(2):
        for i in range(4):
            for j in range(4):
                E.append(f'ds_write_b128 v{2 if br == 0 else 4}, {ar(ACC(br, i, j), 4)} offset:{i * 16 * ROWP + j * 64}')
    E += ['v_lshrrev_b32 v5, 2, v0', f'v_mul_u32_u24 v6, {ROWP}, v5', 'v_and_b32 v7, 3, v0', 'v_lshl_add_u32 v6, v7, 6, v6',
          f'v_add_u32 v8, {4 * 64 * ROWP}, v6',
          'v_mul_u32_u24 v9, 1792, v5', 'v_lshl_add_u32 v9, v7, 5, v9',
          f's_mul_i32 s45, s42, {64 * 1792}', 's_lshl_b32 s44, s43, 7', 's_add_u32 s45, s45, s44',
          's_waitcnt lgkmcnt(0)', 's_barrier']
    for br in range(2):
        base = 64 + 64 * br
        for w in range(4):
            for c in range(4):
                E.append(f'ds_read_b128 {vr(base + 16 * w + 4 * c, 4)}, v{6 if br == 0 else 8} offset:{w * 64 * ROWP + c * 16}')
    for br in range(2):
        base = 64 + 64 * br
        E.append(f's_waitcnt lgkmcnt({0 if br else 15})' if br else 's_waitcnt lgkmcnt(15)')
        if br == 0:
            E[-1] = 's_waitcnt lgkmcnt(0)'
        for e in range(16):
            E.append(f'v_add_f32 v{base + e}, v{base + e}, v{base + 16 + e}')
            E.append(f'v_add_f32 v{base + 32 + e}, v{base + 32 + e}, v{base + 48 + e}')
        for e in range(16):
            E.append(f'v_add_f32 v{base + e}, v{base + e}, v{base + 32 + e}')
        for d in range(8):
            E.append(f'v_cvt_pk_bf16_f32 v{base + 16 + d}, v{base + 2 * d}, v{base + 2 * d + 1}')
        off = 896 if br == 0 else 0
        E.append(f'buffer_store_dwordx4 {vr(base + 16, 4)}, v9, s[24:27], s45 offen offset:{off}')
        E.append(f'buffer_store_dwordx4 {vr(base + 20, 4)}, v9, s[24:27], s45 offen offset:{off + 16}')
    if stamps:
        E += stamp_end(WS, 1024)
    E.append('s_endpgm')
    out = Pq + M + E + [f'{N}_exit:', 's_endpgm']
    assert not check(Pq + M + E, N)
    text = khead(N) + '\n'.join(out) + '\n'
    return dict(name=N, text=text, grid=224, block=256, lds=LDS, vgpr=224 + 128, sgpr=102, accum=224)
```

```python
from build import *
import gemm1, attnb, attna, outp
assemble([gemm1.gen(stamps=True), attnb.gen(stamps=True), attna.gen(stamps=True), outp.gen(stamps=True)], 'k.s')
assemble([gemm1.gen(), attnb.gen(), attna.gen(), outp.gen()], f'cdna_kernels/{KN}.s')
```

```python
import re

REG_RE = re.compile(r'^(-?)(?:abs\()?([vas])(?:(\d+)|\[(\d+):(\d+)\])\)?$')
TRANS = ('v_exp_f32', 'v_log_f32', 'v_rcp_f32', 'v_rsq_f32', 'v_sqrt_f32', 'v_sin_f32', 'v_cos_f32')


def vr(n, c=1):
    return f'v{n}' if c == 1 else f'v[{n}:{n + c - 1}]'


def ar(n, c=1):
    return f'a{n}' if c == 1 else f'a[{n}:{n + c - 1}]'


def sr(n, c=1):
    return f's{n}' if c == 1 else f's[{n}:{n + c - 1}]'


def R(kind_n, c=1):
    k, n = kind_n
    return f'{k}{n}' if c == 1 else f'{k}[{n}:{n + c - 1}]'


def regs_of(tok):
    tok = tok.strip()
    if tok in ('vcc', 'exec', 'm0', 'scc'):
        return [(tok, 0)]
    if tok in ('vcc_lo', 'vcc_hi'):
        return [('vcc', 0)]
    if tok in ('exec_lo', 'exec_hi'):
        return [('exec', 0)]
    m = REG_RE.match(tok)
    if not m:
        return []
    k = m.group(2)
    if m.group(3) is not None:
        return [(k, int(m.group(3)))]
    return [(k, i) for i in range(int(m.group(4)), int(m.group(5)) + 1)]


class Ins:
    __slots__ = ('text', 'op', 'cls', 'w', 'r', 'srcA', 'srcB', 'srcC', 'passes', 'lds_dma', 'nop', 'wait', 'ops')


def parse(line):
    t = line.split(';')[0].split('//')[0].strip()
    if not t or t.endswith(':') or t.startswith('.'):
        return None
    parts = t.split(None, 1)
    op = parts[0]
    rest = parts[1] if len(parts) > 1 else ''
    ops = [o.strip() for o in rest.split(',')] if rest else []
    mods = ''
    if ops:
        lp = ops[-1].split()
        if lp:
            ops[-1] = lp[0]
            mods = ' '.join(lp[1:])
    I = Ins()
    I.text, I.op, I.w, I.r = t, op, [], []
    I.srcA = I.srcB = I.srcC = []
    I.passes = 0
    I.lds_dma = False
    I.nop = 1
    I.wait = None
    I.ops = ops
    base = op.replace('_e32', '').replace('_e64', '')
    if op.startswith('v_mfma'):
        I.cls = 'mfma'
        I.w = regs_of(ops[0])
        I.srcA, I.srcB, I.srcC = regs_of(ops[1]), regs_of(ops[2]), regs_of(ops[3])
        I.r = I.srcA + I.srcB + I.srcC
        I.passes = 8 if '32x32x16' in op else 4 if '16x16x32' in op else None
        assert I.passes
    elif op.startswith('v_'):
        I.cls = 'valu'
        I.w = regs_of(ops[0])
        srcs = ops[1:]
        if base in ('v_add_co_u32', 'v_addc_co_u32', 'v_sub_co_u32', 'v_subb_co_u32'):
            I.w = I.w + regs_of(ops[1])
            srcs = ops[2:]
        for o in srcs:
            I.r += regs_of(o)
        if base.startswith('v_fmac') or base.startswith('v_permlane') or base in ('v_writelane_b32',):
            I.r += regs_of(ops[0])
        if base.startswith('v_permlane'):
            I.w = I.w + regs_of(ops[1])
        if base.startswith('v_cmpx'):
            I.w = I.w + [('exec', 0)]
        if base == 'v_cndmask_b32' and len(ops) == 3:
            I.r += [('vcc', 0)]
    elif op.startswith('ds_'):
        I.cls = 'ds'
        if op.startswith('ds_read') or 'permute' in op or 'swizzle' in op:
            I.w = regs_of(ops[0])
            for o in ops[1:]:
                I.r += regs_of(o)
        else:
            for o in ops:
                I.r += regs_of(o)
    elif op.startswith('buffer_') or op.startswith('global_'):
        I.cls = 'vmem'
        is_lds = (' lds' in (' ' + mods)) or '_lds_' in op
        I.lds_dma = is_lds
        if is_lds:
            for o in ops:
                I.r += regs_of(o)
            I.r += [('m0', 0)]
        elif '_load' in op:
            I.w = regs_of(ops[0])
            for o in ops[1:]:
                I.r += regs_of(o)
        elif op in ('buffer_wbl2', 'buffer_inv'):
            pass
        else:
            for o in ops:
                I.r += regs_of(o)
            if 'atomic' in op and 'sc0' in mods:
                I.w = regs_of(ops[0])
    elif op == 's_waitcnt':
        I.cls = 'wait'
        w = {}
        for m in re.finditer(r'(vmcnt|lgkmcnt|expcnt)\((\d+)\)', rest):
            w[m.group(1)] = int(m.group(2))
        I.wait = w
    elif op == 's_nop':
        I.cls = 'nop'
        I.nop = int(ops[0], 0) + 1
    elif op.startswith('s_load') or op.startswith('s_buffer_load') or op in ('s_memtime', 's_memrealtime') or op.startswith('s_atomic'):
        I.cls = 'smem'
        I.w = regs_of(ops[0])
        for o in ops[1:]:
            I.r += regs_of(o)
    elif op.startswith('s_'):
        I.cls = 'salu'
        if op.startswith('s_cmp') or op.startswith('s_cbranch') or op in ('s_branch', 's_barrier', 's_endpgm', 's_setprio', 's_sleep', 's_bitcmp1_b32', 's_bitcmp0_b32'):
            for o in ops:
                I.r += regs_of(o)
        else:
            I.w = regs_of(ops[0])
            for o in ops[1:]:
                I.r += regs_of(o)
            if 'saveexec' in op:
                I.w = I.w + [('exec', 0)]
    else:
        raise ValueError('unknown op: ' + t)
    return I


def check(lines, name='trace', verbose=True, dummy=()):
    probs = []
    pos = 0
    last_valu_w = {}
    last_trans_w = {}
    last_mfma_w = {}
    last_mfma_c = {}
    last_valu_sw = {}
    last_m0 = -100
    last_exec_valu = -100
    store_data = {}
    vm_q = []
    lg_q = []
    smem_out = False
    RAWD = {4: 8, 8: 12}
    OVL = {4: 6, 8: 10}
    WARC = {4: 3, 8: 7}

    def bad(I, msg):
        probs.append(f'{name}: [{I.text}] {msg}')

    for ln in lines:
        I = parse(ln)
        if I is None:
            continue
        pend = set()
        for q in vm_q:
            pend |= q
        for q in lg_q:
            pend |= q
        for r in I.r + I.w:
            if r in pend and r not in dummy:
                bad(I, f'touches {r} still pending from memory op')
                break
        dist = lambda p: pos - p - 1
        if I.cls == 'mfma':
            for r in I.r:
                if r in last_valu_w and dist(last_valu_w[r]) < 2:
                    bad(I, f'VALU->MFMA {r} dist {dist(last_valu_w[r])} < 2')
            for r in I.srcA + I.srcB:
                if r in last_mfma_w:
                    p, ps, _ = last_mfma_w[r]
                    if dist(p) < RAWD[ps]:
                        bad(I, f'MFMA D->A/B {r} dist {dist(p)} < {RAWD[ps]}')
            for r in I.srcC:
                if r in last_mfma_w:
                    p, ps, dt = last_mfma_w[r]
                    if dt == tuple(I.srcC) and ps == I.passes:
                        continue
                    if dist(p) < OVL[ps]:
                        bad(I, f'MFMA D->C overlap {r} dist {dist(p)} < {OVL[ps]}')
            if tuple(I.w) != tuple(I.srcC):
                for r in I.w:
                    if r in last_mfma_w:
                        p, ps, dt = last_mfma_w[r]
                        if dist(p) < OVL[ps]:
                            bad(I, f'MFMA D->D WAW {r} dist {dist(p)} < {OVL[ps]}')
            if dist(last_exec_valu) < 4:
                bad(I, 'VALU exec write -> MFMA < 4')
        elif I.cls in ('valu', 'ds', 'vmem'):
            for r in I.r + I.w:
                if r in last_mfma_w:
                    p, ps, _ = last_mfma_w[r]
                    if dist(p) < RAWD[ps]:
                        bad(I, f'MFMA D->{I.cls} {r} dist {dist(p)} < {RAWD[ps]}')
            if I.cls == 'valu':
                for r in I.w:
                    if r in last_mfma_c:
                        p, ps = last_mfma_c[r]
                        if dist(p) < WARC[ps]:
                            bad(I, f'MFMA C WAR {r} dist {dist(p)} < {WARC[ps]}')
                    if r in store_data and dist(store_data[r]) < 2:
                        bad(I, f'store data WAR {r}')
                base = I.op.replace('_e32', '').replace('_e64', '')
                if base not in TRANS:
                    for r in I.r:
                        if r in last_trans_w and dist(last_trans_w[r]) < 1:
                            bad(I, f'trans->VALU {r}')
                for r in I.r:
                    if r[0] in ('s', 'vcc') and r in last_valu_sw and dist(last_valu_sw[r]) < 2:
                        bad(I, f'VALU sgpr write -> VALU read {r}')
                if base.startswith('v_permlane') or 'dpp' in I.text or 'row_' in I.text or 'quad_perm' in I.text:
                    for r in I.r:
                        if r in last_valu_w and dist(last_valu_w[r]) < 2:
                            bad(I, f'VALU->permlane/dpp {r}')
                if base in ('v_readfirstlane_b32', 'v_readlane_b32'):
                    for r in I.r:
                        if r in last_valu_w and dist(last_valu_w[r]) < 1:
                            bad(I, f'VALU->readlane {r}')
                    if dist(last_exec_valu) < 4:
                        bad(I, 'exec write -> readlane')
            else:
                for r in I.w:
                    if r in store_data and dist(store_data[r]) < 1:
                        bad(I, f'store data WAR {r}')
            if I.cls == 'vmem':
                for r in I.r:
                    if r[0] == 's' and r in last_valu_sw and dist(last_valu_sw[r]) < 5:
                        bad(I, f'VALU sgpr write -> VMEM {r}')
                if I.lds_dma and dist(last_m0) < 1:
                    bad(I, 'm0 write -> LDS DMA')
        if I.cls == 'mfma':
            for r in I.w:
                last_mfma_w[r] = (pos, I.passes, tuple(I.w))
                last_valu_w.pop(r, None)
            for r in I.srcC:
                last_mfma_c[r] = (pos, I.passes)
        elif I.cls == 'valu':
            base = I.op.replace('_e32', '').replace('_e64', '')
            for r in I.w:
                if r[0] in ('v', 'a'):
                    last_valu_w[r] = pos
                    last_mfma_w.pop(r, None)
                    if base in TRANS:
                        last_trans_w[r] = pos
                    else:
                        last_trans_w.pop(r, None)
                elif r[0] == 'exec':
                    last_exec_valu = pos
                else:
                    last_valu_sw[r] = pos
        elif I.cls == 'ds':
            lg_q.append(set(I.w))
        elif I.cls == 'smem':
            lg_q.append(set(I.w))
            smem_out = True
        elif I.cls == 'vmem':
            vm_q.append(set(I.w))
            if '_store' in I.op and ('x4' in I.op or 'x3' in I.op):
                d = I.ops[0] if I.op.startswith('buffer') else I.ops[1]
                for r in regs_of(d):
                    store_data[r] = pos
        elif I.cls == 'salu':
            if ('m0', 0) in I.w:
                last_m0 = pos
            for r in I.w:
                last_valu_sw.pop(r, None)
        elif I.cls == 'wait':
            if 'vmcnt' in I.wait:
                n = I.wait['vmcnt']
                if len(vm_q) > n:
                    vm_q = vm_q[len(vm_q) - n:] if n else []
            if 'lgkmcnt' in I.wait:
                n = I.wait['lgkmcnt']
                if smem_out and n > 0:
                    pass
                else:
                    if len(lg_q) > n:
                        lg_q = lg_q[len(lg_q) - n:] if n else []
                    if n == 0:
                        smem_out = False
        if len(vm_q) > 63:
            probs.append(f'{name}: vmcnt overflow (>63 outstanding) at [{I.text}]')
            vm_q = vm_q[-63:]
        pos += I.nop
    if verbose:
        for p in probs[:40]:
            print('HAZARD', p)
        if len(probs) > 40:
            print('...', len(probs), 'problems')
    return probs


def interleave(spine, fillers_by_gap):
    out = list(fillers_by_gap.get(-1, []))
    for i, s in enumerate(spine):
        out.append(s)
        out += fillers_by_gap.get(i, [])
    return out


def kd(name, vgpr, sgpr, accum, extra=''):
    return f""".p2align 6
.amdhsa_kernel {name}
  .amdhsa_next_free_vgpr {vgpr}
  .amdhsa_next_free_sgpr {sgpr}
  .amdhsa_accum_offset {accum}
  .amdhsa_group_segment_fixed_size 0
  .amdhsa_kernarg_size 96
  .amdhsa_user_sgpr_count 2
  .amdhsa_user_sgpr_kernarg_segment_ptr 1
  .amdhsa_system_sgpr_workgroup_id_x 1
{extra}.end_amdhsa_kernel
"""


def khead(name):
    return f""".globl {name}
.p2align 8
.type {name},@function
{name}:
"""


def stamp_begin(sb=90):
    return [f's_memrealtime s[{sb}:{sb + 1}]', f's_memtime s[{sb + 2}:{sb + 3}]']


def stamp_mid(n):
    return [f's_memtime s[{80 + 2 * n}:{81 + 2 * n}]']


def stamp_end(wsoff_kernarg, slot_base, sb=90, v=2, idreg='s2'):
    t = sb + 4
    return ['s_memtime s[86:87]', 's_waitcnt vmcnt(0) lgkmcnt(0)', f's_memrealtime s[{t}:{t + 1}]', f's_memtime s[{t + 2}:{t + 3}]',
            f's_load_dwordx2 s[{t + 6}:{t + 7}], s[0:1], {wsoff_kernarg}', 's_waitcnt lgkmcnt(0)',
            f's_sub_u32 s{t + 2}, s{t + 2}, s{sb + 2}',
            f's_sub_u32 s80, s80, s{sb + 2}', f's_sub_u32 s82, s82, s{sb + 2}', f's_sub_u32 s84, s84, s{sb + 2}', f's_sub_u32 s86, s86, s{sb + 2}',
            f'v_mov_b32 v{v}, s{sb}', f'v_mov_b32 v{v + 1}, s{t}', f'v_mov_b32 v{v + 2}, s{t + 2}', f'v_mov_b32 v{v + 3}, 0',
            f'v_mov_b32 v{v + 4}, s80', f'v_mov_b32 v{v + 5}, s82', f'v_mov_b32 v{v + 6}, s84', f'v_mov_b32 v{v + 7}, s86',
            f's_add_u32 s{t + 4}, {idreg}, {slot_base}', f's_lshl_b32 s{t + 4}, s{t + 4}, 5', f's_add_u32 s{t + 4}, s{t + 4}, 0xF000000',
            f'v_mov_b32 v{v + 8}, s{t + 4}',
            'v_cmp_eq_u32 vcc, 0, v0', f's_and_saveexec_b64 s[{t + 4}:{t + 5}], vcc', 's_cbranch_execz 4',
            f'global_store_dwordx4 v{v + 8}, v[{v}:{v + 3}], s[{t + 6}:{t + 7}]',
            f'global_store_dwordx4 v{v + 8}, v[{v + 4}:{v + 7}], s[{t + 6}:{t + 7}] offset:16', 's_waitcnt vmcnt(0)']


def stamp_init():
    return ['s_lshl_b32 s100, s2, 2', 's_add_u32 s100, s100, s20', 's_lshl_b32 s100, s100, 6', 's_add_u32 s100, s100, 0xF100000']


def stamp_at(k):
    return ['s_memtime s[88:89]' if False else 's_memtime s[84:85]', 's_waitcnt lgkmcnt(0)', 's_sub_u32 s84, s84, s92', 'v_mov_b32 v63, s84', 'v_mov_b32 v62, s100',
            f'global_store_dword v62, v63, s[12:13] offset:{4 * k}']
```

```python
from asmlib import *
from layout import *
from attnb import add_waits

MF = 'v_mfma_f32_32x32x16_bf16'
TH = 0x42200000


def S(b, t, a): return 64 + 64 * b + 32 * t + 16 * a
def P(t, a, u): return 192 + 16 * t + 8 * a + 4 * u
def OO(a): return 224 + 16 * a
def NEG(a): return 32 + 16 * a
def KFr(t, u): return 8 * t + 4 * u
def VFr(t, u): return 16 + 8 * t + 4 * u
def QFr(a, u): return 32 + 8 * a + 4 * u
TM = {(0, 0): 21, (0, 1): 22, (1, 0): 24, (1, 1): 25}


def kreads(slot, unit):
    return [f'ds_read_b128 {ar(KFr(t, u), 4)}, v16 offset:{slot * 16384 + (unit * 2 + t) * 2048 + u * 1024}' for t in range(2) for u in range(2)]


def vreads(slot, unit):
    return [f'ds_read_b128 {ar(VFr(t, u), 4)}, v16 offset:{slot * 16384 + 8192 + (unit * 2 + t) * 2048 + u * 1024}' for t in range(2) for u in range(2)]


def qk(b, first=False):
    L = []
    for t in range(2):
        for u in range(2):
            for a in range(2):
                d = vr(S(b, t, a), 16)
                c = d if u else ('0' if first else vr(NEG(a), 16))
                L.append(f'{MF} {d}, {ar(KFr(t, u), 4)}, {ar(QFr(a, u), 4)}, {c}')
    return L


def pv(t, a):
    return [f'{MF} {vr(OO(a), 16)}, {ar(VFr(t, u), 4)}, {vr(P(t, a, u), 4)}, {vr(OO(a), 16)}' for u in range(2)]


def expstream(b):
    L, done = [], []
    q = []
    for n, (t, a) in enumerate(((0, 0), (0, 1), (1, 0), (1, 1))):
        s = S(b, t, a)
        for i in range(0, 16, 2):
            L += [f'v_exp_f32 v{s + i}, v{s + i}', f'v_exp_f32 v{s + i + 1}, v{s + i + 1}']
            q.append((f'v_cvt_pk_bf16_f32 v{P(t, a, 0) + i // 2}, v{s + i}, v{s + i + 1}', n if i == 14 else None))
            if len(q) > 2:
                x, d = q.pop(0)
                L.append(x)
                if d is not None:
                    done.append(len(L) - 1)
    return L, done, [x for x, _ in q]


def maxes(b):
    ch = []
    for (t, a), r in TM.items():
        s = S(b, t, a)
        ch.append([f'v_max3_f32 v{r}, v{s}, v{s + 1}, v{s + 2}'] + [f'v_max3_f32 v{r}, v{s + i}, v{s + i + 1}, v{r}' for i in range(3, 15, 2)])
    out = [x for grp in zip(*ch) for x in grp]
    out += [f'v_max3_f32 v24, v{S(b, 0, 0) + 15}, v{S(b, 1, 0) + 15}, v24', f'v_max3_f32 v25, v{S(b, 0, 1) + 15}, v{S(b, 1, 1) + 15}, v25',
            'v_max_f32 v21, v21, v24', 'v_max_f32 v22, v22, v25']
    return out


def dma(slot):
    L = []
    for isv in range(2):
        for i in range(4):
            pre = [f's_add_u32 m0, s18, {slot * 16384 + isv * 8192}'] if i == 0 else []
            L.append((pre, f'buffer_load_dwordx4 v18, {"s[8:11]" if isv else "s[4:7]"}, s16 offen offset:{i * 1024} lds'))
    return L, 's_add_u32 s16, s16, 8192'


def rescale(b, first=False):
    L = ['s_nop 15']
    for a in range(2):
        t = 21 + a
        L += [f'v_mov_b32 v2, v{t}', 's_nop 1', f'v_permlane32_swap_b32 v2, v{t}', 's_nop 1', f'v_max_f32 v{t}, v{t}, v2']
        if not first:
            L += [f'v_max_f32 v{t}, 0, v{t}', f'v_exp_f32 v23, -v{t}', 's_nop 0']
            L += [f'v_mul_f32 v{OO(a) + r}, v{OO(a) + r}, v23' for r in range(16)]
        L += [(f'v_sub_f32 v{NEG(a) + r}, 0, v{t}' if first else f'v_sub_f32 v{NEG(a) + r}, v{NEG(a) + r}, v{t}') for r in range(16)]
        L += [f'v_sub_f32 v{S(b, tt, a) + r}, v{S(b, tt, a) + r}, v{t}' for tt in range(2) for r in range(16)]
    L.append('s_nop 1')
    return L


def unit_iter(j, tag, last=False):
    b = j % 2
    es, done, rest = expstream(b)
    nslot, nunit = ((j + 2) // 2) % 4, (j + 2) % 2
    vslot, vunit = ((j + 1) // 2) % 4, (j + 1) % 2
    fill = {}
    def add(g, x): fill.setdefault(g, []).append(x)
    if not last:
        for i, m in enumerate(qk(1 - b)):
            add(1 + 5 * i, m)
        if j % 2 == 0:
            add(40, 's_waitcnt vmcnt(8) lgkmcnt(0)')
            add(40, 's_barrier')
            grp, adv = dma((j // 2 + 3) % 4)
            for i, (pr, x) in enumerate(grp):
                for y in pr:
                    add(50 + 5 * i - 1, y)
                add(50 + 5 * i, x)
            add(88, adv)
        for i, x in enumerate(kreads(nslot, nunit)):
            add(41 + 2 * i, x)
        vr_ = vreads(vslot, vunit)
    order = ((0, 0), (0, 1), (1, 0))
    for n, (t, a) in enumerate(order):
        m = pv(t, a)
        g = max(done[n] + 2, 42)
        add(g + 6 * (n == 1 and g == 42) * 2, m[0])
        add(g + 6 + 6 * (n == 1 and g == 42) * 2, m[1])
    if not last:
        add(70, vr_[0]); add(72, vr_[1])
    L = interleave(es, fill)
    p1 = pv(1, 1)
    if last:
        return L + ['s_nop 0'] + rest + ['s_nop 1'] + p1, []
    fill = {}
    mx = maxes(1 - b)
    add(1, rest[0]); add(3, rest[1])
    add(6, p1[0]); add(12, p1[1])
    L += interleave(mx, fill)
    L += ['v_max_f32 v23, v21, v22', 'v_cmp_lt_f32 vcc, s22, v23', vr_[2], vr_[3], f's_cbranch_vccnz {tag}_rs', f'{tag}_rsret:']
    rare = [f'{tag}_rs:'] + rescale(1 - b) + [f's_branch {tag}_rsret']
    return L, rare


def setup_common():
    return ['v_lshlrev_b32 v17, 4, v1', 's_lshr_b32 s42, s20, 1', 's_and_b32 s43, s20, 1',
            's_mov_b32 s6, 65536', 's_mov_b32 s10, 65536', 's_mov_b32 s7, 0x20000', 's_mov_b32 s11, 0x20000',
            's_lshl_b32 s44, s42, 16', 's_lshl_b32 s45, s43, 12', 's_add_u32 s18, s44, s45',
            'v_add_u32 v18, s45, v17', 'v_add_u32 v16, s44, v17',
            's_lshl_b32 s46, s40, 17', 's_add_u32 s47, s46, s44', f's_add_u32 s47, s47, {KA}',
            's_add_u32 s4, s12, s47', 's_addc_u32 s5, s13, 0', f's_add_u32 s8, s4, {VA - KA}', 's_addc_u32 s9, s5, 0',
            f's_mov_b32 s22, {TH}']


def item(N, stamps=False, STMOD=''):
    Pq = []
    a = Pq.append
    a('s_mov_b32 s16, 0')
    a('s_lshl_b32 s48, s41, 2'); a('s_lshl_b32 s49, s43, 1'); a('s_add_u32 s48, s48, s49')
    a('s_lshl_b32 s49, s48, 11'); a('s_add_u32 s49, s49, s46'); a(f's_add_u32 s49, s49, {QA}')
    for c in range(3):
        grp, adv = dma(c)
        for pre, x in grp:
            for y in pre:
                a(y); a('s_nop 0')
            a(x)
        a(adv)
        if c == 0:
            for aa in range(2):
                for u in range(2):
                    a(f'buffer_load_dwordx4 {ar(QFr(aa, u), 4)}, v17, s[12:15], s49 offen offset:{aa * 2048 + u * 1024}')
    for r in range(32):
        a(f'v_mov_b32 v{OO(0) + r}, 0')
    if stamps:
        Pq += stamp_mid(0) + ['s_waitcnt lgkmcnt(0)']
    a('s_waitcnt vmcnt(16)')
    a('s_barrier')
    Pq += kreads(0, 0)
    a('s_waitcnt lgkmcnt(0)')
    Pq += qk(0, True)
    Pq += kreads(0, 1) + vreads(0, 0)
    pend = [set(parse(x).w) for x in kreads(0, 1) + vreads(0, 0)]
    a('s_nop 15')
    Pq += maxes(0)
    Pq += rescale(0, True)
    if stamps:
        Pq += stamp_mid(1) + ['s_waitcnt lgkmcnt(0)']
    body, rare = [], []
    for j in range(8):
        L, r = unit_iter(j, f'{N}_u{j}')
        L, pend_n = add_waits(L, pend)
        if j == 6:
            pend6 = pend_n
        pend = pend_n
        body.append(L)
        rare += r
    lastL, _ = add_waits(unit_iter(7, f'{N}_last', last=True)[0], pend6)
    loop = sum(body[:7], []) + ['s_cmp_eq_u32 s19, 1', f's_cbranch_scc1 {N}_tail'] + body[7] + ['s_mov_b32 s19, 1', f's_branch {N}_loop']
    a('s_mov_b32 s19, 0')
    T = list(lastL)
    if stamps:
        T += stamp_mid(2)
    T += ['s_waitcnt vmcnt(0) lgkmcnt(0)', 's_barrier', 's_nop 7',
          's_mul_i32 s50, s43, 9216', 'v_add_u32 v19, s50, v17', f'v_mov_b32 v{NEG(0) + 1}, v{NEG(1)}',
          's_cmp_eq_u32 s42, 0', f's_cbranch_scc1 {N}_h0']
    W1 = [f'ds_write_b128 v19, {vr(OO(0) + 4 * i, 4)} offset:{i * 1024}' for i in range(8)]
    W1 += [f'ds_write_b128 v19, {vr(NEG(0), 4)} offset:8192', 's_waitcnt lgkmcnt(0)', 's_barrier', f's_branch {N}_done']
    H0 = ['s_barrier']
    H0 += [f'ds_read_b128 {vr(64 + 4 * i, 4)}, v19 offset:{i * 1024}' for i in range(9)]
    H0 += ['v_bfe_u32 v7, v1, 4, 1', 'v_lshlrev_b32 v7, 14, v7', 'v_lshrrev_b32 v8, 5, v1', 'v_lshl_add_u32 v7, v8, 8, v7',
           'v_and_b32 v8, 15, v1', 'v_lshl_add_u32 v7, v8, 4, v7',
           's_lshl_b32 s50, s48, 15', 's_lshl_b32 s51, s40, 10', 's_add_u32 s50, s50, s51', f's_add_u32 s50, s50, {CA}',
           'v_cmp_gt_u32 vcc, 32, v1', 's_waitcnt lgkmcnt(0)']
    for aa in range(2):
        o = OO(aa)
        H0 += [f'v_min_f32 v2, v{NEG(0) + aa}, v{96 + aa}', f'v_sub_f32 v3, v2, v{NEG(0) + aa}', f'v_sub_f32 v4, v2, v{96 + aa}',
               'v_exp_f32 v3, v3', 'v_exp_f32 v4, v4', 's_nop 0']
        H0 += [f'v_mul_f32 v{o + r}, v{o + r}, v3' for r in range(16)]
        H0 += [f'v_fmac_f32 v{o + r}, v{64 + 16 * aa + r}, v4' for r in range(16)]
        H0 += [f'v_mov_b32 v5, v{o + 12}', f'v_mov_b32 v6, v{o + 12}', 's_nop 1', 'v_permlane32_swap_b32 v5, v6', 's_nop 1',
               'v_rcp_f32 v6, v6', 's_nop 0']
        H0 += [f'v_mul_f32 v{o + r}, v{o + r}, v6' for r in range(16)]
        H0 += [f'v_cndmask_b32 v{o + r}, 0, v{o + r}, vcc' for r in range(12, 16)]
        for pc, (ra, rb) in enumerate(((0, 8), (4, 12))):
            d = 128 + 8 * aa + 4 * pc
            H0 += [f'v_cvt_pk_bf16_f32 v{d}, v{o + ra}, v{o + ra + 1}', f'v_cvt_pk_bf16_f32 v{d + 1}, v{o + ra + 2}, v{o + ra + 3}',
                   f'v_cvt_pk_bf16_f32 v{d + 2}, v{o + rb}, v{o + rb + 1}', f'v_cvt_pk_bf16_f32 v{d + 3}, v{o + rb + 2}, v{o + rb + 3}',
                   f'buffer_store_dwordx4 {vr(d, 4)}, v7, s[12:15], s50 offen offset:{512 * pc}{STMOD}']
        H0.append('s_add_u32 s50, s50, 32768')
    out = Pq + ['.p2align 6', f'{N}_loop:'] + loop + [f'{N}_tail:'] + T + W1 + [f'{N}_h0:'] + H0 + [f'{N}_done:']
    tr = Pq + sum(body, []) + sum(body[:7], []) + T
    assert not check(tr + W1, N)
    assert not check(tr + H0, N)
    i = body[0].index(f'{N}_u0_rsret:')
    assert not check(Pq + body[0][:i] + rescale(1) + body[0][i:] + body[1], N + '_rare')
    return out, rare


def gen(stamps, merged):
    N = merged
    H = (stamp_begin() if stamps else []) + [f's_load_dwordx2 s[12:13], s[0:1], {WS}', 'v_and_b32 v1, 63, v0', 'v_lshrrev_b32 v2, 6, v0', 's_nop 0',
         'v_readfirstlane_b32 s20, v2', 's_and_b32 s40, s2, 7', 's_lshr_b32 s41, s2, 3', 's_and_b32 s41, s41, 31', 's_and_b32 s42, s41, 1',
         's_lshl_b32 s40, s40, 1', 's_add_u32 s40, s40, s42', 's_lshr_b32 s41, s41, 1', 's_mov_b32 s15, 0x20000', f's_mov_b32 s14, {PART}',
         's_waitcnt lgkmcnt(0)'] + setup_common()
    it, rare = item(N, stamps)
    return H + it + (stamp_end(WS, 512) if stamps else []) + ['s_endpgm'] + rare
```

```python
from asmlib import *
from layout import *
from attna2 import S, P, OO, NEG, TM, expstream, maxes, rescale, MF, TH


def KFr(st, t, u): return 16 * (st % 4) + 8 * t + 4 * u
def VFr(st, t, u): return 64 + 16 * (st % 4) + 8 * t + 4 * u
def QFr(a, u): return 128 + 8 * a + 4 * u


def kloads(j, so='s16'):
    return [f'buffer_load_dwordx4 {ar(KFr(j, t, u), 4)}, v17, s[4:7], {so} offen offset:{t * 2048 + u * 1024}' for t in range(2) for u in range(2)]


def vloads(j, so='s17'):
    return [f'buffer_load_dwordx4 {ar(VFr(j, t, u), 4)}, v17, s[8:11], {so} offen offset:{t * 2048 + u * 1024}' for t in range(2) for u in range(2)]


def qk(b, j, first=False):
    L = []
    for t in range(2):
        for u in range(2):
            for a in range(2):
                d = vr(S(b, t, a), 16)
                c = d if u else ('0' if first else vr(NEG(a), 16))
                L.append(f'{MF} {d}, {ar(KFr(j, t, u), 4)}, {ar(QFr(a, u), 4)}, {c}')
    return L


def pv(j, t, a):
    return [f'{MF} {vr(OO(a), 16)}, {ar(VFr(j, t, u), 4)}, {vr(P(t, a, u), 4)}, {vr(OO(a), 16)}' for u in range(2)]


def add_waits_vm(lines, pend0, coarse=4):
    out, pend = [], list(pend0)
    for ln in lines:
        I = parse(ln)
        if I is not None and I.cls == 'mfma':
            need = -1
            for i, d in enumerate(pend):
                if d[0] & set(I.r):
                    need = i
            if need >= 0:
                g = pend[need][1]
                while need + 1 < len(pend) and pend[need + 1][1] == g:
                    need += 1
                out.append(f's_waitcnt vmcnt({len(pend) - need - 1})')
                pend = pend[need + 1:]
        if I is not None and I.cls == 'vmem':
            pend.append((set(I.w), min(r[1] for r in I.w) // 16 if I.w else -1))
        if I is not None and I.cls == 'wait' and I.wait.get('vmcnt') == 0:
            pend = []
        out.append(ln)
    return out, pend


def unit_iter(j, tag, last=False):
    b = j % 2
    es, done, rest = expstream(b)
    fill = {}
    def add(g, x): fill.setdefault(g, []).append(x)
    if not last:
        for i, m in enumerate(qk(1 - b, j + 1)):
            add(1 + 5 * i, m)
        for i, x in enumerate(kloads(j + 5)):
            add(44 + 6 * i, x)
        add(64, 's_add_u32 s16, s16, 4096')
        vl = vloads(j + 4)
    for n, (t, a) in enumerate(((0, 0), (0, 1), (1, 0))):
        m = pv(j, t, a)
        g = (42, 54, done[2] + 2)[n]
        add(g, m[0])
        add(g + 6, m[1])
    if not last:
        add(68, vl[0]); add(74, vl[1])
    L = interleave(es, fill)
    p1 = pv(j, 1, 1)
    if last:
        return L + ['s_nop 0'] + rest + ['s_nop 1'] + p1, []
    fill = {}
    mx = maxes(1 - b)
    add(1, rest[0]); add(3, rest[1])
    add(6, p1[0]); add(12, p1[1])
    add(18, vl[2])
    L += interleave(mx, fill)
    L += ['v_max_f32 v23, v21, v22', 'v_cmp_lt_f32 vcc, s22, v23', vl[3], 's_add_u32 s17, s17, 4096', f's_cbranch_vccnz {tag}_rs', f'{tag}_rsret:']
    rare = [f'{tag}_rs:'] + rescale(1 - b) + [f's_branch {tag}_rsret']
    return L, rare


def setup_common():
    return ['v_lshlrev_b32 v17, 4, v1', 's_lshr_b32 s42, s20, 1', 's_and_b32 s43, s20, 1',
            's_mov_b32 s6, 65536', 's_mov_b32 s10, 65536', 's_mov_b32 s7, 0x20000', 's_mov_b32 s11, 0x20000',
            's_lshl_b32 s44, s42, 16',
            's_lshl_b32 s46, s40, 17', 's_add_u32 s47, s46, s44', f's_add_u32 s47, s47, {KA}',
            's_add_u32 s4, s12, s47', 's_addc_u32 s5, s13, 0', f's_add_u32 s8, s4, {VA - KA}', 's_addc_u32 s9, s5, 0',
            f's_mov_b32 s22, {TH}']


def item_loads():
    L = ['s_lshl_b32 s48, s41, 2', 's_lshl_b32 s49, s43, 1', 's_add_u32 s48, s48, s49',
         's_lshl_b32 s49, s48, 11', 's_add_u32 s49, s49, s46', f's_add_u32 s49, s49, {QA}', 's_mov_b32 s16, 0', 's_mov_b32 s17, 0']
    L += [f'buffer_load_dwordx4 {ar(QFr(aa, u), 4)}, v17, s[12:15], s49 offen offset:{aa * 2048 + u * 1024}' for aa in range(2) for u in range(2)]
    L += kloads(0) + ['s_add_u32 s16, s16, 4096']
    for j in range(3):
        L += kloads(j + 1) + ['s_add_u32 s16, s16, 4096'] + vloads(j) + ['s_add_u32 s17, s17, 4096']
    return L


def item(N, stamps=False, STMOD=''):
    Pl = item_loads()
    Pq = []
    a = Pq.append
    for r in range(32):
        a(f'v_mov_b32 v{OO(0) + r}, 0')
    if stamps:
        Pq += stamp_mid(0) + ['s_waitcnt lgkmcnt(0)']
    Pq += qk(0, 0, True)
    Pq += kloads(4) + ['s_add_u32 s16, s16, 4096'] + vloads(3) + ['s_add_u32 s17, s17, 4096']
    a('s_nop 15')
    Pq += maxes(0)
    Pq += rescale(0, True)
    a('s_mov_b32 s19, 0')
    if stamps:
        Pq += stamp_mid(1) + ['s_waitcnt lgkmcnt(0)']
    Pq, pend = add_waits_vm(Pl + Pq, [])
    pend0 = pend
    body, rare = [], []
    for j in range(4):
        L, r = unit_iter(j, f'{N}_u{j}')
        L, pend_n = add_waits_vm(L, pend)
        if j == 2:
            pend2 = pend_n
        pend = pend_n
        body.append(L)
        rare += r
    assert pend == pend0, 'not periodic'
    lastL, _ = add_waits_vm(unit_iter(3, f'{N}_last', last=True)[0], pend2)
    loop = sum(body[:3], []) + ['s_cmp_eq_u32 s19, 3', f's_cbranch_scc1 {N}_tail'] + body[3] + ['s_add_u32 s19, s19, 1', f's_branch {N}_loop']
    T = list(lastL)
    if stamps:
        T += stamp_mid(2)
    T += ['s_mul_i32 s50, s43, 9216', 'v_add_u32 v19, s50, v17', f'v_mov_b32 v{NEG(0) + 1}, v{NEG(1)}',
          's_cmp_eq_u32 s42, 0', f's_cbranch_scc1 {N}_h0']
    W1 = ['s_nop 7'] + [f'ds_write_b128 v19, {vr(OO(0) + 4 * i, 4)} offset:{i * 1024}' for i in range(8)]
    W1 += [f'ds_write_b128 v19, {vr(NEG(0), 4)} offset:8192', 's_waitcnt lgkmcnt(0)', 's_barrier', f's_branch {N}_done']
    H0 = ['v_bfe_u32 v7, v1, 4, 1', 'v_lshlrev_b32 v7, 14, v7', 'v_lshrrev_b32 v8, 5, v1', 'v_lshl_add_u32 v7, v8, 8, v7',
          'v_and_b32 v8, 15, v1', 'v_lshl_add_u32 v7, v8, 4, v7',
          's_lshl_b32 s50, s48, 15', 's_lshl_b32 s51, s40, 10', 's_add_u32 s50, s50, s51', f's_add_u32 s50, s50, {CA}',
          'v_cmp_gt_u32 vcc, 32, v1', 's_barrier']
    H0 += [f'ds_read_b128 {vr(64 + 4 * i, 4)}, v19 offset:{i * 1024}' for i in range(9)]
    H0 += ['s_waitcnt lgkmcnt(0)']
    for aa in range(2):
        o = OO(aa)
        H0 += [f'v_min_f32 v2, v{NEG(0) + aa}, v{96 + aa}', f'v_sub_f32 v3, v2, v{NEG(0) + aa}', f'v_sub_f32 v4, v2, v{96 + aa}',
               'v_exp_f32 v3, v3', 'v_exp_f32 v4, v4', 's_nop 0',
               f'v_mul_f32 v5, v{o + 12}, v3', f'v_fmac_f32 v5, v{64 + 16 * aa + 12}, v4', 'v_mov_b32 v6, v5', 's_nop 1',
               'v_permlane32_swap_b32 v5, v6', 's_nop 1', 'v_rcp_f32 v6, v6', 's_nop 0', 'v_mul_f32 v3, v3, v6', 'v_mul_f32 v4, v4, v6']
        H0 += [f'v_mul_f32 v{o + r}, v{o + r}, v3' for r in range(16)]
        H0 += [f'v_fmac_f32 v{o + r}, v{64 + 16 * aa + r}, v4' for r in range(16)]
        H0 += [f'v_cndmask_b32 v{o + r}, 0, v{o + r}, vcc' for r in range(12, 16)]
        for pc, (ra, rb) in enumerate(((0, 8), (4, 12))):
            d = 128 + 8 * aa + 4 * pc
            H0 += [f'v_cvt_pk_bf16_f32 v{d}, v{o + ra}, v{o + ra + 1}', f'v_cvt_pk_bf16_f32 v{d + 1}, v{o + ra + 2}, v{o + ra + 3}',
                   f'v_cvt_pk_bf16_f32 v{d + 2}, v{o + rb}, v{o + rb + 1}', f'v_cvt_pk_bf16_f32 v{d + 3}, v{o + rb + 2}, v{o + rb + 3}',
                   f'buffer_store_dwordx4 {vr(d, 4)}, v7, s[12:15], s50 offen offset:{512 * pc}{STMOD}']
        H0.append('s_add_u32 s50, s50, 32768')
    out = Pq + ['.p2align 6', f'{N}_loop:'] + loop + [f'{N}_tail:'] + T + W1 + [f'{N}_h0:'] + H0 + [f'{N}_done:']
    tr = Pq + sum(body, []) + sum(body[:3], []) + T
    assert not check(tr + W1, N)
    assert not check(tr + H0, N)
    i = body[0].index(f'{N}_u0_rsret:')
    assert not check(Pq + body[0][:i] + rescale(1) + body[0][i:] + body[1], N + '_rare')
    return out, rare


def gen(stamps, merged):
    N = merged
    H = (stamp_begin() if stamps else []) + [f's_load_dwordx2 s[12:13], s[0:1], {WS}', 'v_and_b32 v1, 63, v0', 'v_lshrrev_b32 v2, 6, v0', 's_nop 0',
         'v_readfirstlane_b32 s20, v2', 's_and_b32 s40, s2, 7', 's_lshr_b32 s41, s2, 3', 's_and_b32 s41, s41, 31', 's_and_b32 s42, s41, 1',
         's_lshl_b32 s40, s40, 1', 's_add_u32 s40, s40, s42', 's_lshr_b32 s41, s41, 1', 's_mov_b32 s15, 0x20000', f's_mov_b32 s14, {PART}',
         's_waitcnt lgkmcnt(0)'] + setup_common()
    it, rare = item(N, stamps)
    return H + it + (stamp_end(WS, 512) if stamps else []) + ['s_endpgm'] + rare
```

```python
from asmlib import *
from layout import *

NAME = 'attnb_kernel'
MF = 'v_mfma_f32_16x16x32_bf16'
LDS = 131072
TH = 0x41f00000


def S(b, kt, a): return 64 + 32 * b + 8 * kt + 4 * a
def P(b, kg, a): return 128 + 16 * b + 8 * kg + 4 * a
def O(dt, a): return 8 * dt + 4 * a
def Q(a, s): return 128 + 32 * a + 4 * s
def RING(f): return 192 + 4 * (f % 16)
def NEGM(a): return 32 + 4 * a


class Sched:
    def __init__(self, n, cap=8):
        self.n, self.cap = n, cap
        self.slots = {g: [] for g in range(-1, n)}
        self.used = {g: 0 for g in range(-1, n)}

    def put(self, g, text, cost=4):
        self.slots[g].append(text)
        self.used[g] += cost

    def fit(self, g, cost, gmax):
        while g < gmax and self.used[g] + cost > self.cap:
            g += 1
        return g


def kread(slot, f): return f'ds_read_b128 a[{RING(f)}:{RING(f) + 3}], v16 offset:{slot * 32768 + f * 1024}'
def vread(slot, f): return f'ds_read_b128 a[{RING(f)}:{RING(f) + 3}], v17 offset:{slot * 32768 + f * 1024}'


def qk_mfmas(b, first=False):
    L = []
    for kt in range(4):
        for s in range(8):
            for a in range(2):
                d = vr(S(b, kt, a), 4)
                c = d if s else ('0' if first else vr(NEGM(a), 4))
                f = kt * 8 + s
                L.append(f'{MF} {d}, {ar(RING(f), 4)}, {ar(Q(a, s), 4)}, {c}')
    return L


def pv_mfmas(b):
    L = []
    for kg in range(2):
        for dt in range(16):
            for a in range(2):
                f = kg * 16 + dt
                o = ar(O(dt, a), 4)
                L.append(f'{MF} {o}, {ar(RING(f), 4)}, {vr(P(b, kg, a), 4)}, {o}')
    return L


def dma_group(isv, slot):
    L = []
    for i in range(8):
        pre = [f's_add_u32 m0, s18, {isv * 65536 + slot * 32768 + (i // 4) * 4096}'] if i % 4 == 0 else []
        if isv:
            L.append((pre, f'buffer_load_dwordx4 v{18 + i // 4}, s[8:11], s17 offen offset:{(i % 4) * 1024} lds'))
        else:
            L.append((pre, f'buffer_load_dwordx4 v{40 + i}, s[4:7], s16 offen offset:{(i % 4) * 1024} lds'))
    return L, ('s_add_u32 s17, s17, 32768' if isv else 's_add_u32 s16, s16, s26')


def switch_code():
    L = ['s_mov_b32 s4, s48', 's_mov_b32 s5, s49', f's_mov_b32 s6, {256 * 896}', 's_mov_b32 s16, 0', 's_mov_b32 s26, 128']
    for i in range(8):
        L.append(f'v_add_u32 v{40 + i}, {i * 8 * 896 - (i % 4) * 1024}, v48')
    return L


def softmax_items(b):
    it = []
    for kg in range(2):
        for a in range(2):
            for h in range(2):
                kt = 2 * kg + h
                for r2 in range(2):
                    r0 = S(b, kt, a) + 2 * r2
                    it.append(('e', f'v_exp_f32 v{r0}, v{r0}'))
                    it.append(('e', f'v_exp_f32 v{r0 + 1}, v{r0 + 1}'))
                    it.append(('v', f'v_add_f32 v{24 + a}, v{r0}, v{24 + a}'))
                    it.append(('v', f'v_cvt_pk_bf16_f32 v{P(b, kg, a) + 2 * h + r2}, v{r0}, v{r0 + 1}'))
                    it.append(('v', f'v_add_f32 v{24 + a}, v{r0 + 1}, v{24 + a}'))
    return it


def max_items(b):
    L = []
    for a in range(2):
        regs = [S(b, kt, a) + r for kt in range(4) for r in range(4)]
        L.append(f'v_max3_f32 v{21 + a}, v{regs[0]}, v{regs[1]}, v{regs[2]}')
        for i in range(3, 15, 2):
            L.append(f'v_max3_f32 v{21 + a}, v{regs[i]}, v{regs[i + 1]}, v{21 + a}')
        L.append(f'v_max_f32 v{21 + a}, v{regs[15]}, v{21 + a}')
    out = []
    for x, y in zip(L[:8], L[8:]):
        out += [x, y]
    return out


def xreduce(reg, op, tmp=2):
    return [f'v_mov_b32 v{tmp}, v{reg}', 's_nop 1', f'v_permlane16_swap_b32 v{tmp}, v{reg}', 's_nop 1', f'{op} v{reg}, v{reg}, v{tmp}',
            f'v_mov_b32 v{tmp}, v{reg}', 's_nop 1', f'v_permlane32_swap_b32 v{tmp}, v{reg}', 's_nop 1', f'{op} v{reg}, v{reg}, v{tmp}']


def mask_code(b):
    L = ['s_nop 7', 'v_mov_b32 v3, 0xf149f2ca']
    for kt in range(4):
        for a in range(2):
            for r in range(4):
                L.append(f's_add_i32 s25, s24, {16 * (a - kt) - r}')
                L.append(f'v_cmp_ge_i32 s[{28 + 2 * r}:{29 + 2 * r}], s25, v20')
            for r in range(4):
                L.append(f'v_cndmask_b32 v{S(b, kt, a) + r}, v3, v{S(b, kt, a) + r}, s[{28 + 2 * r}:{29 + 2 * r}]')
    L.append('s_sub_i32 s24, s24, 64')
    return L


def r1_code(b, first=False):
    L = ['s_nop 7']
    for a in range(2):
        t = 21 + a
        L += xreduce(t, 'v_max_f32')
        if not first:
            L.append(f'v_max_f32 v{t}, 0, v{t}')
            L.append(f'v_exp_f32 v{26 + a}, -v{t}')
        for e in range(4):
            L.append(f'v_sub_f32 v{NEGM(a) + e}, 0, v{t}' if first else f'v_sub_f32 v{NEGM(a) + e}, v{NEGM(a) + e}, v{t}')
        for kt in range(4):
            for r in range(4):
                L.append(f'v_sub_f32 v{S(b, kt, a) + r}, v{S(b, kt, a) + r}, v{t}')
        L.append(f'v_mov_b32 v{24 + a}, 0' if first else f'v_mul_f32 v{24 + a}, v{24 + a}, v{26 + a}')
    if not first:
        L.append('s_mov_b32 s23, 1')
    return L


def r2_code():
    L = ['s_nop 7']
    for dt in range(16):
        for a in range(2):
            o = O(dt, a)
            for e in range(4):
                L.append(f'v_accvgpr_read_b32 v{4 + e}, a{o + e}')
            for e in range(4):
                L.append(f'v_mul_f32 v{4 + e}, v{4 + e}, v{26 + a}')
            for e in range(4):
                L.append(f'v_accvgpr_write_b32 a{o + e}, v{4 + e}')
    L += ['s_mov_b32 s23, 0', 's_nop 1']
    return L


def rgap(f):
    return (7 * f) // 4 - 16


BARG = 47
D1G = 64 + 22
NP1 = 30


def add_waits(lines, pend0):
    out = []
    pend = list(pend0)
    for ln in lines:
        I = parse(ln)
        if I is not None and I.cls == 'mfma':
            need = -1
            for i, d in enumerate(pend):
                if d & set(I.r):
                    need = i
            if need >= 0:
                n = len(pend) - need - 1
                out.append(f's_waitcnt lgkmcnt({min(n, 15)})')
                pend = pend[need + 1:]
        if I is not None and I.cls == 'ds':
            pend.append(set(I.w))
        if I is not None and I.cls == 'wait' and I.wait.get('lgkmcnt') == 0:
            pend = []
        out.append(ln)
    return out, pend


EXP = {}

def iteration(p, tag, dgap=6):
    sc = Sched(128)
    for f in range(32):
        g = rgap(f)
        if g >= 0:
            sc.put(g, kread(1 - p, f))
            sc.put(64 + g, vread(p, f))
        else:
            sc.put(64 + g, vread(p, f))
            sc.put(128 + g, kread(p, f))
    for base in (0, 64):
        sc.put(base + BARG, 's_waitcnt vmcnt(16) lgkmcnt(0)', 0)
        if not EXP.get('nobar'):
            sc.put(base + BARG, 's_barrier', 4)
    for isv, base in ((1, 0), (0, 64)):
        grp, adv = dma_group(isv, 1 - p)
        for i, (pre, x) in enumerate(grp):
            g = sc.fit(base + 1 + i * dgap, 4, base + BARG - 1)
            for y in pre:
                sc.put(g - 1, y)
            if not EXP.get('nodma'):
                sc.put(g, x)
        sc.put(g + 1, adv)
    sc.put(64, 's_cmp_ge_u32 s19, s21')
    sc.put(64, f's_cbranch_scc1 {tag}_mask')
    sc.put(64, f'{tag}_maskret:', 0)
    mx = max_items(1 - p)
    g = 66
    for x in mx:
        g = sc.fit(g, 4, D1G - 2)
        sc.put(g, x)
    sc.put(D1G - 1, 'v_max_f32 v23, v21, v22')
    sc.put(D1G, 'v_cmp_lt_f32 vcc, s22, v23')
    sc.put(D1G, f's_cbranch_vccnz {tag}_r1')
    sc.put(D1G, f'{tag}_r1ret:', 0)

    def place(items, g0, g1):
        n = sum(8 if k == 'e' else 4 for k, _ in items)
        acc = 0
        g = g0
        laste = -10
        for k, x in items:
            c = 8 if k == 'e' else 4
            tgt = g0 + (acc * (g1 - g0)) // n
            g = max(g, tgt)
            if k == 'v':
                g = max(g, laste + 1)
            g = sc.fit(g, c, g1)
            if k == 'e':
                laste = g
            sc.put(g, x, c)
            acc += c
        return g
    it_next = softmax_items(1 - p)
    it_cur = softmax_items(p)
    if not EXP.get('nosm'):
        place(it_cur[NP1:], 0, 61)
        place(it_next[:NP1], D1G + 1, 126)
    sp = qk_mfmas(1 - p) + pv_mfmas(p)
    L = interleave(sp, sc.slots)
    L += ['s_cmp_eq_u32 s23, 0', f's_cbranch_scc0 {tag}_r2', f'{tag}_r2ret:', 's_add_u32 s19, s19, 1']
    over = sum(max(0, sc.used[g] - 8) for g in sc.used)
    rare = [f'{tag}_mask:', 's_cmp_lg_u32 s19, s21', f's_cbranch_scc1 {tag}_nosw'] + switch_code() + [f'{tag}_nosw:'] + mask_code(1 - p) + [f's_branch {tag}_maskret',
            f'{tag}_r1:'] + r1_code(1 - p) + [f's_branch {tag}_r1ret',
            f'{tag}_r2:'] + r2_code() + [f's_branch {tag}_r2ret']
    return L, rare, over


def CT(a, s): return 64 + 32 * a + 4 * s
def OA(b, mt, a): return 128 + 32 * b + 8 * mt + 4 * a
def rgap2(f): return (37 * f) // 20 - 9
BARG2 = 54


def wread(c, f):
    s, mt = f // 4, f % 4
    slot = c % 4
    v = (54 if slot >= 2 else 50) + mt
    return [f'ds_read_b64_tr_b16 a[{RING(f) + 2 * u}:{RING(f) + 2 * u + 1}], v{v} offset:{(slot % 2) * 32768 + s * 4096 + u * 2048}' for u in range(2)]


def norm_items(s):
    L = []
    for a in range(2):
        t = 4 + 8 * a if False else 4
        for e in range(8):
            L.append(f'v_accvgpr_read_b32 v{t + e}, a{O(2 * s + e // 4, a) + e % 4}')
        for e in range(8):
            L.append(f'v_mul_f32 v{t + e}, v{t + e}, v{24 + a}')
        for d in range(4):
            L.append(f'v_cvt_pk_bf16_f32 v{CT(a, s) + d}, v{t + 2 * d}, v{t + 2 * d + 1}')
    return L


def store_items(c):
    b = c % 2
    L = []
    n = 0
    for a in range(2):
        for mp in range(2):
            tb = (4, 8, 12, 28)[n]
            for h in range(2):
                r = OA(b, 2 * mp + h, a)
                L.append(f'v_cvt_pk_bf16_f32 v{tb + 2 * h}, v{r}, v{r + 1}')
                L.append(f'v_cvt_pk_bf16_f32 v{tb + 2 * h + 1}, v{r + 2}, v{r + 3}')
            L.append(f'buffer_store_dwordx4 v[{tb}:{tb + 3}], v{58 if a else 16}, s[12:15], s46 offen offset:{mp * 1024}{PSTMOD}')
            n += 1
    L.append('s_add_u32 s46, s46, 2048')
    return L


PSTMOD = ''


def fix_vm(lines, vm0):
    vm = list(vm0)
    out = []
    for ln in lines:
        if ln.startswith('VMWAIT'):
            tag = ln.split()[1]
            idx = max(i for i, t in enumerate(vm) if t == tag)
            out.append(f's_waitcnt vmcnt({len(vm) - idx - 1}) lgkmcnt(0)')
            continue
        I = parse(ln)
        if I is not None and I.cls == 'vmem':
            vm.append(ln.split('tag=')[1] if 'tag=' in ln else 'x')
        out.append(ln)
    return out


def tail_code(stamps):
    def put_dma(sc, c, g0, gap):
        grp, adv = dma_group(0, c % 4)
        g = g0
        for pre, x in grp:
            for y in pre:
                sc.put(g - 1, y)
            sc.put(g, x + f' ; tag=c{c}')
            g += gap
        sc.put(g - gap, adv)
    T = ['VMWAIT V', 's_barrier']
    for f in range(32):
        if rgap(f) < 0:
            T.append(vread(1, f))
    items = softmax_items(1)[NP1:]
    sc = Sched(len(items))
    put_dma(sc, 2, 2, 5)
    sp = []
    for k, x in items:
        sp.append(x + ('\ns_nop 0' if k == 'e' else ''))
    T += '\n'.join(interleave(sp, sc.slots)).split('\n')
    sc = Sched(64)
    for f in range(32):
        if rgap(f) >= 0:
            sc.put(rgap(f), vread(1, f))
    lred = []
    for aa in range(2):
        lred += xreduce(24 + aa, 'v_add_f32') + [f'v_rcp_f32 v{24 + aa}, v{24 + aa}']
    for i, x in enumerate(lred):
        sc.put(2 + i, x)
    sc.put(BARG, 'VMWAIT c0')
    sc.put(BARG, 's_barrier')
    put_dma(sc, 3, BARG + 2, 2)
    for f in range(32):
        if rgap2(f) < 0:
            for x in wread(0, f):
                sc.put(64 + rgap2(f), x)
    for i, x in enumerate(norm_items(0)):
        sc.put(44 + i // 2, x)
    T.append('s_nop 1')
    T += interleave(pv_mfmas(1), sc.slots)
    if stamps:
        T += stamp_mid(2) + ['s_waitcnt lgkmcnt(0)']
    T.append('s_nop 1')
    for c in range(7):
        sc = Sched(64)
        sp = []
        for f in range(32):
            s, mt = f // 4, f % 4
            for aa in range(2):
                d = vr(OA(c % 2, mt, aa), 4)
                sp.append(f'{MF} {d}, {ar(RING(f), 4)}, {vr(CT(aa, s), 4)}, {d if s else 0}')
            if rgap2(f) >= 0:
                for x in wread(c, f):
                    sc.put(rgap2(f), x)
            elif c < 6:
                for x in wread(c + 1, f):
                    sc.put(64 + rgap2(f), x)
        if c < 6:
            sc.put(BARG2, f'VMWAIT c{c + 1}')
            sc.put(BARG2, 's_barrier')
        if 1 <= c <= 3:
            put_dma(sc, c + 3, 1, 6)
        if c == 0:
            for s in range(1, 8):
                it = norm_items(s)
                for i, x in enumerate(it):
                    sc.put(8 * (s - 1) + (i * 6) // len(it), x)
        else:
            for i, x in enumerate(store_items(c - 1)):
                sc.put(9 + 2 * i, x)
        T += interleave(sp, sc.slots)
    T += ['s_nop 7'] + store_items(6)
    T = fix_vm(T, ['c0'] * 8 + ['V'] * 8 + ['c1'] * 8)
    T, _ = add_waits(T, [])
    return T


def gen(stamps=False, dgap=6):
    N = NAME
    Pq = []
    a = Pq.append
    a('s_cmp_ge_u32 s2, 512')
    a(f's_cbranch_scc1 {N}_exit')
    a('s_cmp_ge_u32 s2, 256')
    a(f's_cbranch_scc1 {N}_A')
    if stamps:
        Pq += stamp_begin()
    a(f's_load_dwordx2 s[12:13], s[0:1], {WS}')
    a(f's_load_dwordx2 s[48:49], s[0:1], {B_WO}')
    a('v_and_b32 v1, 63, v0')
    a('v_lshrrev_b32 v2, 6, v0')
    a('v_lshlrev_b32 v16, 4, v1')
    a('v_readfirstlane_b32 s20, v2')
    a('s_and_b32 s40, s2, 7')
    a('s_lshr_b32 s41, s2, 3')
    a('s_and_b32 s42, s41, 1')
    a('s_lshl_b32 s40, s40, 1')
    a('s_add_u32 s40, s40, s42')
    a('s_lshr_b32 s41, s41, 1')
    a('s_sub_u32 s41, 15, s41')
    a('s_lshl_b32 s21, s41, 1')
    a('s_add_u32 s42, s21, 2')
    a('s_lshl_b32 s6, s42, 15')
    a('s_mov_b32 s10, s6')
    a('s_mov_b32 s7, 0x20000'); a('s_mov_b32 s11, 0x20000'); a('s_mov_b32 s15, 0x20000')
    a(f's_mov_b32 s14, {PART_END}')
    a('s_lshl_b32 s18, s20, 13')
    a('v_add_u32 v18, s18, v16')
    a('v_add_u32 v19, 4096, v18')
    a('v_add_u32 v17, 0x10000, v16')
    for i in range(8):
        a(f'v_mov_b32 v{40 + i}, v{18 + i // 4}')
    a('s_mov_b32 s26, 32768')
    a('s_lshl_b32 s43, s40, 20')
    a('s_mov_b32 s16, 0'); a('s_mov_b32 s17, 0')
    a('s_waitcnt lgkmcnt(0)')
    a('s_add_u32 s4, s12, s43'); a('s_addc_u32 s5, s13, 0')
    a(f's_add_u32 s8, s4, {VF}'); a('s_addc_u32 s9, s5, 0')

    def dma_now(isv, slot):
        grp, adv = dma_group(isv, slot)
        for pre, x in grp:
            for y in pre:
                a(y); a('s_nop 0')
            a(x)
        a(adv)
    dma_now(0, 0)
    a('s_lshl_b32 s44, s41, 3'); a('s_lshl_b32 s45, s20, 1'); a('s_add_u32 s44, s44, s45')
    a('s_lshl_b32 s45, s44, 13'); a('s_add_u32 s45, s45, s43'); a(f's_add_u32 s45, s45, {QF}')
    for aa in range(2):
        for s in range(8):
            if s % 4 == 0 and (aa or s):
                a('s_add_u32 s45, s45, 4096')
            a(f'buffer_load_dwordx4 a[{Q(aa, s)}:{Q(aa, s) + 3}], v16, s[12:15], s45 offen offset:{(s % 4) * 1024}')
    a('v_lshrrev_b32 v2, 4, v1'); a('v_lshlrev_b32 v2, 2, v2'); a('v_and_b32 v3, 15, v1'); a('v_sub_u32 v20, v2, v3')
    a(f's_mov_b32 s22, {TH}')
    a('s_mov_b32 s23, 0')
    a('s_lshl_b32 s24, s20, 5')
    a('s_mov_b32 s19, 1')
    a('s_lshl_b32 s46, s40, 7'); a('s_add_u32 s46, s46, s44'); a('s_mul_i32 s46, s46, 14336'); a(f's_add_u32 s46, s46, {PART}')
    a('v_add_u32 v58, 14336, v16')
    a(f's_mul_i32 s47, s40, {256 * 896}'); a('s_add_u32 s48, s48, s47'); a('s_addc_u32 s49, s49, 0')
    a('v_lshrrev_b32 v2, 3, v1'); a('s_lshl_b32 s47, s20, 6'); a('v_add_u32 v2, s47, v2'); a('v_mul_u32_u24 v2, 896, v2')
    a('v_lshrrev_b32 v3, 4, v1'); a('v_lshlrev_b32 v4, 1, v3'); a('v_and_b32 v5, 7, v1'); a('v_xor_b32 v4, v4, v5')
    a('v_lshl_add_u32 v48, v4, 4, v2')
    a('v_bfe_u32 v4, v1, 2, 2'); a('v_lshl_add_u32 v5, v3, 2, v4'); a('v_lshrrev_b32 v6, 1, v5'); a('v_and_b32 v6, 3, v6')
    a('v_lshlrev_b32 v5, 7, v5'); a('v_lshl_add_u32 v5, v6, 5, v5'); a('v_and_b32 v6, 3, v1'); a('v_lshl_add_u32 v50, v6, 3, v5')
    for j in range(1, 4):
        a(f'v_xor_b32 v{50 + j}, {32 * j}, v50')
    for j in range(4):
        a(f'v_add_u32 v{54 + j}, 0x10000, v{50 + j}')
    for r in range(128):
        a(f'v_accvgpr_write_b32 a{r}, 0')
    if stamps:
        Pq += stamp_mid(0) + ['s_waitcnt lgkmcnt(0)']
    a('s_waitcnt vmcnt(0)')
    a('s_barrier')
    sc = Sched(64)
    for f in range(32):
        g = rgap(f)
        sc.put(max(g, -1), kread(0, f))
    g = 1
    for isv, slot in ((0, 1), (1, 0)):
        grp, adv = dma_group(isv, slot)
        for pre, x in grp:
            for y in pre:
                sc.put(g - 1, y)
            sc.put(g, x)
            g += 3
        sc.put(g - 2, adv)
    pro, pend = add_waits(interleave(qk_mfmas(0, True), sc.slots), [])
    Pq += pro
    a('s_barrier')
    a('s_cmp_lg_u32 s21, 0')
    a(f's_cbranch_scc1 {N}_nomask0')
    Pq += switch_code()
    Pq += mask_code(0)
    a(f'{N}_nomask0:')
    dma_now(0, 0)
    a('s_nop 7')
    Pq += max_items(0)
    Pq += r1_code(0, True)
    it0 = softmax_items(0)
    for k, x in it0[:NP1]:
        a(x)
        if k == 'e':
            a('s_nop 0')
    a('s_waitcnt vmcnt(16)')
    a('s_barrier')
    pend = []
    for f in range(32):
        if rgap(f) < 0:
            a(kread(1, f))
            pend.append(set(regs_of(f'a[{RING(f)}:{RING(f) + 3}]')))
    if stamps:
        Pq += stamp_mid(1) + ['s_waitcnt lgkmcnt(0)']
    I0, rare0, ov0 = iteration(0, f'{N}_p0', dgap)
    I1, rare1, ov1 = iteration(1, f'{N}_p1', dgap)
    I0, pe = add_waits(I0, pend)
    assert pe == pend or True
    I1, pe2 = add_waits(I1, pe)
    I0b, pe3 = add_waits(iteration(0, f'{N}_p0', dgap)[0], pe2)
    assert I0b == I0, 'wait pattern not periodic'
    print('attnb overflow cycles', ov0, ov1, 'instrs', len(I0))
    exit0 = ['s_cmp_gt_u32 s19, s21', f's_cbranch_scc1 {N}_tail']
    T = tail_code(stamps)
    if stamps:
        T += stamp_end(WS, 512)
    T.append('s_endpgm')
    out = Pq + ['.p2align 6', f'{N}_loop:'] + I0 + exit0 + I1 + [f's_branch {N}_loop', f'{N}_tail:'] + T + rare0 + rare1
    import attna3
    out += ['.p2align 6', f'{N}_A:'] + attna3.gen(stamps, N + 'A')
    out += [f'{N}_exit:', 's_endpgm']
    assert not check(Pq + I0 + exit0 + I1 + I0 + exit0 + T, N)
    def splice(L, lab, code):
        i = L.index(lab)
        return L[:i] + code + L[i:]
    t = splice(I0, f'{N}_p0_maskret:', switch_code() + mask_code(1))
    t = splice(t, f'{N}_p0_r1ret:', r1_code(1))
    t = splice(t, f'{N}_p0_r2ret:', r2_code())
    assert not check(Pq + t + exit0 + I1, N + '_rare')
    text = khead(N) + '\n'.join(out) + '\n'
    return dict(name=N, text=text, grid=512, block=256, lds=LDS, vgpr=512, sgpr=102, accum=256)
```

```python
from asmlib import *
from layout import *
from attnb import add_waits

NAME = 'fin_kernel'
MF = 'v_mfma_f32_16x16x32_bf16'
ROWP = 272
LDS = 4 * 64 * ROWP
HSTR = 128 * 14 * 1024


def CFr(k, i): return 32 + 16 * k + 4 * i
def WFr(k, j): return 96 + 16 * (k % 2) + 4 * j
def ACC(i, j): return 16 * i + 4 * j


def gen(stamps=False):
    N = NAME
    H = []
    a = H.append
    a('s_cmp_ge_u32 s2, 448')
    a(f's_cbranch_scc1 {N}_exit')
    if stamps:
        H += stamp_begin()
    a(f's_load_dwordx2 s[12:13], s[0:1], {WS}')
    a(f's_load_dwordx2 s[8:9], s[0:1], {A_WO}')
    a(f's_load_dwordx2 s[24:25], s[0:1], {OUT}')
    a('v_and_b32 v1, 63, v0')
    a('v_lshrrev_b32 v2, 6, v0')
    a('v_lshlrev_b32 v16, 4, v1')
    a('v_readfirstlane_b32 s20, v2')
    a('s_mov_b32 s11, 0x20000'); a('s_mov_b32 s15, 0x20000'); a('s_mov_b32 s27, 0x20000')
    a(f's_mov_b32 s14, {PART_END}'); a(f's_mov_b32 s10, {448 * 896}'); a(f's_mov_b32 s26, {2048 * 1792}')
    a('v_lshrrev_b32 v3, 4, v1')
    a('s_cmp_ge_u32 s2, 224')
    a(f's_cbranch_scc1 {N}_B')
    A = []
    a = A.append
    a('s_and_b32 s40, s2, 7')
    a('s_lshr_b32 s41, s2, 3')
    a('s_mul_i32 s42, s41, 37'); a('s_lshr_b32 s42, s42, 8')
    a('s_mul_i32 s43, s42, 7'); a('s_sub_u32 s43, s41, s43')
    a('s_lshl_b32 s42, s42, 3'); a('s_add_u32 s42, s42, s40')
    a('s_lshl_b32 s18, s20, 14')
    a('s_lshl_b32 s19, s42, 16'); a('s_lshl_b32 s44, s20, 12'); a('s_add_u32 s19, s19, s44'); a(f's_add_u32 s19, s19, {CA}')
    for i in range(4):
        a(f'v_add_u32 v{28 + i}, {i * 16384}, v16')
    a('s_lshl_b32 s44, s43, 7')
    a(f's_mul_i32 s21, s20, {112 * 896}'); a('s_add_u32 s21, s21, s44')
    a('v_lshrrev_b32 v2, 3, v1'); a('v_mul_u32_u24 v2, 896, v2')
    a('v_lshlrev_b32 v4, 1, v3'); a('v_and_b32 v5, 7, v1'); a('v_xor_b32 v4, v4, v5')
    a('v_lshl_add_u32 v24, v4, 4, v2')
    for i in range(1, 4):
        a(f'v_add_u32 v{24 + i}, {i * (8 * 896 - 1024)}, v24')
    a('s_waitcnt lgkmcnt(0)')
    for k in range(4):
        a(f's_add_u32 m0, s18, {k * 4096}')
        for i in range(4):
            a(f'buffer_load_dwordx4 {vr(CFr(k, i), 4)}, v{28 + i}, s[12:15], s19 offen offset:{k * 1024}')
            a(f'buffer_load_dwordx4 v{24 + i}, s[8:11], s21 offen offset:{i * 1024} lds')
        a(f's_add_u32 s21, s21, {28 * 896}')
    a('v_bfe_u32 v4, v1, 2, 2'); a('v_lshl_add_u32 v5, v3, 2, v4'); a('v_lshrrev_b32 v6, 1, v5'); a('v_and_b32 v6, 3, v6')
    a('v_lshlrev_b32 v5, 7, v5'); a('v_lshl_add_u32 v5, v6, 5, v5'); a('v_and_b32 v6, 3, v1'); a('v_lshl_add_u32 v5, v6, 3, v5')
    a('v_add_u32 v20, s18, v5')
    for j in range(1, 4):
        a(f'v_xor_b32 v{20 + j}, {32 * j}, v20')
    M = []
    for k in range(4):
        M.append(f's_waitcnt vmcnt({8 * (3 - k)})')
        for j in range(4):
            for u in range(2):
                M.append(f'ds_read_b64_tr_b16 {vr(WFr(k, j) + 2 * u, 2)}, v{20 + j} offset:{k * 4096 + u * 2048}')
        for j in range(4):
            for i in range(4):
                c = ar(ACC(i, j), 4)
                M.append(f'{MF} {c}, {vr(WFr(k, j), 4)}, {vr(CFr(k, i), 4)}, {"0" if k == 0 else c}')
    M, _ = add_waits(M, [])
    A += M
    A += ['s_barrier', 'v_and_b32 v2, 15, v1', f'v_mul_u32_u24 v2, {ROWP}, v2', 'v_lshl_add_u32 v2, v3, 4, v2',
          f's_mul_i32 s44, s20, {64 * ROWP}', 'v_add_u32 v2, s44, v2', 's_nop 3']
    for i in range(4):
        for j in range(4):
            a(f'ds_write_b128 v2, {ar(ACC(i, j), 4)} offset:{i * 16 * ROWP + j * 64}')
    A += ['v_lshrrev_b32 v5, 2, v0', f'v_mul_u32_u24 v6, {ROWP}, v5', 'v_and_b32 v7, 3, v0', 'v_lshl_add_u32 v6, v7, 6, v6',
          'v_mul_u32_u24 v9, 1792, v5', 'v_lshl_add_u32 v9, v7, 5, v9',
          f's_mul_i32 s45, s42, {64 * 1792}', 's_lshl_b32 s44, s43, 7', 's_add_u32 s45, s45, s44',
          's_waitcnt lgkmcnt(0)', 's_barrier']
    base = 32
    for w in range(4):
        for c in range(4):
            a(f'ds_read_b128 {vr(base + 16 * w + 4 * c, 4)}, v6 offset:{w * 64 * ROWP + c * 16}')
    a('s_waitcnt lgkmcnt(0)')
    for e in range(16):
        a(f'v_add_f32 v{base + e}, v{base + e}, v{base + 16 + e}')
        a(f'v_add_f32 v{base + 32 + e}, v{base + 32 + e}, v{base + 48 + e}')
    for e in range(16):
        a(f'v_add_f32 v{base + e}, v{base + e}, v{base + 32 + e}')
    for d in range(8):
        a(f'v_cvt_pk_bf16_f32 v{base + 16 + d}, v{base + 2 * d}, v{base + 2 * d + 1}')
    a(f'buffer_store_dwordx4 {vr(base + 16, 4)}, v9, s[24:27], s45 offen')
    a(f'buffer_store_dwordx4 {vr(base + 20, 4)}, v9, s[24:27], s45 offen offset:16')
    if stamps:
        A += stamp_end(WS, 1024)
    a('s_endpgm')
    B = []
    a = B.append
    a('s_sub_u32 s40, s2, 224'); a('s_lshl_b32 s40, s40, 2'); a('s_add_u32 s40, s40, s20')
    a('s_lshl_b32 s41, s40, 11'); a(f's_add_u32 s41, s41, {PART}')
    a('s_mul_i32 s42, s40, 9363'); a('s_lshr_b32 s42, s42, 16')
    a('s_mul_i32 s43, s42, 7'); a('s_sub_u32 s43, s40, s43')
    a('s_waitcnt lgkmcnt(0)')
    for h in range(16):
        for f in range(2):
            r = 32 + 8 * h + 4 * f
            dst = vr(r, 4) if r < 128 else ar(r - 128, 4)
            a(f'buffer_load_dwordx4 {dst}, v16, s[12:15], s41 offen offset:{f * 1024}')
        if h < 15:
            a(f's_add_u32 s41, s41, {HSTR}')
    a('v_and_b32 v2, 15, v1'); a('v_mul_u32_u24 v2, 1792, v2')
    a('v_and_b32 v4, 1, v3'); a('v_lshl_add_u32 v2, v4, 5, v2'); a('v_lshrrev_b32 v4, 1, v3'); a('v_lshl_add_u32 v2, v4, 4, v2')
    a(f's_mul_i32 s45, s42, {16 * 1792}'); a('s_lshl_b32 s44, s43, 7'); a('s_add_u32 s45, s45, s44')
    a('s_mov_b32 s46, 0xffff0000')
    for h in range(16):
        a(f's_waitcnt vmcnt({2 * (15 - h)})')
        for e in range(8):
            r = 32 + 8 * h + e
            src = f'v{r}'
            if r >= 128:
                a(f'v_accvgpr_read_b32 v24, a{r - 128}')
                src = 'v24'
            acc = 4 + 2 * e if e < 6 else 17 + 2 * (e - 6)
            if h == 0:
                a(f'v_lshlrev_b32 v{acc}, 16, {src}')
                a(f'v_and_b32 v{acc + 1}, s46, {src}')
            else:
                a(f'v_lshlrev_b32 v22, 16, {src}')
                a(f'v_and_b32 v23, s46, {src}')
                a(f'v_add_f32 v{acc}, v{acc}, v22')
                a(f'v_add_f32 v{acc + 1}, v{acc + 1}, v23')
    for e in range(8):
        acc = 4 + 2 * e if e < 6 else 17 + 2 * (e - 6)
        a(f'v_cvt_pk_bf16_f32 v{32 + e}, v{acc}, v{acc + 1}')
    a('s_nop 1')
    for f in range(2):
        a(f'v_permlane16_swap_b32 v{32 + 4 * f}, v{34 + 4 * f}')
        a(f'v_permlane16_swap_b32 v{33 + 4 * f}, v{35 + 4 * f}')
    for f in range(2):
        a(f'buffer_store_dwordx4 {vr(32 + 4 * f, 4)}, v2, s[24:27], s45 offen offset:{896 + 64 * f}')
    if stamps:
        B += stamp_end(WS, 1024)
    a('s_endpgm')
    assert not check(H + A, N + 'A')
    assert not check(H + B, N + 'B')
    out = H + A + [f'{N}_B:'] + B + [f'{N}_exit:', 's_endpgm']
    text = khead(N) + '\n'.join(out) + '\n'
    return dict(name=N, text=text, grid=448, block=256, lds=LDS, vgpr=192, sgpr=102, accum=128)
```

```python
from asmlib import *
from layout import *
from gemm1 import acc, xf, wf, reads, dmas, MF, PFI
import gemm1

NAME = 'proj_kernel'
LDS = 131072
STMOD = ' sc0 sc1'


def mfmas(vtype, buf, zero=False):
    L = []
    for i in range(8):
        for j in range(8):
            c = R(acc(i, j), 4)
            x, w = R(xf(buf, i), 4), R(wf(buf, j), 4)
            cc = '0' if zero else c
            L.append(f'{MF} {c}, {x}, {w}, {cc}' if vtype else f'{MF} {c}, {w}, {x}, {cc}')
    return L


def half_loop(vtype, p, tag, dma_gap, dma0=1):
    top = ['s_waitcnt vmcnt(1) lgkmcnt(0)', 's_barrier']
    fill = {}
    def add(g, x):
        fill.setdefault(g, []).append(x)
    add(-1, 's_cmp_eq_u32 s21, s39')
    add(-1, f's_cbranch_scc1 {tag}_sw{p}')
    add(-1, f'{tag}_swret{p}:')
    add(-1, 's_cmp_lt_u32 s21, s22')
    add(0, 's_cselect_b32 s6, s16, 0')
    add(0, 's_cselect_b32 s10, s17, 0')
    for n, x in enumerate(reads(0, 1 - p, 0)):
        add(2 + 2 * n, x)
    for n, x in enumerate(reads(1, 1 - p, 1)):
        add(64 + 2 + 2 * n, x)
    for n, (pre, x) in enumerate(dmas(p)):
        g = (dma0 + n * dma_gap) | 1
        for y in pre:
            add(g - 1, y)
        add(g, x)
    gl = (dma0 + 15 * dma_gap) | 1
    assert gl + 2 >= 64 and gl + 8 < 128
    add(gl + 1, 's_add_u32 s18, s18, 128')
    add(gl + 1, 's_add_u32 s19, s19, s23')
    add(gl + 2, 's_cmp_eq_u32 s21, s88')
    add(gl + 2, f's_cbranch_scc1 {tag}_pfswLBL')
    add(gl + 2, f'{tag}_pfretLBL:')
    add(gl + 3, 's_cmp_lt_u32 s21, s74')
    add(gl + 3, 's_cselect_b32 s70, s75, 0')
    add(gl + 5, PFI)
    add(gl + 6, 's_add_u32 s72, s72, s73')
    fa = {g: v for g, v in fill.items() if g < 64}
    fb = {g - 64: v for g, v in fill.items() if g >= 64}
    A = top + interleave(mfmas(vtype, 1), fa)
    A += ['s_cmp_eq_u32 s21, s38', f's_cbranch_scc1 {tag}_epi', 's_add_u32 s21, s21, 1']
    B = ['s_waitcnt lgkmcnt(0)'] + interleave(mfmas(vtype, 0), fb)
    Bz = ['s_waitcnt lgkmcnt(0)'] + interleave(mfmas(vtype, 0, True), fb)
    return A, [x.replace('LBL', str(p)) for x in B], [x.replace('LBL', 'z') for x in Bz]


def dec_kv_x():
    return ['s_lshr_b32 s3, s55, 2', 's_sub_u32 s3, 7, s3', 's_lshl_b32 s61, s3, 19',
            's_add_u32 s4, s46, s61', 's_addc_u32 s5, s47, 0', f's_sub_u32 s16, {2048 * 2048}, s61', 's_mov_b32 s32, 2048']


def dec_kv_w():
    return ['s_bitcmp1_b32 s55, 1', 's_cselect_b32 s8, s52, s50', 's_cselect_b32 s9, s53, s51',
            's_lshl_b32 s61, s56, 9', 's_add_u32 s8, s8, s61', 's_addc_u32 s9, s9, 0', f's_sub_u32 s17, {1024 * 8192}, s61',
            's_mov_b32 s33, 8192', 's_mov_b32 s34, 64']


def epi_kv(N, lab):
    return ['s_lshr_b32 s61, s55, 2', 's_sub_u32 s61, 7, s61', 's_lshl_b32 s61, s61, 17', 's_lshl_b32 s26, s56, 20', 's_add_u32 s26, s26, s61',
            's_lshl_b32 s61, s66, 16', 's_add_u32 s26, s26, s61',
            's_mov_b32 s79, 0', 'v_lshlrev_b32 v42, 4, v1',
            's_bitcmp1_b32 s55, 1', f's_cbranch_scc1 {N}_{lab}_v',
            's_mov_b32 s37, 0', 's_mov_b32 s27, 16384', 's_mov_b32 s28, 8192', 's_mov_b32 s29, 1024',
            's_lshl_b32 s61, s67, 12', f's_branch {N}_{lab}_d',
            f'{N}_{lab}_v:', 's_mov_b32 s37, 1', 's_mov_b32 s27, 2048', 's_mov_b32 s28, 1024', 's_mov_b32 s29, 16384',
            f's_add_u32 s26, s26, {VF}', 's_lshl_b32 s61, s67, 13',
            f'{N}_{lab}_d:', 's_add_u32 s26, s26, s61']


def voff_x():
    L = ['v_lshrrev_b32 v2, 3, v1', 's_lshl_b32 s61, s20, 6', 'v_add_u32 v2, s61, v2', 'v_mul_lo_u32 v2, v2, s32',
         'v_and_b32 v3, 7, v1', 'v_lshrrev_b32 v4, 4, v1', 'v_xor_b32 v3, v3, v4', 'v_lshlrev_b32 v3, 4, v3', 'v_xor_b32 v5, 64, v3',
         'v_add_u32 v16, v2, v3', 'v_add_u32 v5, v2, v5', 's_lshl_b32 s61, s32, 3', 's_mov_b32 s64, 0']
    for ii in range(1, 8):
        L += ['s_add_u32 s64, s64, s61', f's_sub_u32 s65, s64, {(ii % 4) * 1024}', f'v_add_u32 v{16 + ii}, s65, v{5 if ii & 1 else 16}']
    return L + ['s_mov_b32 s18, 0', 's_mov_b32 s6, s16']


def voff_w():
    L = ['v_lshrrev_b32 v2, 5, v1', 's_lshl_b32 s61, s20, 4', 'v_add_u32 v3, s61, v2', 'v_mul_lo_u32 v3, v3, s33',
         'v_bfe_u32 v4, v1, 1, 4', 'v_xor_b32 v4, v4, v2', 'v_and_b32 v5, 1, v4', 'v_lshlrev_b32 v5, 5, v5', 'v_and_b32 v6, 1, v1',
         'v_lshl_add_u32 v5, v6, 4, v5', 'v_add_u32 v3, v3, v5', 'v_lshrrev_b32 v4, 1, v4']
    for var in range(4):
        L += [f'v_xor_b32 v5, {var}, v4', 'v_mul_lo_u32 v5, v5, s34', f'v_add_u32 v{6 + var}, v3, v5']
    L += ['s_lshl_b32 s61, s33, 1', 's_mov_b32 s64, 0']
    for ii in range(8):
        var = (ii & 1) + 2 * (ii >> 2)
        if ii:
            L.append('s_add_u32 s64, s64, s61')
        L += [f's_sub_u32 s65, s64, {(ii % 4) * 1024}', f'v_add_u32 v{24 + ii}, s65, v{6 + var}']
    return L + ['s_lshl_b32 s23, s33, 6', 's_mov_b32 s19, 0', 's_mov_b32 s10, s17']


def pf_setup(N, lab, xs, wsr, xb, wb, xsz, wsz, tt, sh0, msk):
    return ['s_and_b32 s61, s20, 1', 's_cmp_ge_u32 s20, 2', f's_cbranch_scc1 {N}_{lab}_w',
            f's_mov_b32 s68, {xb[0]}', f's_mov_b32 s69, {xb[1]}', f's_mov_b32 s75, {xsz}', 's_mov_b32 s73, 128',
            f's_add_u32 s64, {msk}, 1', 's_mul_i32 s64, s64, s61', f's_add_u32 s64, s64, {sh0}',
            f'v_and_b32 v46, {msk}, v1', 'v_add_u32 v46, s64, v46', f'v_mul_lo_u32 v46, v46, {xs}', f's_branch {N}_{lab}_d',
            f'{N}_{lab}_w:',
            f's_mov_b32 s68, {wb[0]}', f's_mov_b32 s69, {wb[1]}', f's_mov_b32 s75, {wsz}', f's_lshl_b32 s73, {wsr}, 6',
            f's_lshl_b32 s64, {tt}, 3', 's_lshl_b32 s61, s61, 2', 's_add_u32 s64, s64, s61',
            'v_bfe_u32 v46, v1, 2, 2', 'v_add_u32 v46, s64, v46', f'v_mul_lo_u32 v46, v46, {wsr}', 'v_and_b32 v2, 3, v1',
            'v_lshl_add_u32 v46, v2, 7, v46',
            f'{N}_{lab}_d:', 's_mov_b32 s70, s75']


def gen(dma_gap=5, stamps=False, pfd=3):
    gemm1.STMOD = STMOD
    N = NAME
    P = []
    a = P.append
    a('s_cmp_ge_u32 s2, 256')
    a(f's_cbranch_scc1 {N}_exit')
    if stamps:
        P += stamp_begin()
    a(f's_load_dwordx4 s[44:47], s[0:1], {B_X}')
    a(f's_load_dwordx4 s[48:51], s[0:1], {B_WQ}')
    a(f's_load_dwordx2 s[52:53], s[0:1], {B_WUV}')
    a(f's_load_dwordx4 s[40:43], s[0:1], {A_X}')
    a(f's_load_dwordx2 s[12:13], s[0:1], {WS}')
    a('v_lshrrev_b32 v2, 6, v0')
    a('v_and_b32 v1, 63, v0')
    a('s_mov_b32 s7, 0x20000')
    a('v_readfirstlane_b32 s20, v2')
    a('s_mov_b32 s11, 0x20000'); a('s_mov_b32 s15, 0x20000'); a('s_mov_b32 s71, 0x20000')
    a(f's_mov_b32 s14, {PART}')
    a('s_and_b32 s54, s2, 7')
    a('s_lshr_b32 s55, s2, 3')
    a('s_and_b32 s56, s55, 1')
    a('s_lshl_b32 s57, s54, 1')
    a('s_add_u32 s56, s56, s57')
    a('s_lshl_b32 s24, s20, 13')
    a('s_add_u32 s25, s24, 65536')
    a('s_lshr_b32 s66, s20, 1')
    a('s_and_b32 s67, s20, 1')
    a('s_mov_b32 s32, 2048'); a('s_mov_b32 s33, 8192'); a('s_mov_b32 s34, 64')
    vx, vw = voff_x(), voff_w()
    P += vx[:-1] + vw[:-1]
    a('s_waitcnt lgkmcnt(0)')
    P += dec_kv_x() + dec_kv_w() + vx[-1:] + vw[-1:]
    d0 = dmas(0)
    for pre, x in d0[8:] + d0[:8]:
        for y in pre:
            a(y); a('s_nop 0')
        a(x)
    a('s_add_u32 s18, s18, 128'); a('s_add_u32 s19, s19, s23')
    a('s_and_b32 s76, s55, 3'); a('s_lshl_b32 s76, s76, 6')
    P += pf_setup(N, 'pf0', 's32', 's33', ('s4', 's5'), ('s8', 's9'), 's16', 's17', 's3', 's76', '31')
    a('s_mov_b32 s72, s73')
    for d in range(pfd + 1):
        a(PFI); a('s_add_u32 s72, s72, s73')
    P += epi_kv(N, 'e0')
    a('v_lshrrev_b32 v4, 4, v1')
    a('v_and_b32 v2, 15, v1'); a('v_lshrrev_b32 v3, 1, v2'); a('v_xor_b32 v3, v3, v4'); a('v_lshlrev_b32 v3, 4, v3')
    a('v_lshl_add_u32 v3, v2, 7, v3'); a('s_lshl_b32 s61, s66, 14'); a('v_add_u32 v32, s61, v3'); a('v_xor_b32 v33, 64, v32')
    a('v_lshrrev_b32 v3, 2, v2'); a('v_lshl_add_u32 v5, v4, 3, v3'); a('v_lshlrev_b32 v5, 9, v5'); a('v_and_b32 v6, 1, v4')
    a('v_lshl_add_u32 v6, v6, 2, v3'); a('v_lshl_add_u32 v5, v6, 5, v5'); a('v_and_b32 v6, 3, v1'); a('v_lshl_add_u32 v5, v6, 3, v5')
    a('s_lshl_b32 s61, s67, 8'); a('s_add_u32 s61, s61, 65536'); a('v_add_u32 v34, s61, v5')
    for j in range(1, 8):
        a(f'v_xor_b32 v{34 + j}, {32 * j}, v34')
    a('s_mov_b32 s38, 17'); a('s_mov_b32 s35, 0'); a('s_mov_b32 s78, 1.0'); a('v_mov_b32 v43, -1')
    a('s_mov_b32 s22, 16'); a('s_mov_b32 s39, -1'); a('s_mov_b32 s88, -1'); a('s_mov_b32 s89, 0'); a(f's_mov_b32 s74, {16 - (pfd - 1)}')
    a('s_cmp_ge_u32 s55, 22'); a(f's_cbranch_scc1 {N}_dec_done')
    a('s_mov_b32 s22, 23'); a('s_mov_b32 s39, 16'); a(f's_mov_b32 s88, {16 - (pfd - 1)}'); a('s_mov_b32 s89, 1'); a(f's_mov_b32 s74, {23 - (pfd - 1)}')
    a('s_cmp_ge_u32 s55, 16'); a(f's_cbranch_scc1 {N}_jobA')
    a('s_lshr_b32 s57, s55, 1')
    a('s_and_b32 s76, s55, 1'); a('s_lshl_b32 s76, s76, 7'); a('s_mov_b32 s77, 63')
    a(f's_mul_i32 s61, s57, {256 * 896}')
    a('s_add_u32 s40, s44, s61'); a('s_addc_u32 s41, s45, 0'); a(f's_sub_u32 s42, {2048 * 896}, s61')
    a('s_lshl_b32 s61, s56, 9')
    a('s_add_u32 s44, s48, s61'); a('s_addc_u32 s45, s49, 0'); a(f's_sub_u32 s48, {448 * 8192}, s61')
    a('s_mov_b32 s43, 8192'); a('s_mov_b32 s49, 64')
    a('s_lshl_b32 s61, s57, 17'); a('s_lshl_b32 s58, s56, 20'); a('s_add_u32 s58, s58, s61'); a(f's_add_u32 s58, s58, {QF}')
    a('s_lshl_b32 s61, s66, 16'); a('s_add_u32 s58, s58, s61'); a('s_lshl_b32 s61, s67, 12'); a('s_add_u32 s58, s58, s61')
    a(f's_mov_b32 s78, {f32bits(LOG2E / 16)}')
    a('s_mov_b32 s63, 0'); a('s_mov_b32 s59, 16384'); a('s_mov_b32 s60, 8192'); a('s_mov_b32 s62, 1024')
    a(f's_branch {N}_dec_done')
    a(f'{N}_jobA:')
    a('s_mov_b32 s57, s54')
    a('s_sub_u32 s64, s55, 16')
    a('s_and_b32 s76, s64, 3'); a('s_lshl_b32 s76, s76, 6'); a('s_mov_b32 s77, 31')
    a('s_mul_i32 s61, s64, 448')
    a('s_add_u32 s44, s42, s61'); a('s_addc_u32 s45, s43, 0'); a(f's_sub_u32 s48, {448 * 2688}, s61')
    a(f's_mul_i32 s61, s57, {256 * 896}')
    a('s_add_u32 s40, s40, s61'); a('s_addc_u32 s41, s41, 0'); a(f's_sub_u32 s42, {2048 * 896}, s61')
    a('s_mov_b32 s43, 2688'); a('s_mov_b32 s49, 56')
    a('s_lshl_b32 s58, s64, 20'); a(f's_add_u32 s58, s58, {QA}'); a('s_lshl_b32 s61, s57, 14'); a('s_add_u32 s58, s58, s61')
    a('s_lshl_b32 s61, s66, 13'); a('s_add_u32 s58, s58, s61'); a('s_lshl_b32 s61, s67, 19'); a('s_add_u32 s58, s58, s61')
    a('s_mov_b32 s35, 1'); a('s_mov_b32 s60, 256')
    a('s_mov_b32 s63, 1'); a('s_mov_b32 s59, 131072'); a('s_mov_b32 s62, 2048')
    a('s_cmp_ge_u32 s64, 4'); a(f's_cbranch_scc1 {N}_dec_done')
    a('s_mov_b32 s63, 0'); a('s_mov_b32 s59, 2048'); a('s_mov_b32 s62, 131072')
    a(f's_mov_b32 s78, {f32bits(LOG2E * 28 ** -0.5)}')
    a('s_cmp_lt_u32 s64, 2'); a(f's_cbranch_scc1 {N}_dec_done')
    a('s_mov_b32 s78, 1.0'); a('s_mov_b32 s35, 2'); a('s_mov_b32 s60, 128')
    a(f'{N}_dec_done:')
    a('s_mov_b32 s50, 896')
    if stamps:
        P += stamp_mid(0)
    a(f's_waitcnt vmcnt({pfd + 1})')
    a('s_barrier')
    if stamps:
        P += stamp_mid(1)
    P += reads(0, 0, 0)
    a('s_mov_b32 s21, 2')
    a('s_cmp_eq_u32 s37, 0')
    a(f's_cbranch_scc0 {N}_t1_entry')
    a(f's_branch {N}_t0_entry')
    out = list(P)
    sw = ['s_mov_b32 s4, s40', 's_mov_b32 s5, s41', 's_mov_b32 s16, s42', 's_mov_b32 s32, 896',
          's_mov_b32 s8, s44', 's_mov_b32 s9, s45', 's_mov_b32 s17, s48', 's_mov_b32 s33, s43', 's_mov_b32 s34, s49'] + voff_x() + voff_w()
    def pfsw(lab):
        return pf_setup(N, lab, 's50', 's43', ('s40', 's41'), ('s44', 's45'), 's42', 's48', 's57', 's76', 's77') + ['s_mov_b32 s72, 0']
    nx = ['s_mov_b32 s26, s58', 's_mov_b32 s27, s59', 's_mov_b32 s28, s60', 's_mov_b32 s29, s62', 's_mov_b32 s37, s63',
          's_mov_b32 s79, 1', 's_mov_b32 s38, 24', 's_add_u32 s21, s21, 1',
          's_cmp_eq_u32 s35, 0', f's_cbranch_scc1 {N}_lm_done',
          'v_lshrrev_b32 v4, 4, v1', 'v_and_b32 v2, 15, v1',
          'v_lshlrev_b32 v42, 9, v4', 'v_lshl_add_u32 v42, v2, 4, v42',
          's_cmp_eq_u32 s35, 1', f's_cbranch_scc1 {N}_lm1',
          'v_and_b32 v5, 8, v1', 'v_lshl_add_u32 v42, v5, 4, v42',
          f'{N}_lm1:', 'v_mov_b32 v44, 0', 's_cmp_eq_u32 s37, 0', 's_cselect_b32 s61, 48, 12', 'v_mov_b32 v5, v2',
          f's_cbranch_scc0 {N}_lm2', 'v_mov_b32 v5, v1',
          f'{N}_lm2:', 'v_cmp_gt_u32 vcc, s61, v5', 'v_mov_b32 v6, 0x3f803f80', 's_nop 0', 'v_cndmask_b32 v43, 0, -1, vcc',
          'v_cmp_eq_u32 vcc, 12, v2', 's_nop 1', 'v_cndmask_b32 v44, v44, v6, vcc',
          f'{N}_lm_done:', 's_cmp_eq_u32 s37, 0', f's_cbranch_scc0 {N}_t1_bz', f's_branch {N}_t0_bz']
    endc = (stamp_end(WS, 0) if stamps else []) + ['s_endpgm']
    for vt in (0, 1):
        tag = f'{N}_t{vt}'
        A0, B0, _ = half_loop(vt, 0, tag, dma_gap)
        A1, B1, Bz = half_loop(vt, 1, tag, dma_gap)
        fill = {}
        for n, x in enumerate(reads(1, 0, 1)):
            fill.setdefault(2 + 2 * n, []).append(x)
        for n, (pre, x) in enumerate(dmas(1)):
            g = 1 + 2 * ((n * 3) // 2)
            for y in pre:
                fill.setdefault(g - 1, []).append(y)
            fill.setdefault(g, []).append(x)
        fill.setdefault(60, []).extend(['s_add_u32 s18, s18, 128', 's_add_u32 s19, s19, s23', PFI])
        Bent = ['s_waitcnt lgkmcnt(0)'] + interleave(mfmas(vt, 0, True), fill)
        out += ['.p2align 6', f'{tag}_entry:'] + Bent + [f'{tag}_loop:'] + A0 + B0 + A1 + B1 + [f's_branch {tag}_loop']
        out += [f'{tag}_bz:'] + Bz + [f's_branch {tag}_loop']
        out += [f'{tag}_epi:', 's_nop 7', 's_cmp_eq_u32 s79, 0', f's_cbranch_scc0 {tag}_epifix'] + (stamp_mid(2) if stamps else [])
        epl = gemm1.epilogue(vt, False, False)[:-1]
        efx = gemm1.epilogue(vt, True, False)[:-1]
        out += epl + ['s_cmp_eq_u32 s89, 0', f's_cbranch_scc0 {N}_next'] + endc + [f'{tag}_epifix:'] + efx + endc
        for p in (0, 1):
            out += [f'{tag}_sw{p}:'] + sw + [f's_branch {tag}_swret{p}']
        for p in ('0', '1', 'z'):
            out += [f'{tag}_pfsw{p}:'] + pfsw(f't{vt}pf{p}') + [f's_branch {tag}_pfret{p}']
        dm = {('v', 45)}
        assert not check(P + Bent + A0 + B0 + A1 + ['s_nop 7', 's_cmp_eq_u32 s35, 0'] + epl + nx + Bz + A0 + B0 + A1 + B1 + A0 + ['s_nop 7'] + efx, tag, dummy=dm)
        i = A0.index(f'{tag}_swret0:')
        j = B0.index(f'{tag}_pfret0:')
        assert not check(P + Bent + A0[:i] + sw + A0[i:] + B0[:j] + pfsw('x') + B0[j:] + A1, tag + 'sw', dummy=dm)
    out += [f'{N}_next:'] + nx
    out += [f'{N}_exit:', 's_endpgm']
    text = khead(N) + '\n'.join(out) + '\n'
    return dict(name=N, text=text, grid=256, block=256, lds=LDS, vgpr=448, sgpr=102, accum=256)
```

```python
from asmlib import *
from layout import *
import gemm1, gemm2, attna3
from gemm1 import reads, dmas, PFI
from gemm2 import half_loop, dec_kv_x, dec_kv_w, epi_kv, voff_x, voff_w, pf_setup, mfmas
from attnb import (S, P, O, RING, NEGM, Sched, softmax_items, max_items, xreduce, mask_code, r1_code, r2_code, rgap, rgap2,
                   add_waits, CT, OA, norm_items, MF, TH, BARG, BARG2, D1G, NP1, pv_mfmas)

NAME = 'mega_kernel'
LDS = 163840
WT = ' sc0 sc1'
SPIN = 200000
NSTORE = ((0, 0, 0, 8, 8, 8, 8), (13, 13, 6, 0, 0, 0, 0))
LD = ' sc1'
ACNT = {9: 1, 8: 1, 7: 1, 6: 2, 5: 2, 4: 2, 3: 2, 2: 1, 1: 2, 0: 2}


def Q(a, s): return 192 + 32 * a + 4 * s
def XQ(st, a, ks): return 16 * st + 8 * ks + 4 * a
XV = (45, 46, 47, 61)
def QACC(dt, a): return 64 + 8 * dt + 4 * a
KS = lambda slot: 1 - slot
CSLOT = [1, 0, 2, 3, 1, 0, 2]
QSLOT = [2, 3, 0, 2, 3, 0, 2]
XSL = [2, 3, 0, 1, 2, 3, 0]
XOFF = [0, 16384, 98304, 114688]


def kread(slot, f): return f'ds_read_b128 a[{RING(f)}:{RING(f) + 3}], v16 offset:{KS(slot) * 32768 + f * 1024}'
def vread(slot, f): return f'ds_read_b128 a[{RING(f)}:{RING(f) + 3}], v17 offset:{slot * 32768 + f * 1024}'


def qk_mfmas(b, first=False):
    L = []
    for kt in range(4):
        for s in range(8):
            for a in range(2):
                d = vr(S(b, kt, a), 4)
                c = d if s else ('0' if first else vr(NEGM(a), 4))
                L.append(f'{MF} {d}, {ar(RING(kt * 8 + s), 4)}, {vr(Q(a, s), 4)}, {c}')
    return L


def dma_phys(isv, phys, tag=''):
    L = []
    t = f' ; tag={tag}' if tag else ''
    for i in range(8):
        pre = [f's_add_u32 m0, s18, {phys * 32768 + (i // 4) * 4096}'] if i % 4 == 0 else []
        if isv:
            L.append((pre, f'buffer_load_dwordx4 v{56 + i // 4}, s[8:11], s17 offen offset:{(i % 4) * 1024}{LD} lds{t}'))
        else:
            L.append((pre, f'buffer_load_dwordx4 v{48 + i}, s[4:7], s16 offen offset:{(i % 4) * 1024}{LD} lds{t}'))
    return L, ('s_add_u32 s17, s17, 32768' if isv else 's_add_u32 s16, s16, s26')


def dma_wq(phys, tag):
    L = []
    for ii in range(8):
        pre = [f's_add_u32 m0, s18, {phys * 32768 + (ii // 4) * 4096}'] if ii % 4 == 0 else []
        L.append((pre, f'buffer_load_dwordx4 v{24 + ii}, s[8:11], s19 offen offset:{(ii % 4) * 1024} lds ; tag={tag}'))
    return L, 's_add_u32 s19, s19, s23'


def dma_x(st):
    L = []
    for ii in range(4):
        pre = [f's_add_u32 m0, s25, {XOFF[XSL[st]]}'] if ii == 0 else []
        L.append((pre, f'buffer_load_dwordx4 v{XV[ii]}, s[68:71], s65 offen offset:{ii * 1024} lds ; tag=x{st}'))
    return L, 's_add_u32 s65, s65, 128'


def x_reads(st):
    return [f'ds_read_b128 {ar(XQ(st, a, ks), 4)}, v{(43 if XSL[st] >= 2 else 32) + ks} offset:{(XSL[st] % 2) * 16384 + a * 2048}' for ks in range(2) for a in range(2)]


def put_group(sc, grp_adv, g0, gap):
    grp, adv = grp_adv
    g = g0
    for pre, x in grp:
        for y in pre:
            sc.put(g - 1, y)
        sc.put(g, x)
        g += gap
    sc.put(g - gap, adv)


def flat_group(grp_adv):
    grp, adv = grp_adv
    L = []
    for pre, x in grp:
        for y in pre:
            L += [y, 's_nop 0']
        L.append(x)
    return L + [adv]


def switch_code():
    L = ['s_mov_b32 s4, s48', 's_mov_b32 s5, s49', f's_mov_b32 s6, {256 * 896}', 's_mov_b32 s16, 0', 's_mov_b32 s26, 128']
    for i in range(8):
        L.append(f'v_add_u32 v{48 + i}, {i * 8 * 896 - (i % 4) * 1024}, v160')
    return L


def fix_vm(lines, vm0, limit=60):
    vm = list(vm0)
    out = []
    for ln in lines:
        if ln.startswith('VMWAIT'):
            idx = max(max(i for i, t in enumerate(vm) if t == tag) if tag in vm else -1 for tag in ln.split()[1:])
            out.append(f's_waitcnt vmcnt({len(vm) - idx - 1}) lgkmcnt(0)' if idx >= 0 else 's_waitcnt lgkmcnt(0)')
            vm = vm[idx + 1:]
            continue
        I = parse(ln)
        if I is not None and I.cls == 'vmem' and 'v62, v63' not in ln and 'tag=skip' not in ln:
            if len(vm) >= limit:
                out.append('s_waitcnt vmcnt(40)')
                vm = vm[len(vm) - 40:]
            vm.append(ln.split('tag=')[1] if 'tag=' in ln else 'x')
        out.append(ln)
    return out, vm


def signal_code(off):
    return [f'v_mov_b32 v3, {off}', 'v_mov_b32 v2, 1', 's_mov_b64 exec, 1', 'global_atomic_add v3, v2, s[52:53] sc1', 's_mov_b64 exec, -1']


def spin_code(lab, vd, va, target):
    return [f's_mov_b32 s62, {SPIN}', f'{lab}spin:', f'v_readfirstlane_b32 s61, {vd}', f's_cmp_ge_u32 s61, {target}',
            f's_cbranch_scc1 {lab}ok', 's_sleep 1', f'global_load_dword {vd}, {va}, s[52:53] sc1', 's_waitcnt vmcnt(0)',
            's_sub_u32 s62, s62, 1', 's_cmp_lg_u32 s62, 0', f's_cbranch_scc1 {lab}spin', f'{lab}ok:']


def iteration(p, tag, masked, dgap=6):
    sc = Sched(128)
    for f in range(32):
        g = rgap(f)
        if g >= 0:
            sc.put(g, kread(1 - p, f))
            sc.put(64 + g, vread(p, f))
        else:
            sc.put(64 + g, vread(p, f))
            sc.put(128 + g, kread(p, f))
    for base in (0, 64):
        sc.put(base + BARG, 's_waitcnt vmcnt(16) lgkmcnt(0)', 0)
        sc.put(base + BARG, 's_barrier', 4)
    if masked:
        for x in (switch_code() if masked == 2 else []) + mask_code(1 - p):
            sc.put(63, x, 0)
    for isv, base in ((1, 0), (0, 64)):
        grp, adv = dma_phys(isv, 2 + (1 - p) if isv else KS(1 - p))
        for i, (pre, x) in enumerate(grp):
            g = sc.fit(base + 1 + i * dgap, 4, base + BARG - 1)
            for y in pre:
                sc.put(g - 1, y)
            sc.put(g, x)
        sc.put(g + 1, adv)
    g = 66
    for x in max_items(1 - p):
        g = sc.fit(g, 4, D1G - 3)
        sc.put(g, x)
    sc.put(D1G - 2, 'v_max_f32 v23, v21, v22')
    sc.put(D1G - 1, 'v_cmp_lt_f32 vcc, s22, v23')
    sc.put(D1G, f's_cbranch_vccnz {tag}_r1')
    sc.put(D1G, '; SPLIT', 0)

    def place(items, g0, g1):
        n = sum(8 if k == 'e' else 4 for k, _ in items)
        acc = 0
        g = g0
        laste = -10
        for k, x in items:
            c = 8 if k == 'e' else 4
            g = max(g, g0 + (acc * (g1 - g0)) // n)
            if k == 'v':
                g = max(g, laste + 1)
            g = sc.fit(g, c, g1)
            if k == 'e':
                laste = g
            sc.put(g, x, c)
            acc += c
    place(softmax_items(p)[NP1:], 0, 61)
    place(softmax_items(1 - p)[:NP1], D1G + 1, 126)
    sc.put(126, 's_add_u32 s19, s19, 1')
    return interleave(qk_mfmas(1 - p) + pv_mfmas(p), sc.slots)


def wread(addr_lo, addr_hi, phys, off, f):
    v = addr_hi if phys >= 2 else addr_lo
    return [f'ds_read_b64_tr_b16 a[{RING(f) + 2 * u}:{RING(f) + 2 * u + 1}], v{v} offset:{(phys % 2) * 32768 + off + u * 2048}' for u in range(2)]


def wo_read(c, f): return wread(161 + f % 4, 165 + f % 4, CSLOT[c], (f // 4) * 4096, f)
def wq_read(st, f): return wread(16 + f % 8, 34 + f % 8, QSLOT[st], (f // 16) * 16384 + ((f % 16) // 8) * 256, f)


def store_items(c):
    b = c % 2
    L = []
    n = 0
    for a in range(2):
        for mp in range(2):
            tb = (4, 8, 12, 28)[n]
            for h in range(2):
                r = OA(b, 2 * mp + h, a)
                L.append(f'v_cvt_pk_bf16_f32 v{tb + 2 * h}, v{r}, v{r + 1}')
                L.append(f'v_cvt_pk_bf16_f32 v{tb + 2 * h + 1}, v{r + 2}, v{r + 3}')
            L.append(f'buffer_store_dwordx4 v[{tb}:{tb + 3}], v{58 if a else 16}, s[12:15], s46 offen offset:{mp * 1024}{WT}')
            n += 1
    L.append('s_add_u32 s46, s46, 2048')
    return L


def tail_code():
    T = ['VMWAIT V', 's_barrier']
    T += [vread(1, f) for f in range(32) if rgap(f) < 0]
    items = softmax_items(1)[NP1:]
    sc = Sched(len(items))
    put_group(sc, dma_phys(0, CSLOT[2], 'c2'), 2, 5)
    T += '\n'.join(interleave([x + ('\ns_nop 0' if k == 'e' else '') for k, x in items], sc.slots)).split('\n')
    sc = Sched(64)
    for f in range(32):
        if rgap(f) >= 0:
            sc.put(rgap(f), vread(1, f))
    lred = []
    for aa in range(2):
        lred += xreduce(24 + aa, 'v_add_f32') + [f'v_rcp_f32 v{24 + aa}, v{24 + aa}']
    for i, x in enumerate(lred):
        sc.put(2 + i, x)
    sc.put(BARG, 'VMWAIT c0')
    sc.put(BARG, 's_barrier')
    put_group(sc, dma_phys(0, CSLOT[3], 'c3'), BARG + 2, 2)
    for f in range(32):
        if rgap2(f) < 0:
            for x in wo_read(0, f):
                sc.put(64 + rgap2(f), x)
    for i, x in enumerate(norm_items(0)):
        sc.put(44 + i // 2, x)
    T.append('s_nop 1')
    T += interleave(pv_mfmas(1), sc.slots)
    T.append('s_nop 1')
    for c in range(7):
        sc = Sched(64)
        sp = []
        for f in range(32):
            s, mt = f // 4, f % 4
            for aa in range(2):
                d = vr(OAm(c % 2, mt, aa), 4)
                sp.append(f'{MF} {d}, {ar(RING(f), 4)}, {vr(CT(aa, s), 4)}, {d if s else 0}')
            if rgap2(f) >= 0:
                for x in wo_read(c, f):
                    sc.put(rgap2(f), x)
            elif c < 6:
                for x in wo_read(c + 1, f):
                    sc.put(64 + rgap2(f), x)
        if c < 6:
            sc.put(BARG2, f'VMWAIT c{c + 1}')
            sc.put(BARG2, 's_barrier')
        if 1 <= c <= 3:
            put_group(sc, dma_phys(0, CSLOT[c + 3], f'c{c + 3}'), 1, 6)
        if c == 0:
            for s in range(1, 8):
                it = norm_items(s)
                for i, x in enumerate(it):
                    sc.put(8 * (s - 1) + (i * 6) // len(it), x)
        else:
            for i, x in enumerate(store_items(c - 1)):
                sc.put(9 + 2 * i, x)
        T += interleave(sp, sc.slots)
    T += ['s_nop 7'] + store_items(6)
    T, _ = fix_vm(T, ['c0'] * 8 + ['V'] * 8 + ['c1'] * 8)
    T, _ = add_waits(T, [])
    return T


def OAm(b, mt, a): return 192 + 32 * b + 8 * mt + 4 * a
OA = OAm


PKBASE = {2: ('v', 192), 1: ('v', 224), 3: ('a', 128), 0: ('a', 160)}


def pack_code(vtype, fix):
    from gemm1 import acc
    L = []
    for g in (2, 3, 1, 0):
        for n in range(8):
            t0, t1 = (16 * g + n, 16 * g + n + 8) if vtype else (16 * g + 2 * n, 16 * g + 2 * n + 1)
            q = n if vtype else None
            src = []
            for t in (t0, t1):
                k, r = acc(t // 8, t % 8)
                for e in range(4):
                    if k == 'a':
                        L.append(f'v_accvgpr_read_b32 v{2 + len(src)}, a{r + e}')
                        src.append(f'v{2 + len(src)}')
                    else:
                        src.append(f'v{r + e}')
            if fix and not vtype:
                L += [f'v_mul_f32 {x}, s78, {x}' for x in src]
            dk, db = PKBASE[g]
            tb = db + 4 * n if dk == 'v' else 10
            for d in range(4):
                L.append(f'v_cvt_pk_bf16_f32 v{tb + d}, {src[2 * d]}, {src[2 * d + 1]}')
            if fix and vtype and n % 2 == 1:
                L += [f'v_and_or_b32 v{tb + d}, v{tb + d}, v43, v44' for d in range(4)]
            if fix and not vtype:
                L += [f'v_and_b32 v{tb + d}, v{tb + d}, v43' for d in (2, 3)]
            if dk == 'a':
                L += [f'v_accvgpr_write_b32 a{db + 4 * n + d}, v{tb + d}' for d in range(4)]
    if vtype:
        L += ['s_mov_b32 s73, s28', 's_mov_b32 s74, s27', 's_lshl_b32 s76, s27, 1', 's_mov_b32 s27, s29']
    else:
        L += ['s_mov_b32 s73, s29', 's_lshl_b32 s74, s29, 1', 's_mov_b32 s76, s28']
    L += ['s_mov_b32 s72, 0', 's_add_u32 s75, s74, s73', 's_add_u32 s77, s76, s73', 's_add_u32 s78, s76, s74', 's_add_u32 s79, s76, s75']
    return L


def pk_stores():
    L = []
    for g in (0, 1, 2, 3):
        dk, db = PKBASE[g]
        for n in range(8):
            pre = ['s_add_u32 s26, s26, s27'] if (n == 0 and g) else []
            L.append(pre + [f's_add_u32 s31, s26, s{72 + n}',
                            f'buffer_store_dwordx4 {R((dk, db + 4 * n), 4)}, v42, s[12:15], s31 offen{WT} ; tag=st'])
    return L


STAMPS = False
def SA(k): return stamp_at(k) if STAMPS else []


def dbl(grp_adv, so, delta, m0own, m0other):
    grp, adv = grp_adv
    other = []
    for n, (pre, x) in enumerate(grp):
        pre2 = [y.replace(m0own, m0other) for y in pre]
        if n == 0:
            pre2 = [f's_add_u32 s30, {so}, {delta}'] + pre2
        other.append((pre2, x.replace(f', {so} offen', ', s30 offen')))
    return grp + other, adv


def qproj_head(N):
    L = []
    a = L.append
    a('s_lshl_b32 s61, s67, 8')
    for j in range(8):
        a(f'v_subrev_u32 v{34 + j}, s61, v{34 + j}')
        a(f'v_add_u32 v{16 + j}, 0xffff0000, v{34 + j}')
    L += ['v_and_b32 v2, 15, v1', 'v_lshrrev_b32 v3, 1, v2', 'v_lshrrev_b32 v4, 4, v1', 'v_xor_b32 v3, v3, v4', 'v_lshlrev_b32 v3, 4, v3',
          'v_lshl_add_u32 v3, v2, 7, v3', 'v_add_u32 v32, s25, v3', 'v_xor_b32 v33, 64, v32',
          'v_add_u32 v43, 98304, v32', 'v_add_u32 v44, 98304, v33']
    a('s_cmp_lt_u32 s55, 24'); a(f's_cbranch_scc1 {N}_late')
    a('s_waitcnt vmcnt(16)')
    for grp in pk_stores():
        L += [x.replace('tag=st', 'tag=skip') for x in grp]
    L += ['s_waitcnt vmcnt(0)', 's_barrier', 'v_mov_b32 v42, 0x7ff00000', 's_cmp_eq_u32 s20, 0', f's_cbranch_scc0 {N}_late'] + [x + ' ; tag=skip' for x in signal_code('s3')]
    a(f'{N}_late:')
    a('s_lshr_b32 s41, s55, 1'); a('s_sub_u32 s41, 15, s41')
    a('s_lshl_b32 s21, s41, 1'); a('s_add_u32 s42, s21, 2'); a('s_lshl_b32 s6, s42, 15')
    a('s_lshl_b32 s43, s56, 20'); a('s_add_u32 s4, s12, s43'); a('s_addc_u32 s5, s13, 0')
    a('s_sub_u32 s4, s4, 16384'); a('s_subb_u32 s5, s5, 0'); a('s_add_u32 s6, s6, 16384')
    a('s_mov_b32 s16, 16384'); a('s_mov_b32 s17, 0')
    a('v_lshlrev_b32 v2, 4, v1'); a('v_add_u32 v56, s18, v2'); a('v_add_u32 v57, 4096, v56')
    for i in range(8):
        a(f'v_mov_b32 v{48 + i}, v{56 + i // 4}')
    a('s_xor_b32 s28, s18, 16384'); a('s_xor_b32 s29, s25, 8192')
    L += SA(1)
    a('VMWAIT x0')
    a('s_barrier')
    L += SA(2)
    L += x_reads(0)
    L += flat_group(dma_x(2)) + flat_group(dma_x(3))
    for f in range(32):
        if rgap2(f) < 0:
            L += wq_read(0, f)
    L += ['s_cmp_ge_u32 s20, 2', f's_cbranch_scc1 {N}_qH']
    return L


def qproj_role(N, role):
    L, rare = [], []
    a = L.append
    sg = -1 if role else 1
    hx = lambda v: hex(v & 0xffffffff)
    ns = NSTORE[role]
    for st in range(7):
        sc = Sched(64)
        sp = []
        for f in range(32):
            ks, dt = f // 16, f % 16
            for aa in range(2):
                d = vr(QACC(dt, aa), 4)
                sp.append(f'{MF} {d}, {ar(RING(f), 4)}, {ar(XQ(st, aa, ks), 4)}, {d if (st or ks) else 0}')
            if rgap2(f) >= 0:
                for x in wq_read(st, f):
                    sc.put(rgap2(f), x)
            elif st < 6:
                for x in wq_read(st + 1, f):
                    sc.put(64 + rgap2(f), x)
        duty = (st >= 3) == bool(role)
        groups = []
        if 1 <= st <= 4:
            groups.append(dbl(dma_wq(QSLOT[st + 2], f'w{st + 2}'), 's19', hx(sg * 32 * 8192), 's18', 's28'))
        if 1 <= st <= 3:
            groups.append(dbl(dma_x(st + 3), 's65', hx(sg * 64 * 896), 's25', 's29'))
        if st == 6:
            groups += [dbl(dma_phys(0, KS(0), 'k0'), 's16', hx(sg * 16384), 's18', 's28')]
        g = 1
        for grp in groups:
            if duty:
                put_group(sc, grp, g, 2)
                g += 2 * len(grp[0]) + 1
            else:
                sc.put(58, grp[1])
        for i, grp in enumerate(pk_stores()[sum(ns[:st]):sum(ns[:st + 1])]):
            g = 2 + (i * 60) // ns[st]
            for x in grp[:-1]:
                sc.put(g, x)
            sc.put(g + 1, grp[-1])
        if st == 5:
            for x in [f's_add_u32 s8, s4, {VF + 16384}', 's_addc_u32 s9, s5, 0', 's_sub_u32 s10, s6, 16384']:
                sc.put(2, x)
            if role:
                for x in ['s_lshl_b32 s61, s56, 2', 'v_mov_b32 v3, s61', 'global_load_dword v2, v3, s[52:53] sc1 ; tag=poll']:
                    sc.put(4, x)
        if st < 6:
            sc.put(BARG2, f'VMWAIT w{st + 1} x{st + 1}' + (' x6' if st == 4 else '') + (' poll' if st == 5 else ''))
            if st == 5 and role:
                sc.put(BARG2, 'v_readfirstlane_b32 s61, v2'); sc.put(BARG2, 's_cmp_lt_u32 s61, 4')
                sc.put(BARG2, f's_cbranch_scc1 {N}_chk'); sc.put(BARG2, f'{N}_chkr:')
                rare.extend([f'{N}_chk:'] + spin_code(N + '_q', 'v2', 'v3', 4) + [f's_branch {N}_chkr'])
            sc.put(BARG2, 's_barrier')
            xr = x_reads(st + 1) if st < 5 else []
            if st == 4:
                xr += x_reads(6)
            for i, x in enumerate(xr):
                sc.put(BARG2 + 1 + i, x)
        L += interleave(sp, sc.slots)
        L += SA(3 + st)
    a(f's_mov_b32 s61, {f32bits(LOG2E / 16)}')
    L += ['v_lshlrev_b32 v16, 4, v1', 'v_add_u32 v17, 0x10000, v16', 'v_add_u32 v58, 14336, v16',
          'v_lshrrev_b32 v2, 4, v1', 'v_lshlrev_b32 v2, 2, v2', 'v_and_b32 v3, 15, v1', 'v_sub_u32 v20, v2, v3',
          f's_mov_b32 s22, {TH}', 's_lshl_b32 s24, s20, 5', 's_mov_b32 s19, 1', 's_mov_b32 s26, 32768']
    for s in range(8):
        for aa in range(2):
            src = [QACC(2 * s + e // 4, aa) + e % 4 for e in range(8)]
            L += [f'v_mul_f32 v{r}, s61, v{r}' for r in src]
            L += [f'v_cvt_pk_bf16_f32 v{Q(aa, s) + d}, v{src[2 * d]}, v{src[2 * d + 1]}' for d in range(4)]
    L += SA(10)
    a('VMWAIT k0')
    a('s_barrier')
    L += SA(11)
    L = [x.replace('s_add_u32 s16, s16, s26', 's_add_u32 s16, s16, 32768') for x in L]
    return L, rare


def qproj_tail(N):
    L, rare = [], []
    a = L.append
    sc = Sched(64)
    for f in range(32):
        sc.put(max(rgap(f), -1), kread(0, f))
    put_group(sc, dma_phys(0, KS(1), 'k1'), 1, 3)
    put_group(sc, dma_phys(1, 2, 'v0'), 26, 4)
    fl = [f'v_accvgpr_write_b32 a{r}, 0' for r in range(128)]
    fl += ['s_lshl_b32 s44, s56, 2', 's_add_u32 s44, s44, 64', 'v_mov_b32 v60, s44']
    fl += ['s_lshl_b32 s44, s41, 3', 's_lshl_b32 s45, s20, 1', 's_add_u32 s44, s44, s45',
           's_lshl_b32 s46, s56, 7', 's_add_u32 s46, s46, s44', 's_mul_i32 s46, s46, 14336', f's_add_u32 s46, s46, {PART}',
           f's_mul_i32 s47, s56, {256 * 896}', 's_add_u32 s48, s48, s47', 's_addc_u32 s49, s49, 0',
           'v_lshrrev_b32 v2, 3, v1', 's_lshl_b32 s47, s20, 6', 'v_add_u32 v2, s47, v2', 'v_mul_u32_u24 v2, 896, v2',
           'v_lshrrev_b32 v3, 4, v1', 'v_lshlrev_b32 v4, 1, v3', 'v_and_b32 v5, 7, v1', 'v_xor_b32 v4, v4, v5',
           'v_lshl_add_u32 v160, v4, 4, v2',
           'v_bfe_u32 v4, v1, 2, 2', 'v_lshl_add_u32 v5, v3, 2, v4', 'v_lshrrev_b32 v6, 1, v5', 'v_and_b32 v6, 3, v6',
           'v_lshlrev_b32 v5, 7, v5', 'v_lshl_add_u32 v5, v6, 5, v5', 'v_and_b32 v6, 3, v1', 'v_lshl_add_u32 v161, v6, 3, v5']
    fl += [f'v_xor_b32 v{161 + j}, {32 * j}, v161' for j in range(1, 4)] + [f'v_add_u32 v{165 + j}, 0x10000, v{161 + j}' for j in range(4)]
    fl = [('SADD', 's_add_u32 s48, s48, s47', 's_addc_u32 s49, s49, 0') if x == 's_add_u32 s48, s48, s47' else x for x in fl if x != 's_addc_u32 s49, s49, 0']
    for i, x in enumerate(fl):
        g = (i * 62) // len(fl)
        if isinstance(x, tuple):
            sc.put(g, x[1]); sc.put(g, x[2])
        else:
            sc.put(g, x)
    L += interleave(qk_mfmas(0, True), sc.slots)
    a('s_barrier')
    a('s_cmp_lg_u32 s21, 0')
    a(f's_cbranch_scc1 {N}_nomask0')
    L += switch_code() + mask_code(0)
    a(f'{N}_nomask0:')
    L += flat_group(dma_phys(0, KS(0), 'k2'))
    a('s_nop 7')
    L += max_items(0) + r1_code(0, True)
    for k, x in softmax_items(0)[:NP1]:
        a(x)
        if k == 'e':
            a('s_nop 0')
    a('s_waitcnt vmcnt(16)')
    a('s_barrier')
    L += ['s_cmp_eq_u32 s20, 0', f's_cbranch_scc1 {N}_sig2', f'{N}_sig2r:']
    rare.extend([f'{N}_sig2:', 's_cmp_ge_u32 s55, 24', f's_cbranch_scc1 {N}_sig2r'] + signal_code('s3') + [f's_branch {N}_sig2r'])
    L += [kread(1, f) for f in range(32) if rgap(f) < 0]
    return L, rare


def pre_issue(full):
    L = ['s_waitcnt lgkmcnt(0)', f's_load_dwordx2 s[68:69], s[0:1], {B_X}', f's_load_dwordx2 s[48:49], s[0:1], {B_WO}']
    if full:
        L += [f's_load_dwordx2 s[8:9], s[0:1], {B_WQ}', 's_mov_b32 s33, 8192', 's_mov_b32 s34, 64', 's_lshl_b32 s17, s56, 9'] + voff_w()[:-1]
    L += ['s_lshl_b32 s18, s20, 13', 's_lshr_b32 s41, s55, 1', 's_sub_u32 s41, 15, s41', f's_mul_i32 s61, s41, {128 * 896}',
          f's_mov_b32 s70, {192 * 896}', 's_lshl_b32 s25, s20, 12', 's_add_u32 s25, s25, 32768', f's_mov_b32 s65, {64 * 896}',
          'v_lshrrev_b32 v2, 3, v1', 's_lshl_b32 s64, s20, 5', 'v_add_u32 v2, s64, v2', 'v_mul_u32_u24 v2, 896, v2',
          'v_and_b32 v3, 7, v1', 'v_lshrrev_b32 v4, 4, v1', 'v_xor_b32 v3, v3, v4', 'v_lshlrev_b32 v3, 4, v3', 'v_xor_b32 v4, 64, v3',
          f'v_add_u32 v{XV[0]}, v2, v3', 'v_add_u32 v4, v2, v4', f'v_add_u32 v{XV[1]}, {8 * 896 - 1024}, v4',
          f'v_add_u32 v{XV[2]}, {16 * 896 - 2048}, v{XV[0]}', f'v_add_u32 v{XV[3]}, {24 * 896 - 3072}, v4',
          's_waitcnt vmcnt(0) lgkmcnt(0)' if False else 's_waitcnt lgkmcnt(0)', 's_add_u32 s68, s68, s61', 's_addc_u32 s69, s69, 0',
          f's_sub_u32 s68, s68, {64 * 896}', 's_subb_u32 s69, s69, 0']
    if full:
        L += ['s_add_u32 s8, s8, s17', 's_addc_u32 s9, s9, 0', f's_sub_u32 s10, {448 * 8192}, s17']
        L += flat_group(dma_wq(QSLOT[0], 'w0')) + flat_group(dma_wq(QSLOT[1], 'w1'))
    L += flat_group(dma_x(0)) + flat_group(dma_x(1)) + flat_group(dma_wq(QSLOT[2], 'w2'))
    return L


def gen(dma_gap=5, stamps=False, pfd=3):
    gemm1.STMOD = WT + ' ; tag=st'
    global STAMPS
    STAMPS = stamps
    N = NAME
    P_ = []
    a = P_.append
    a('s_cmp_ge_u32 s2, 256')
    a(f's_cbranch_scc1 {N}_exit')
    if stamps:
        P_ += stamp_begin()
    a(f's_load_dwordx4 s[44:47], s[0:1], {B_X}')
    a(f's_load_dwordx4 s[48:51], s[0:1], {B_WQ}')
    a(f's_load_dwordx2 s[52:53], s[0:1], {B_WUV}')
    a(f's_load_dwordx4 s[40:43], s[0:1], {A_X}')
    a(f's_load_dwordx2 s[12:13], s[0:1], {WS}')
    a('v_lshrrev_b32 v2, 6, v0')
    a('v_and_b32 v1, 63, v0')
    a('s_mov_b32 s7, 0x20000')
    a('v_readfirstlane_b32 s20, v2')
    a('s_mov_b32 s11, 0x20000'); a('s_mov_b32 s15, 0x20000'); a('s_mov_b32 s71, 0x20000')
    a(f's_mov_b32 s14, {PART_END}')
    a('s_and_b32 s54, s2, 7'); a('s_lshr_b32 s55, s2, 3')
    a('s_and_b32 s56, s55, 1'); a('s_lshl_b32 s57, s54, 1'); a('s_add_u32 s56, s56, s57')
    a('s_lshl_b32 s24, s20, 13'); a('s_add_u32 s25, s24, 65536')
    a('s_lshr_b32 s66, s20, 1'); a('s_and_b32 s67, s20, 1')
    a('s_mov_b32 s32, 2048'); a('s_mov_b32 s33, 8192'); a('s_mov_b32 s34, 64')
    vx, vw = voff_x(), voff_w()
    P_ += vx[:-1] + vw[:-1]
    a('s_waitcnt lgkmcnt(0)')
    P_ += dec_kv_x() + dec_kv_w() + vx[-1:] + vw[-1:]
    a(f's_load_dwordx2 s[52:53], s[0:1], {DBG}')
    d0 = dmas(0)
    for pre, x in d0[8:] + d0[:8]:
        for y in pre:
            a(y); a('s_nop 0')
        a(x)
    a('s_add_u32 s18, s18, 128'); a('s_add_u32 s19, s19, s23')
    a('s_and_b32 s76, s55, 3'); a('s_lshl_b32 s76, s76, 6')
    P_ += pf_setup(N, 'pf0', 's32', 's33', ('s4', 's5'), ('s8', 's9'), 's16', 's17', 's3', 's76', '31')
    a('s_mov_b32 s72, s73')
    for d in range(pfd + 1):
        a(PFI); a('s_add_u32 s72, s72, s73')
    P_ += epi_kv(N, 'e0')
    a('v_lshrrev_b32 v4, 4, v1')
    a('v_and_b32 v2, 15, v1'); a('v_lshrrev_b32 v3, 1, v2'); a('v_xor_b32 v3, v3, v4'); a('v_lshlrev_b32 v3, 4, v3')
    a('v_lshl_add_u32 v3, v2, 7, v3'); a('s_lshl_b32 s61, s66, 14'); a('v_add_u32 v32, s61, v3'); a('v_xor_b32 v33, 64, v32')
    a('v_lshrrev_b32 v3, 2, v2'); a('v_lshl_add_u32 v5, v4, 3, v3'); a('v_lshlrev_b32 v5, 9, v5'); a('v_and_b32 v6, 1, v4')
    a('v_lshl_add_u32 v6, v6, 2, v3'); a('v_lshl_add_u32 v5, v6, 5, v5'); a('v_and_b32 v6, 3, v1'); a('v_lshl_add_u32 v5, v6, 3, v5')
    a('s_lshl_b32 s61, s67, 8'); a('s_add_u32 s61, s61, 65536'); a('v_add_u32 v34, s61, v5')
    for j in range(1, 8):
        a(f'v_xor_b32 v{34 + j}, {32 * j}, v34')
    a('s_mov_b32 s38, 17'); a('s_mov_b32 s35, 0'); a('s_mov_b32 s78, 1.0'); a('v_mov_b32 v43, -1')
    a('s_mov_b32 s39, 16'); a(f's_mov_b32 s88, {16 - (pfd - 1)}'); a(f's_mov_b32 s74, {23 - (pfd - 1)}')
    a('s_cmp_ge_u32 s55, 26'); a(f's_cbranch_scc1 {N}_jobA')
    a('s_mov_b32 s22, 18'); a('s_mov_b32 s89, 0')
    a('s_lshr_b32 s57, s55, 1'); a('s_sub_u32 s64, 15, s57'); a('s_and_b32 s57, s57, 7')
    a('s_mov_b32 s76, 0'); a('s_mov_b32 s77, 63')
    a(f's_mul_i32 s61, s64, {128 * 896}')
    a('s_add_u32 s40, s44, s61'); a('s_addc_u32 s41, s45, 0'); a(f's_mov_b32 s42, {128 * 896}')
    a('s_lshl_b32 s61, s56, 9')
    a('s_add_u32 s44, s48, s61'); a('s_addc_u32 s45, s49, 0'); a(f's_sub_u32 s48, {448 * 8192}, s61')
    a('s_mov_b32 s43, 8192'); a('s_mov_b32 s49, 64')
    a('s_lshl_b32 s3, s56, 2'); a('s_add_u32 s61, s3, 64'); a('s_cmp_lt_u32 s55, 24'); a('s_cselect_b32 s3, s61, s3')
    a(f's_branch {N}_dec_done')
    a(f'{N}_jobA:')
    a('s_mov_b32 s22, 23'); a('s_mov_b32 s89, 1'); a('s_mov_b32 s3, 128')
    a('s_mov_b32 s57, s54')
    a('s_sub_u32 s64, s55, 26')
    a('s_and_b32 s76, s64, 3'); a('s_lshl_b32 s76, s76, 6'); a('s_mov_b32 s77, 31')
    a('s_mul_i32 s61, s64, 448')
    a('s_add_u32 s44, s42, s61'); a('s_addc_u32 s45, s43, 0'); a(f's_sub_u32 s48, {448 * 2688}, s61')
    a(f's_mul_i32 s61, s57, {256 * 896}')
    a('s_add_u32 s40, s40, s61'); a('s_addc_u32 s41, s41, 0'); a(f's_sub_u32 s42, {2048 * 896}, s61')
    a('s_mov_b32 s43, 2688'); a('s_mov_b32 s49, 56')
    a('s_lshl_b32 s58, s64, 20'); a(f's_add_u32 s58, s58, {QA}'); a('s_lshl_b32 s61, s57, 14'); a('s_add_u32 s58, s58, s61')
    a('s_lshl_b32 s61, s66, 13'); a('s_add_u32 s58, s58, s61'); a('s_lshl_b32 s61, s67, 19'); a('s_add_u32 s58, s58, s61')
    a('s_mov_b32 s35, 1'); a('s_mov_b32 s60, 256')
    a('s_mov_b32 s63, 1'); a('s_mov_b32 s59, 131072'); a('s_mov_b32 s62, 2048')
    a('s_cmp_ge_u32 s64, 4'); a(f's_cbranch_scc1 {N}_dec_done')
    a('s_mov_b32 s63, 0'); a('s_mov_b32 s59, 2048'); a('s_mov_b32 s62, 131072')
    a(f's_mov_b32 s78, {f32bits(LOG2E * 28 ** -0.5)}')
    a('s_cmp_lt_u32 s64, 2'); a(f's_cbranch_scc1 {N}_dec_done')
    a('s_mov_b32 s78, 1.0'); a('s_mov_b32 s35, 2'); a('s_mov_b32 s60, 128')
    a(f'{N}_dec_done:')
    a('s_mov_b32 s50, 896')
    if stamps:
        P_ += stamp_init()
    a(f's_waitcnt vmcnt({pfd + 1}) lgkmcnt(0)')
    a('s_barrier')
    P_ += reads(0, 0, 0)
    a('s_mov_b32 s21, 2')
    a('s_cmp_eq_u32 s37, 0')
    a(f's_cbranch_scc0 {N}_t1_entry')
    a(f's_branch {N}_t0_entry')
    out = list(P_)

    def sw(lab):
        return (['s_cmp_eq_u32 s21, 18', f's_cbranch_scc1 {lab}_sig',
                 's_mov_b32 s4, s40', 's_mov_b32 s5, s41', 's_mov_b32 s32, 896',
                 's_mov_b32 s8, s44', 's_mov_b32 s9, s45', 's_mov_b32 s17, s48', 's_mov_b32 s33, s43', 's_mov_b32 s34, s49',
                 's_mul_i32 s16, s42, s89', 's_mov_b32 s39, 18'] + voff_x() + voff_w() + [f's_branch {lab}_end',
                 f'{lab}_sig:', 's_cmp_eq_u32 s20, 0', f's_cbranch_scc0 {lab}_end', 's_lshl_b32 s61, s56, 2'] + signal_code('s61') +
                [f'{lab}_end:'])

    def pfsw(lab):
        return pf_setup(N, lab, 's50', 's43', ('s40', 's41'), ('s44', 's45'), 's42', 's48', 's57', 's76', 's77') + ['s_mul_i32 s72, s73, 3'] + [PFI, 's_add_u32 s72, s72, s73'] * 4 + ['s_mov_b32 s72, 0']
    nx = ['s_mov_b32 s26, s58', 's_mov_b32 s27, s59', 's_mov_b32 s28, s60', 's_mov_b32 s29, s62', 's_mov_b32 s37, s63',
          's_mov_b32 s79, 1', 's_mov_b32 s38, 24', 's_add_u32 s21, s21, 1',
          'v_lshrrev_b32 v4, 4, v1', 'v_and_b32 v2, 15, v1',
          'v_lshlrev_b32 v42, 9, v4', 'v_lshl_add_u32 v42, v2, 4, v42',
          's_cmp_eq_u32 s35, 1', f's_cbranch_scc1 {N}_lm1',
          'v_and_b32 v5, 8, v1', 'v_lshl_add_u32 v42, v5, 4, v42',
          f'{N}_lm1:', 'v_mov_b32 v44, 0', 's_cmp_eq_u32 s37, 0', 's_cselect_b32 s61, 48, 12', 'v_mov_b32 v5, v2',
          f's_cbranch_scc0 {N}_lm2', 'v_mov_b32 v5, v1',
          f'{N}_lm2:', 'v_cmp_gt_u32 vcc, s61, v5', 'v_mov_b32 v6, 0x3f803f80', 's_nop 0', 'v_cndmask_b32 v43, 0, -1, vcc',
          'v_cmp_eq_u32 vcc, 12, v2', 's_nop 1', 'v_cndmask_b32 v44, v44, v6, vcc',
          's_cmp_eq_u32 s37, 0', f's_cbranch_scc0 {N}_t1_bz', f's_branch {N}_t0_bz']
    can = ['x0'] * 4 + ['x1'] * 4 + ['w2'] * 8
    QH, vmh = fix_vm(qproj_head(N), can)
    QH, pendh = add_waits(QH, [])
    QR, qrare = [], []
    for role in (0, 1):
        r, rr = qproj_role(N, role)
        r, _ = fix_vm(r, vmh)
        r, _ = add_waits(r, pendh)
        QR.append(r)
        qrare += rr
    QT, rr = qproj_tail(N)
    QT, pend = add_waits(QT, [])
    qrare += rr
    qp = QH + QR[0] + QT
    vm_in = ['w0'] * 8 + ['x'] * 6 + ['w1'] * 8 + ['x'] * 5
    QPres = None
    dm = {('v', 45)}
    for vt in (0, 1):
        tag = f'{N}_t{vt}'
        A0, B0, _ = half_loop(vt, 0, tag, dma_gap)
        A1, B1, Bz = half_loop(vt, 1, tag, dma_gap)
        fill = {}
        for n, x in enumerate(reads(1, 0, 1)):
            fill.setdefault(2 + 2 * n, []).append(x)
        for n, (pre, x) in enumerate(dmas(1)):
            g = 1 + 2 * ((n * 3) // 2)
            for y in pre:
                fill.setdefault(g - 1, []).append(y)
            fill.setdefault(g, []).append(x)
        fill.setdefault(60, []).extend(['s_add_u32 s18, s18, 128', 's_add_u32 s19, s19, s23', PFI])
        Bent = ['s_waitcnt lgkmcnt(0)'] + interleave(mfmas(vt, 0, True), fill)
        out += ['.p2align 6', f'{tag}_entry:'] + Bent + [f'{tag}_loop:'] + A0 + B0 + A1 + B1 + [f's_branch {tag}_loop']
        out += [f'{tag}_bz:'] + Bz + [f's_branch {tag}_loop']
        st0 = SA(0)
        p_i, vm1 = fix_vm(['s_add_u32 s19, s19, s23'] + pre_issue(False), ['w1'] * 8 + ['x'] * 5)
        e_p = gemm1.epilogue(vt, False, False)[:-1]
        p_f, vm2 = fix_vm(pre_issue(True), ['x'] * 13)
        k_p, k_f = pack_code(vt, False), pack_code(vt, True)
        for v in (vm1, vm2):
            assert v[-len(can):] == can[-len(v):], v
        QPres = qp
        out += [f'{tag}_epi:', 's_cmp_eq_u32 s79, 0', f's_cbranch_scc0 {tag}_epifix'] + st0
        out += ['s_cmp_eq_u32 s89, 0', f's_cbranch_scc0 {tag}_nopre'] + p_i + k_p + [f's_branch {N}_qproj']
        out += [f'{tag}_nopre:', 's_nop 7'] + e_p + [f's_branch {N}_next']
        out += [f'{tag}_epifix:'] + st0 + p_f + k_f + [f's_branch {N}_qproj']
        for p in (0, 1):
            out += [f'{tag}_sw{p}:'] + sw(f'{tag}_s{p}') + [f's_branch {tag}_swret{p}']
        for p in ('0', '1', 'z'):
            out += [f'{tag}_pfsw{p}:'] + pfsw(f't{vt}pf{p}') + [f's_branch {tag}_pfret{p}']
        G1 = P_ + Bent + A0 + B0 + A1
        assert not check(G1 + ['s_nop 7'] + e_p + nx + Bz + A0 + B0 + A1 + B1 + A0 + p_f + k_f + qp, tag, dummy=dm)
        assert not check(G1 + p_i + k_p + qp, tag + 'b', dummy=dm)
        assert not check(G1 + p_i + k_p + QH + QR[1] + QT, tag + 'c', dummy=dm)
        i = A0.index(f'{tag}_swret0:')
        j = B0.index(f'{tag}_pfret0:')
        assert not check(P_ + Bent + A0[:i] + sw('x') + A0[i:] + B0[:j] + pfsw('x') + B0[j:] + A1, tag + 'sw', dummy=dm)
    out += [f'{N}_next:'] + nx
    its = {}
    for key, p, m in (('i0', 0, 0), ('i1', 1, 0), ('m1', 1, 2), ('m0', 0, 1)):
        L, pe = add_waits(iteration(p, f'{N}_{key}', m), pend)
        assert pe == pend, 'ring not periodic'
        k = L.index('; SPLIT')
        its[key] = (L[:k], L[k + 1:], p)
    T = tail_code()
    st1 = SA(12)
    st2 = SA(14)
    full = lambda k: its[k][0] + its[k][1]
    out += ['.p2align 6', f'{N}_qH:'] + QR[1] + [f's_branch {N}_qT', '.p2align 6', f'{N}_qproj:'] + QH + QR[0] + [f'{N}_qT:'] + QT + st1 + ['s_cmp_eq_u32 s21, 0', f's_cbranch_scc1 {N}_m0']
    out += ['.p2align 6', f'{N}_loop:'] + full('i0') + [f'{N}_i0_end:', 's_cmp_eq_u32 s19, s21', f's_cbranch_scc1 {N}_m1']
    out += full('i1') + [f'{N}_i1_end:', 's_cmp_gt_u32 s19, 5', f's_cbranch_scc1 {N}_loop', 's_cmp_eq_u32 s20, 0', f's_cbranch_scc0 {N}_loop',
                         's_cmp_eq_u32 s19, 5', f's_cbranch_scc1 {N}_l2chk',
                         'global_load_dword v59, v60, s[52:53] sc1',
                         f's_branch {N}_loop', f'{N}_l2chk:'] + spin_code(N + '_l2', 'v59', 'v60', 12) + [f's_branch {N}_loop']
    out += [f'{N}_m1:'] + full('m1') + [f'{N}_m1_end:', f'{N}_m0:'] + full('m0') + [f'{N}_m0_end:'] + SA(13) + T + st2
    rare = list(qrare)
    for key, (h, r, p) in its.items():
        rare += [f'{N}_{key}_r1:'] + r1_code(1 - p) + r + r2_code() + [f's_branch {N}_{key}_end']
        assert not check(QPres + (full('i0') if p else []) + h + r1_code(1 - p) + r + r2_code() + full('i0' if p else 'i1'), N + key + 'rare')
    assert not check(QPres + full('i0') + full('i1') + full('i0') + full('m1') + full('m0') + T, N + 'B')
    cnt = [ACNT.get(15 - r, 0) for r in range(16)]
    start = [sum(cnt[:r]) for r in range(16)]
    assert sum(cnt) == 16
    pc = sum(c << (2 * r) for r, c in enumerate(cnt))
    ps = sum(s << (4 * r) for r, s in enumerate(start) if s < 16)
    AH = ['s_lshr_b32 s57, s55, 1', 's_lshl_b32 s58, s57, 1', f's_lshr_b32 s59, {hex(pc)}, s58', 's_and_b32 s59, s59, 3',
          's_cmp_eq_u32 s59, 0', f's_cbranch_scc1 {N}_end',
          f's_mov_b32 s60, {hex(ps & 0xffffffff)}', f's_mov_b32 s61, {hex(ps >> 32)}', 's_lshl_b32 s58, s57, 2', 's_lshr_b64 s[60:61], s[60:61], s58',
          's_and_b32 s41, s60, 15', 's_mov_b32 s40, s56', 's_mov_b32 s62, 0',
          's_cmp_eq_u32 s20, 0', f's_cbranch_scc0 {N}_a_go',
          'v_mov_b32 v3, 128', f's_mov_b32 s63, {SPIN}', f'{N}_aspin:', 'global_load_dword v2, v3, s[52:53] sc1', 's_waitcnt vmcnt(0)', 'v_readfirstlane_b32 s61, v2',
          's_cmp_ge_u32 s61, 48', f's_cbranch_scc1 {N}_aok', 's_sleep 2', 's_sub_u32 s63, s63, 1', 's_cmp_lg_u32 s63, 0', f's_cbranch_scc1 {N}_aspin',
          f'{N}_aok:', f'{N}_a_go:', 's_barrier'] + SA(15) + attna3.setup_common()
    it, arare = attna3.item(N + 'A', False, WT)
    it = [x + LD if x.startswith('buffer_load') else x for x in it]
    it = [x.replace('v_add_u32 v19, s50, v17', 's_add_u32 s50, s50, s62\nv_add_u32 v19, s50, v17') for x in it]
    out += AH + [f'{N}_anext:'] + it + ['s_add_u32 s41, s41, 1', 's_xor_b32 s62, s62, 32768', 's_sub_u32 s59, s59, 1', 's_cmp_lg_u32 s59, 0',
                                       f's_cbranch_scc1 {N}_anext', f'{N}_end:']
    out += (stamp_end(WS, 0) if stamps else []) + ['s_endpgm'] + rare + arare
    out += [f'{N}_exit:', 's_endpgm']
    text = khead(N) + '\n'.join(out) + '\n'
    return dict(name=N, text=text, grid=256, block=256, lds=LDS, vgpr=512, sgpr=102, accum=256)
```

```python
import re

REG_RE = re.compile(r'^(-?)(?:abs\()?([vas])(?:(\d+)|\[(\d+):(\d+)\])\)?$')
TRANS = ('v_exp_f32', 'v_log_f32', 'v_rcp_f32', 'v_rsq_f32', 'v_sqrt_f32', 'v_sin_f32', 'v_cos_f32')


def vr(n, c=1):
    return f'v{n}' if c == 1 else f'v[{n}:{n + c - 1}]'


def ar(n, c=1):
    return f'a{n}' if c == 1 else f'a[{n}:{n + c - 1}]'


def sr(n, c=1):
    return f's{n}' if c == 1 else f's[{n}:{n + c - 1}]'


def R(kind_n, c=1):
    k, n = kind_n
    return f'{k}{n}' if c == 1 else f'{k}[{n}:{n + c - 1}]'


def regs_of(tok):
    tok = tok.strip()
    if tok in ('vcc', 'exec', 'm0', 'scc'):
        return [(tok, 0)]
    if tok in ('vcc_lo', 'vcc_hi'):
        return [('vcc', 0)]
    if tok in ('exec_lo', 'exec_hi'):
        return [('exec', 0)]
    m = REG_RE.match(tok)
    if not m:
        return []
    k = m.group(2)
    if m.group(3) is not None:
        return [(k, int(m.group(3)))]
    return [(k, i) for i in range(int(m.group(4)), int(m.group(5)) + 1)]


class Ins:
    __slots__ = ('text', 'op', 'cls', 'w', 'r', 'srcA', 'srcB', 'srcC', 'passes', 'lds_dma', 'nop', 'wait', 'ops')


def parse(line):
    t = line.split(';')[0].split('//')[0].strip()
    if not t or t.endswith(':') or t.startswith('.'):
        return None
    parts = t.split(None, 1)
    op = parts[0]
    rest = parts[1] if len(parts) > 1 else ''
    ops = [o.strip() for o in rest.split(',')] if rest else []
    mods = ''
    if ops:
        lp = ops[-1].split()
        if lp:
            ops[-1] = lp[0]
            mods = ' '.join(lp[1:])
    I = Ins()
    I.text, I.op, I.w, I.r = t, op, [], []
    I.srcA = I.srcB = I.srcC = []
    I.passes = 0
    I.lds_dma = False
    I.nop = 1
    I.wait = None
    I.ops = ops
    base = op.replace('_e32', '').replace('_e64', '')
    if op.startswith('v_mfma'):
        I.cls = 'mfma'
        I.w = regs_of(ops[0])
        I.srcA, I.srcB, I.srcC = regs_of(ops[1]), regs_of(ops[2]), regs_of(ops[3])
        I.r = I.srcA + I.srcB + I.srcC
        I.passes = 8 if '32x32x16' in op else 4 if '16x16x32' in op else None
        assert I.passes
    elif op.startswith('v_'):
        I.cls = 'valu'
        I.w = regs_of(ops[0])
        srcs = ops[1:]
        if base in ('v_add_co_u32', 'v_addc_co_u32', 'v_sub_co_u32', 'v_subb_co_u32'):
            I.w = I.w + regs_of(ops[1])
            srcs = ops[2:]
        for o in srcs:
            I.r += regs_of(o)
        if base.startswith('v_fmac') or base.startswith('v_dot2c') or base.startswith('v_permlane') or base in ('v_writelane_b32',):
            I.r += regs_of(ops[0])
        if base.startswith('v_permlane'):
            I.w = I.w + regs_of(ops[1])
        if base.startswith('v_cmpx'):
            I.w = I.w + [('exec', 0)]
        if base == 'v_cndmask_b32' and len(ops) == 3:
            I.r += [('vcc', 0)]
    elif op.startswith('ds_'):
        I.cls = 'ds'
        if op.startswith('ds_read') or 'permute' in op or 'swizzle' in op:
            I.w = regs_of(ops[0])
            for o in ops[1:]:
                I.r += regs_of(o)
        else:
            for o in ops:
                I.r += regs_of(o)
    elif op.startswith('buffer_') or op.startswith('global_'):
        I.cls = 'vmem'
        is_lds = (' lds' in (' ' + mods)) or '_lds_' in op
        I.lds_dma = is_lds
        if is_lds:
            for o in ops:
                I.r += regs_of(o)
            I.r += [('m0', 0)]
        elif '_load' in op:
            I.w = regs_of(ops[0])
            for o in ops[1:]:
                I.r += regs_of(o)
        elif op in ('buffer_wbl2', 'buffer_inv'):
            pass
        else:
            for o in ops:
                I.r += regs_of(o)
            if 'atomic' in op and 'sc0' in mods:
                I.w = regs_of(ops[0])
    elif op == 's_waitcnt':
        I.cls = 'wait'
        w = {}
        for m in re.finditer(r'(vmcnt|lgkmcnt|expcnt)\((\d+)\)', rest):
            w[m.group(1)] = int(m.group(2))
        I.wait = w
    elif op == 's_nop':
        I.cls = 'nop'
        I.nop = int(ops[0], 0) + 1
    elif op.startswith('s_load') or op.startswith('s_buffer_load') or op in ('s_memtime', 's_memrealtime') or op.startswith('s_atomic'):
        I.cls = 'smem'
        I.w = regs_of(ops[0])
        for o in ops[1:]:
            I.r += regs_of(o)
    elif op.startswith('s_'):
        I.cls = 'salu'
        if op.startswith('s_cmp') or op.startswith('s_cbranch') or op in ('s_branch', 's_barrier', 's_endpgm', 's_setprio', 's_sleep', 's_bitcmp1_b32', 's_bitcmp0_b32', 's_set_gpr_idx_off'):
            for o in ops:
                I.r += regs_of(o)
        else:
            I.w = regs_of(ops[0]) if op != 's_set_gpr_idx_on' else [('m0', 0)]
            for o in ops[1:]:
                I.r += regs_of(o)
            if 'saveexec' in op:
                I.w = I.w + [('exec', 0)]
    else:
        raise ValueError('unknown op: ' + t)
    return I


def check(lines, name='trace', verbose=True, dummy=()):
    probs = []
    pos = 0
    last_valu_w = {}
    last_trans_w = {}
    last_mfma_w = {}
    last_mfma_c = {}
    last_valu_sw = {}
    last_m0 = -100
    last_exec_valu = -100
    store_data = {}
    vm_q = []
    lg_q = []
    smem_out = False
    RAWD = {4: 8, 8: 12}
    OVL = {4: 6, 8: 10}
    WARC = {4: 3, 8: 7}

    def bad(I, msg):
        probs.append(f'{name}: [{I.text}] {msg}')

    for ln in lines:
        I = parse(ln)
        if I is None:
            continue
        pend = set()
        for q in vm_q:
            pend |= q
        for q in lg_q:
            pend |= q
        for r in I.r + I.w:
            if r in pend and r not in dummy:
                bad(I, f'touches {r} still pending from memory op')
                break
        dist = lambda p: pos - p - 1
        if I.cls == 'mfma':
            for r in I.r:
                if r in last_valu_w and dist(last_valu_w[r]) < 2:
                    bad(I, f'VALU->MFMA {r} dist {dist(last_valu_w[r])} < 2')
            for r in I.srcA + I.srcB:
                if r in last_mfma_w:
                    p, ps, _ = last_mfma_w[r]
                    if dist(p) < RAWD[ps]:
                        bad(I, f'MFMA D->A/B {r} dist {dist(p)} < {RAWD[ps]}')
            for r in I.srcC:
                if r in last_mfma_w:
                    p, ps, dt = last_mfma_w[r]
                    if dt == tuple(I.srcC) and ps == I.passes:
                        continue
                    if dist(p) < OVL[ps]:
                        bad(I, f'MFMA D->C overlap {r} dist {dist(p)} < {OVL[ps]}')
            if tuple(I.w) != tuple(I.srcC):
                for r in I.w:
                    if r in last_mfma_w:
                        p, ps, dt = last_mfma_w[r]
                        if dist(p) < OVL[ps]:
                            bad(I, f'MFMA D->D WAW {r} dist {dist(p)} < {OVL[ps]}')
            if dist(last_exec_valu) < 4:
                bad(I, 'VALU exec write -> MFMA < 4')
        elif I.cls in ('valu', 'ds', 'vmem'):
            for r in I.r + I.w:
                if r in last_mfma_w:
                    p, ps, _ = last_mfma_w[r]
                    if dist(p) < RAWD[ps]:
                        bad(I, f'MFMA D->{I.cls} {r} dist {dist(p)} < {RAWD[ps]}')
            if I.cls == 'valu':
                for r in I.w:
                    if r in last_mfma_c:
                        p, ps = last_mfma_c[r]
                        if dist(p) < WARC[ps]:
                            bad(I, f'MFMA C WAR {r} dist {dist(p)} < {WARC[ps]}')
                    if r in store_data and dist(store_data[r]) < 2:
                        bad(I, f'store data WAR {r}')
                base = I.op.replace('_e32', '').replace('_e64', '')
                if base not in TRANS:
                    for r in I.r:
                        if r in last_trans_w and dist(last_trans_w[r]) < 1:
                            bad(I, f'trans->VALU {r}')
                for r in I.r:
                    if r[0] in ('s', 'vcc') and r in last_valu_sw and dist(last_valu_sw[r]) < 2:
                        bad(I, f'VALU sgpr write -> VALU read {r}')
                if base.startswith('v_permlane') or 'dpp' in I.text or 'row_' in I.text or 'quad_perm' in I.text:
                    for r in I.r:
                        if r in last_valu_w and dist(last_valu_w[r]) < 2:
                            bad(I, f'VALU->permlane/dpp {r}')
                if base in ('v_readfirstlane_b32', 'v_readlane_b32'):
                    for r in I.r:
                        if r in last_valu_w and dist(last_valu_w[r]) < 1:
                            bad(I, f'VALU->readlane {r}')
                    if dist(last_exec_valu) < 4:
                        bad(I, 'exec write -> readlane')
            else:
                for r in I.w:
                    if r in store_data and dist(store_data[r]) < 1:
                        bad(I, f'store data WAR {r}')
            if I.cls == 'vmem':
                for r in I.r:
                    if r[0] == 's' and r in last_valu_sw and dist(last_valu_sw[r]) < 5:
                        bad(I, f'VALU sgpr write -> VMEM {r}')
                if I.lds_dma and dist(last_m0) < 1:
                    bad(I, 'm0 write -> LDS DMA')
        if I.cls == 'mfma':
            for r in I.w:
                last_mfma_w[r] = (pos, I.passes, tuple(I.w))
                last_valu_w.pop(r, None)
            for r in I.srcC:
                last_mfma_c[r] = (pos, I.passes)
        elif I.cls == 'valu':
            base = I.op.replace('_e32', '').replace('_e64', '')
            for r in I.w:
                if r[0] in ('v', 'a'):
                    last_valu_w[r] = pos
                    last_mfma_w.pop(r, None)
                    if base in TRANS:
                        last_trans_w[r] = pos
                    else:
                        last_trans_w.pop(r, None)
                elif r[0] == 'exec':
                    last_exec_valu = pos
                else:
                    last_valu_sw[r] = pos
        elif I.cls == 'ds':
            lg_q.append(set(I.w))
        elif I.cls == 'smem':
            lg_q.append(set(I.w))
            smem_out = True
        elif I.cls == 'vmem':
            vm_q.append(set(I.w))
            if '_store' in I.op and ('x4' in I.op or 'x3' in I.op):
                d = I.ops[0] if I.op.startswith('buffer') else I.ops[1]
                for r in regs_of(d):
                    store_data[r] = pos
        elif I.cls == 'salu':
            if ('m0', 0) in I.w:
                last_m0 = pos
            for r in I.w:
                last_valu_sw.pop(r, None)
        elif I.cls == 'wait':
            if 'vmcnt' in I.wait:
                n = I.wait['vmcnt']
                if len(vm_q) > n:
                    vm_q = vm_q[len(vm_q) - n:] if n else []
            if 'lgkmcnt' in I.wait:
                n = I.wait['lgkmcnt']
                if smem_out and n > 0:
                    pass
                else:
                    if len(lg_q) > n:
                        lg_q = lg_q[len(lg_q) - n:] if n else []
                    if n == 0:
                        smem_out = False
        if len(vm_q) > 63:
            probs.append(f'{name}: vmcnt overflow (>63 outstanding) at [{I.text}]')
            vm_q = vm_q[-63:]
        pos += I.nop
    if verbose:
        for p in probs[:40]:
            print('HAZARD', p)
        if len(probs) > 40:
            print('...', len(probs), 'problems')
    return probs


def interleave(spine, fillers_by_gap):
    out = list(fillers_by_gap.get(-1, []))
    for i, s in enumerate(spine):
        out.append(s)
        out += fillers_by_gap.get(i, [])
    return out


def kd(name, vgpr, sgpr, accum, extra=''):
    return f""".p2align 6
.amdhsa_kernel {name}
  .amdhsa_next_free_vgpr {vgpr}
  .amdhsa_next_free_sgpr {sgpr}
  .amdhsa_accum_offset {accum}
  .amdhsa_group_segment_fixed_size 0
  .amdhsa_kernarg_size 96
  .amdhsa_user_sgpr_count 2
  .amdhsa_user_sgpr_kernarg_segment_ptr 1
  .amdhsa_system_sgpr_workgroup_id_x 1
{extra}.end_amdhsa_kernel
"""


def khead(name):
    return f""".globl {name}
.p2align 8
.type {name},@function
{name}:
"""


def stamp_begin(sb=90):
    return [f's_memrealtime s[{sb}:{sb + 1}]', f's_memtime s[{sb + 2}:{sb + 3}]']


def stamp_mid(n):
    return [f's_memtime s[{80 + 2 * n}:{81 + 2 * n}]']


def stamp_end(wsoff_kernarg, slot_base, sb=90, v=2, idreg='s2'):
    t = sb + 4
    return ['s_memtime s[86:87]', 's_waitcnt vmcnt(0) lgkmcnt(0)', f's_memrealtime s[{t}:{t + 1}]', f's_memtime s[{t + 2}:{t + 3}]',
            f's_load_dwordx2 s[{t + 6}:{t + 7}], s[0:1], {wsoff_kernarg}', 's_waitcnt lgkmcnt(0)',
            f's_sub_u32 s{t + 2}, s{t + 2}, s{sb + 2}',
            f's_sub_u32 s80, s80, s{sb + 2}', f's_sub_u32 s82, s82, s{sb + 2}', f's_sub_u32 s84, s84, s{sb + 2}', f's_sub_u32 s86, s86, s{sb + 2}',
            f'v_mov_b32 v{v}, s{sb}', f'v_mov_b32 v{v + 1}, s{t}', f'v_mov_b32 v{v + 2}, s{t + 2}', f'v_mov_b32 v{v + 3}, 0',
            f'v_mov_b32 v{v + 4}, s80', f'v_mov_b32 v{v + 5}, s82', f'v_mov_b32 v{v + 6}, s84', f'v_mov_b32 v{v + 7}, s86',
            f's_add_u32 s{t + 4}, {idreg}, {slot_base}', f's_lshl_b32 s{t + 4}, s{t + 4}, 5', f's_add_u32 s{t + 4}, s{t + 4}, 0xF000000',
            f'v_mov_b32 v{v + 8}, s{t + 4}',
            'v_cmp_eq_u32 vcc, 0, v0', f's_and_saveexec_b64 s[{t + 4}:{t + 5}], vcc', 's_cbranch_execz 4',
            f'global_store_dwordx4 v{v + 8}, v[{v}:{v + 3}], s[{t + 6}:{t + 7}]',
            f'global_store_dwordx4 v{v + 8}, v[{v + 4}:{v + 7}], s[{t + 6}:{t + 7}] offset:16', 's_waitcnt vmcnt(0)']


def stamp_init():
    return ['s_lshl_b32 s100, s2, 2', 's_add_u32 s100, s100, s20', 's_lshl_b32 s100, s100, 6', 's_lshl_b32 s101, s100, 1', 's_add_u32 s101, s101, 0xF200000', 's_add_u32 s100, s100, 0xF100000']


def stamp_at(k):
    return ['s_memtime s[88:89]' if False else 's_memtime s[84:85]', 's_waitcnt lgkmcnt(0)', 's_sub_u32 s84, s84, s92', 'v_mov_b32 v63, s84', 'v_mov_b32 v62, s100',
            f'global_store_dword v62, v63, s[12:13] offset:{4 * k}']


def stamp_loop(sreg):
    return ['s_memtime s[84:85]', 's_waitcnt lgkmcnt(0)', 's_sub_u32 s84, s84, s92', 'v_mov_b32 v63, s84', f's_lshl_b32 s85, {sreg}, 2',
            's_add_u32 s85, s85, s101', 'v_mov_b32 v62, s85', 'global_store_dword v62, v63, s[12:13]']
```

```python
from asmlib import *
from layout import *
from attna2 import S, P, OO, NEG, TM, expstream, maxes, rescale, MF, TH


def KFr(st, t, u): return 16 * (st % 4) + 8 * t + 4 * u
def VFr(st, t, u): return 64 + 16 * (st % 4) + 8 * t + 4 * u
def QFr(a, u): return 128 + 8 * a + 4 * u


def kloads(j, so='s16'):
    return [f'buffer_load_dwordx4 {ar(KFr(j, t, u), 4)}, v17, s[4:7], {so} offen offset:{t * 2048 + u * 1024}' for t in range(2) for u in range(2)]


def vloads(j, so='s17'):
    return [f'buffer_load_dwordx4 {ar(VFr(j, t, u), 4)}, v17, s[8:11], {so} offen offset:{t * 2048 + u * 1024}' for t in range(2) for u in range(2)]


def qk(b, j, first=False):
    L = []
    for t in range(2):
        for u in range(2):
            for a in range(2):
                d = vr(S(b, t, a), 16)
                c = d if u else ('0' if first else vr(NEG(a), 16))
                L.append(f'{MF} {d}, {ar(KFr(j, t, u), 4)}, {ar(QFr(a, u), 4)}, {c}')
    return L


def pv(j, t, a):
    return [f'{MF} {vr(OO(a), 16)}, {ar(VFr(j, t, u), 4)}, {vr(P(t, a, u), 4)}, {vr(OO(a), 16)}' for u in range(2)]


def add_waits_vm(lines, pend0, coarse=4):
    out, pend = [], list(pend0)
    for ln in lines:
        I = parse(ln)
        if I is not None and I.cls == 'mfma':
            need = -1
            for i, d in enumerate(pend):
                if d[0] & set(I.r):
                    need = i
            if need >= 0:
                g = pend[need][1]
                while need + 1 < len(pend) and pend[need + 1][1] == g:
                    need += 1
                out.append(f's_waitcnt vmcnt({len(pend) - need - 1})')
                pend = pend[need + 1:]
        if I is not None and I.cls == 'vmem':
            pend.append((set(I.w), min(r[1] for r in I.w) // 16 if I.w else -1))
        if I is not None and I.cls == 'wait' and I.wait.get('vmcnt') == 0:
            pend = []
        out.append(ln)
    return out, pend


def unit_iter(j, tag, last=False):
    b = j % 2
    es, done, rest = expstream(b)
    fill = {}
    def add(g, *x): fill.setdefault(g, []).extend(x)
    kl = [] if last else kloads(j + 5)
    vl = [] if last else vloads(j + 4)
    if not last:
        for i, m in enumerate(qk(1 - b, j + 1)):
            add(1 + 5 * i, m)
    pos = (42, 54, done[2] + 2)
    for n, (t, a) in enumerate(((0, 0), (0, 1), (1, 0))):
        m = pv(j, t, a)
        ld = (kl[0:2], kl[2:4], vl[0:2])[n] or [None, None]
        add(pos[n], *[x for x in (m[0], ld[0]) if x])
        add(pos[n] + 6, *[x for x in (m[1], ld[1]) if x])
    if not last:
        add(pos[1] + 6, 's_add_u32 s16, s16, 4096')
    L = interleave(es, fill)
    p1 = pv(j, 1, 1)
    if last:
        return L + ['s_nop 0'] + rest + ['s_nop 1'] + p1, []
    fill = {}
    mx = maxes(1 - b) + ['v_max_f32 v23, v21, v22', 'v_cmp_lt_f32 vcc, s22, v23']
    add(1, rest[0]); add(3, rest[1])
    add(len(mx) - 8, p1[0])
    L += interleave(mx, fill)
    L += [p1[1], vl[2], vl[3], 's_add_u32 s17, s17, 4096', f's_cbranch_vccnz {tag}_rs', f'{tag}_rsret:']
    rare = [f'{tag}_rs:'] + rescale(1 - b) + [f's_branch {tag}_rsret']
    return L, rare


def setup_common():
    return ['v_lshlrev_b32 v17, 4, v1', 's_lshr_b32 s42, s20, 1', 's_and_b32 s43, s20, 1',
            's_mov_b32 s6, 65536', 's_mov_b32 s10, 65536', 's_mov_b32 s7, 0x20000', 's_mov_b32 s11, 0x20000',
            's_lshl_b32 s44, s42, 16',
            's_lshl_b32 s46, s40, 17', 's_add_u32 s47, s46, s44', f's_add_u32 s47, s47, {KA}',
            's_add_u32 s4, s12, s47', 's_addc_u32 s5, s13, 0', f's_add_u32 s8, s4, {VA - KA}', 's_addc_u32 s9, s5, 0',
            f's_mov_b32 s22, {TH}']


def item_loads():
    L = ['s_lshl_b32 s48, s41, 2', 's_lshl_b32 s49, s43, 1', 's_add_u32 s48, s48, s49',
         's_lshl_b32 s49, s48, 11', 's_add_u32 s49, s49, s46', f's_add_u32 s49, s49, {QA}', 's_mov_b32 s16, 0', 's_mov_b32 s17, 0']
    L += [f'buffer_load_dwordx4 {ar(QFr(aa, u), 4)}, v17, s[12:15], s49 offen offset:{aa * 2048 + u * 1024}' for aa in range(2) for u in range(2)]
    L += kloads(0) + ['s_add_u32 s16, s16, 4096']
    for j in range(3):
        L += kloads(j + 1) + ['s_add_u32 s16, s16, 4096'] + vloads(j) + ['s_add_u32 s17, s17, 4096']
    return L


def item(N, stamps=False, STMOD=''):
    Pl = item_loads()
    Pq = []
    a = Pq.append
    for r in range(32):
        a(f'v_mov_b32 v{OO(0) + r}, 0')
    if stamps:
        Pq += stamp_mid(0) + ['s_waitcnt lgkmcnt(0)']
    Pq += qk(0, 0, True)
    Pq += kloads(4) + ['s_add_u32 s16, s16, 4096'] + vloads(3) + ['s_add_u32 s17, s17, 4096']
    a('s_nop 15')
    Pq += maxes(0)
    Pq += rescale(0, True)
    a('s_mov_b32 s19, 0')
    if stamps:
        Pq += stamp_mid(1) + ['s_waitcnt lgkmcnt(0)']
    Pq, pend = add_waits_vm(Pl + Pq, [])
    pend0 = pend
    body, rare = [], []
    for j in range(4):
        L, r = unit_iter(j, f'{N}_u{j}')
        L, pend_n = add_waits_vm(L, pend)
        if j == 2:
            pend2 = pend_n
        pend = pend_n
        body.append(L)
        rare += r
    assert pend == pend0, 'not periodic'
    lastL, _ = add_waits_vm(unit_iter(3, f'{N}_last', last=True)[0], pend2)
    loop = sum(body[:3], []) + ['s_cmp_eq_u32 s19, 3', f's_cbranch_scc1 {N}_tail'] + body[3] + ['s_add_u32 s19, s19, 1', f's_branch {N}_loop']
    T = list(lastL)
    if stamps:
        T += stamp_mid(2)
    T += ['s_mul_i32 s50, s43, 9216', 'v_add_u32 v19, s50, v17', f'v_mov_b32 v{NEG(0) + 1}, v{NEG(1)}',
          's_cmp_eq_u32 s42, 0', f's_cbranch_scc1 {N}_h0']
    W1 = ['s_nop 7'] + [f'ds_write_b128 v19, {vr(OO(0) + 4 * i, 4)} offset:{i * 1024}' for i in range(8)]
    W1 += [f'ds_write_b128 v19, {vr(NEG(0), 4)} offset:8192', 's_waitcnt lgkmcnt(0)', 's_barrier', f's_branch {N}_done']
    H0 = ['v_bfe_u32 v7, v1, 4, 1', 'v_lshlrev_b32 v7, 14, v7', 'v_lshrrev_b32 v8, 5, v1', 'v_lshl_add_u32 v7, v8, 8, v7',
          'v_and_b32 v8, 15, v1', 'v_lshl_add_u32 v7, v8, 4, v7',
          's_lshl_b32 s50, s48, 15', 's_lshl_b32 s51, s40, 10', 's_add_u32 s50, s50, s51', f's_add_u32 s50, s50, {CA}',
          'v_cmp_gt_u32 vcc, 32, v1', 's_barrier']
    H0 += [f'ds_read_b128 {vr(64 + 4 * i, 4)}, v19 offset:{i * 1024}' for i in range(9)]
    H0 += ['s_waitcnt lgkmcnt(0)']
    for aa in range(2):
        o = OO(aa)
        H0 += [f'v_min_f32 v2, v{NEG(0) + aa}, v{96 + aa}', f'v_sub_f32 v3, v2, v{NEG(0) + aa}', f'v_sub_f32 v4, v2, v{96 + aa}',
               'v_exp_f32 v3, v3', 'v_exp_f32 v4, v4', 's_nop 0',
               f'v_mul_f32 v5, v{o + 12}, v3', f'v_fmac_f32 v5, v{64 + 16 * aa + 12}, v4', 'v_mov_b32 v6, v5', 's_nop 1',
               'v_permlane32_swap_b32 v5, v6', 's_nop 1', 'v_rcp_f32 v6, v6', 's_nop 0', 'v_mul_f32 v3, v3, v6', 'v_mul_f32 v4, v4, v6']
        H0 += [f'v_mul_f32 v{o + r}, v{o + r}, v3' for r in range(16)]
        H0 += [f'v_fmac_f32 v{o + r}, v{64 + 16 * aa + r}, v4' for r in range(16)]
        H0 += [f'v_cndmask_b32 v{o + r}, 0, v{o + r}, vcc' for r in range(12, 16)]
        for pc, (ra, rb) in enumerate(((0, 8), (4, 12))):
            d = 128 + 8 * aa + 4 * pc
            H0 += [f'v_cvt_pk_bf16_f32 v{d}, v{o + ra}, v{o + ra + 1}', f'v_cvt_pk_bf16_f32 v{d + 1}, v{o + ra + 2}, v{o + ra + 3}',
                   f'v_cvt_pk_bf16_f32 v{d + 2}, v{o + rb}, v{o + rb + 1}', f'v_cvt_pk_bf16_f32 v{d + 3}, v{o + rb + 2}, v{o + rb + 3}',
                   f'buffer_store_dwordx4 {vr(d, 4)}, v7, s[12:15], s50 offen offset:{512 * pc}{STMOD}']
        H0.append('s_add_u32 s50, s50, 32768')
    out = Pq + ['.p2align 6', f'{N}_loop:'] + loop + [f'{N}_tail:'] + T + W1 + [f'{N}_h0:'] + H0 + [f'{N}_done:']
    tr = Pq + sum(body, []) + sum(body[:3], []) + T
    assert not check(tr + W1, N)
    assert not check(tr + H0, N)
    i = body[0].index(f'{N}_u0_rsret:')
    assert not check(Pq + body[0][:i] + rescale(1) + body[0][i:] + body[1], N + '_rare')
    return out, rare


def gen(stamps, merged):
    N = merged
    H = (stamp_begin() if stamps else []) + [f's_load_dwordx2 s[12:13], s[0:1], {WS}', 'v_and_b32 v1, 63, v0', 'v_lshrrev_b32 v2, 6, v0', 's_nop 0',
         'v_readfirstlane_b32 s20, v2', 's_and_b32 s40, s2, 7', 's_lshr_b32 s41, s2, 3', 's_and_b32 s41, s41, 31', 's_and_b32 s42, s41, 1',
         's_lshl_b32 s40, s40, 1', 's_add_u32 s40, s40, s42', 's_lshr_b32 s41, s41, 1', 's_mov_b32 s15, 0x20000', f's_mov_b32 s14, {PART}',
         's_waitcnt lgkmcnt(0)'] + setup_common()
    it, rare = item(N, stamps)
    return H + it + (stamp_end(WS, 512) if stamps else []) + ['s_endpgm'] + rare
```

```python
from asmlib import *
from layout import *
from attna2 import S, P, OO, NEG, expstream, maxes, rescale, TH
from attna3 import KFr, VFr, QFr, qk, pv, add_waits_vm

LD = ' sc1'


def kloads(j):
    return [f'buffer_load_dwordx4 {ar(KFr(j, t, u), 4)}, v16, s[64:67], s72 offen offset:{t * 2048 + u * 1024}{LD}' for t in range(2) for u in range(2)]


def vloads(j):
    return [f'buffer_load_dwordx4 {ar(VFr(j, t, u), 4)}, v16, s[68:71], s73 offen offset:{t * 2048 + u * 1024}{LD}' for t in range(2) for u in range(2)]


def qloads():
    return [f'buffer_load_dwordx4 {ar(QFr(aa, u), 4)}, v16, s[12:15], s75 offen offset:{aa * 2048 + u * 1024}{LD}' for aa in range(2) for u in range(2)]


KADV, VADV = 's_add_u32 s72, s72, 4096', 's_add_u32 s73, s73, 4096'


def unit_iter(j, tag, last=False):
    b = j % 2
    es, done, rest = expstream(b)
    fill = {}
    def add(g, *x): fill.setdefault(g, []).extend(x)
    kl = qloads() if last else kloads(j + 5)
    vl = [None] * 4 if last else vloads(j + 4)
    if not last:
        for i, m in enumerate(qk(1 - b, j + 1)):
            add(1 + 5 * i, m)
    pos = (42, 54, done[2] + 2)
    for n, (t, a) in enumerate(((0, 0), (0, 1), (1, 0))):
        m = pv(j, t, a)
        ld = (kl[0:2], kl[2:4], vl[0:2])[n]
        add(pos[n], *[x for x in (m[0], ld[0]) if x])
        add(pos[n] + 6, *[x for x in (m[1], ld[1]) if x])
    if not last:
        add(pos[1] + 6, KADV)
    L = interleave(es, fill)
    p1 = pv(j, 1, 1)
    if last:
        return L + ['s_nop 0'] + rest + ['s_nop 1'] + p1, []
    fill = {}
    mx = maxes(1 - b) + ['v_max_f32 v23, v21, v22', 'v_cmp_lt_f32 vcc, s22, v23']
    add(1, rest[0]); add(3, rest[1])
    add(len(mx) - 8, p1[0])
    L += interleave(mx, fill)
    L += [p1[1], vl[2], vl[3], VADV, f's_cbranch_vccnz {tag}_rs', f'{tag}_rsret:']
    return L, [f'{tag}_rs:'] + rescale(1 - b) + [f's_branch {tag}_rsret']


def setup():
    return ['s_lshr_b32 s42, s20, 1', 's_and_b32 s43, s20, 1',
            's_mov_b32 s66, 65536', 's_mov_b32 s70, 65536', 's_mov_b32 s67, 0x20000', 's_mov_b32 s71, 0x20000',
            's_lshl_b32 s44, s42, 16', 's_lshl_b32 s45, s56, 17', 's_add_u32 s47, s45, s44', f's_add_u32 s47, s47, {KA}',
            's_add_u32 s64, s12, s47\ns_addc_u32 s65, s13, 0', f's_add_u32 s68, s64, {VA - KA}\ns_addc_u32 s69, s65, 0',
            's_lshl_b32 s48, s41, 2', 's_lshl_b32 s49, s43, 1', 's_add_u32 s48, s48, s49',
            's_lshl_b32 s75, s48, 11', 's_add_u32 s75, s75, s45', f's_add_u32 s75, s75, {QA}',
            's_add_u32 s48, s48, s42', 's_lshl_b32 s74, s48, 15', 's_lshl_b32 s49, s56, 10', 's_add_u32 s74, s74, s49', f's_add_u32 s74, s74, {CA}',
            's_mov_b32 s72, 0', 's_mov_b32 s73, 0']


def first_loads():
    L = kloads(0) + [KADV]
    for j in range(3):
        L += kloads(j + 1) + [KADV] + vloads(j) + [VADV]
    return L + qloads()


def item(N, STMOD=''):
    ent = [x for x in first_loads() if x.startswith('buffer')]
    _, pend = add_waits_vm(ent, [])
    Pq = [f'v_mov_b32 v{OO(0) + r}, 0' for r in range(32)] + ['s_add_u32 s75, s75, 8192']
    q0 = qk(0, 0, True)
    Pq += q0[:4] + ['s_nop 0'] + q0[4:] + kloads(4) + [KADV] + vloads(3) + [VADV, 's_nop 7']
    Pq += maxes(0) + rescale(0, True)[1:] + ['s_mov_b32 s19, 0']
    units = [unit_iter(j, f'{N}_u{j}') for j in range(4)]
    seq = sum((u[0] for u in units), [])
    _, pend = add_waits_vm(seq + seq, [])
    body = []
    for j in range(4):
        L, pend = add_waits_vm(units[j][0], pend)
        if j == 2:
            pend2 = pend
        body.append(L)
    rare = sum((u[1] for u in units), [])
    lastL, _ = add_waits_vm(unit_iter(3, f'{N}_last', last=True)[0], pend2)
    loop = sum(body[:3], []) + ['s_and_b32 s72, s72, 0xffff', 's_cmp_eq_u32 s19, 3', f's_cbranch_scc1 {N}_tail'] + body[3] + \
        ['s_and_b32 s73, s73, 0xffff', 's_add_u32 s19, s19, 1', f's_branch {N}_loop']
    T = list(lastL)
    T += ['s_xor_b32 s50, s20, 2', 's_mul_i32 s50, s50, 5120', 's_add_u32 s50, s50, s62', 'v_add_u32 v19, s50, v16',
          's_mul_i32 s51, s20, 5120', 's_add_u32 s51, s51, s62', 'v_add_u32 v18, s51, v16',
          'v_bfe_u32 v7, v1, 4, 1', 'v_lshlrev_b32 v7, 14, v7', 'v_lshrrev_b32 v8, 5, v1', 'v_lshl_add_u32 v7, v8, 8, v7',
          'v_and_b32 v8, 15, v1', 'v_lshl_add_u32 v7, v8, 4, v7', 'v_cmp_gt_u32 vcc, 32, v1',
          's_cmp_eq_u32 s42, 0', f's_cbranch_scc1 {N}_h0']
    H = []
    for kh in (1, 0):
        o, so = OO(kh), OO(1 - kh)
        X = [f'ds_write_b128 v19, {vr(so + 4 * i, 4)} offset:{i * 1024}' for i in range(4)]
        X += [f'ds_write_b128 v19, {vr(NEG(1 - kh), 4)} offset:4096', 's_waitcnt lgkmcnt(0)', 's_barrier']
        X += [f'ds_read_b128 {vr(64 + 4 * i, 4)}, v18 offset:{i * 1024}' for i in range(5)]
        X += ['s_waitcnt lgkmcnt(0)',
              f'v_min_f32 v2, v{NEG(kh)}, v80', f'v_sub_f32 v3, v2, v{NEG(kh)}', 'v_sub_f32 v4, v2, v80',
              'v_exp_f32 v3, v3', 'v_exp_f32 v4, v4', 's_nop 0',
              f'v_mul_f32 v5, v{o + 12}, v3', 'v_fmac_f32 v5, v76, v4', 'v_mov_b32 v6, v5', 's_nop 1',
              'v_permlane32_swap_b32 v5, v6', 's_nop 1', 'v_rcp_f32 v6, v6', 's_nop 0', 'v_mul_f32 v3, v3, v6', 'v_mul_f32 v4, v4, v6']
        X += [f'v_mul_f32 v{o + r}, v{o + r}, v3' for r in range(16)]
        X += [f'v_fmac_f32 v{o + r}, v{64 + r}, v4' for r in range(16)]
        X += [f'v_cndmask_b32 v{o + r}, 0, v{o + r}, vcc' for r in range(12, 16)]
        for pc, (ra, rb) in enumerate(((0, 8), (4, 12))):
            d = 128 + 4 * pc
            X += [f'v_cvt_pk_bf16_f32 v{d}, v{o + ra}, v{o + ra + 1}', f'v_cvt_pk_bf16_f32 v{d + 1}, v{o + ra + 2}, v{o + ra + 3}',
                  f'v_cvt_pk_bf16_f32 v{d + 2}, v{o + rb}, v{o + rb + 1}', f'v_cvt_pk_bf16_f32 v{d + 3}, v{o + rb + 2}, v{o + rb + 3}',
                  f'buffer_store_dwordx4 {vr(d, 4)}, v7, s[12:15], s74 offen offset:{512 * pc}{STMOD}']
        H.append(X)
    out = Pq + ['.p2align 6', f'{N}_loop:'] + loop + [f'{N}_tail:'] + T + H[0] + [f's_branch {N}_done', f'{N}_h0:'] + H[1] + \
        [f'{N}_done:', f's_add_u32 s74, s74, {4 * 32768}']
    ent = ent + ['s_waitcnt vmcnt(0)']
    tr = ent + Pq + sum(body, []) + sum(body[:3], []) + T
    assert not check(tr + H[0] + ['s_waitcnt vmcnt(2)'] + Pq, N)
    assert not check(tr + H[1] + ['s_waitcnt vmcnt(2)'] + Pq, N)
    i = body[0].index(f'{N}_u0_rsret:')
    assert not check(ent + Pq + body[0][:i] + rescale(1) + body[0][i:] + body[1], N + '_rare')
    return out, rare
```

```python
from asmlib import *
from layout import *
from attnb import add_waits

MF = 'v_mfma_f32_16x16x32_bf16'
ROWP = 272
HSTR = 128 * 14 * 1024
LD = ' sc1'
SLEEP = 8
OST = ''
FB, FA = FLG, FLG + 2048


def CFr(k, i): return 32 + 16 * k + 4 * i
def WFr(k, j): return 96 + 16 * (k % 2) + 4 * j
def ACC(i, j): return 16 * i + 4 * j


def setup():
    L = [f's_load_dwordx2 s[8:9], s[0:1], {A_WO}', f's_load_dwordx2 s[24:25], s[0:1], {OUT}',
         's_mov_b32 s27, 0x20000', f's_mov_b32 s10, {448 * 896}', f's_mov_b32 s26, {2048 * 1792}', 'v_lshrrev_b32 v3, 4, v1',
         's_lshl_b32 s18, s20, 14', 's_mov_b32 s22, 0x3f80', 's_mov_b32 s23, 0x3f800000',
         'v_lshrrev_b32 v2, 3, v1', 'v_mul_u32_u24 v2, 896, v2', 'v_lshlrev_b32 v4, 1, v3', 'v_and_b32 v5, 7, v1', 'v_xor_b32 v4, v4, v5',
         'v_lshl_add_u32 v24, v4, 4, v2']
    L += [f'v_add_u32 v{24 + i}, {i * (8 * 896 - 1024)}, v24' for i in range(1, 4)]
    L += ['v_bfe_u32 v4, v1, 2, 2', 'v_lshl_add_u32 v5, v3, 2, v4', 'v_lshrrev_b32 v6, 1, v5', 'v_and_b32 v6, 3, v6',
          'v_lshlrev_b32 v5, 7, v5', 'v_lshl_add_u32 v5, v6, 5, v5', 'v_and_b32 v6, 3, v1', 'v_lshl_add_u32 v20, v6, 3, v5']
    L += [f'v_xor_b32 v{20 + j}, {32 * j}, v20' for j in range(1, 4)]
    L += ['v_and_b32 v2, 15, v1', 'v_mul_u32_u24 v2, 1792, v2', 'v_and_b32 v4, 1, v3', 'v_lshl_add_u32 v2, v4, 5, v2',
          'v_lshrrev_b32 v4, 1, v3', 'v_lshl_add_u32 v2, v4, 4, v2', 's_waitcnt lgkmcnt(0)']
    return L


def out_store(accs, off):
    L = [f'v_cvt_pk_bf16_f32 v{192 + e}, v{accs + 2 * e}, v{accs + 2 * e + 1}' for e in range(8)] + ['s_nop 1']
    for f in range(2):
        L += [f'v_permlane16_swap_b32 v{192 + 4 * f}, v{194 + 4 * f}', f'v_permlane16_swap_b32 v{193 + 4 * f}, v{195 + 4 * f}']
    return L + [f'buffer_store_dwordx4 {vr(192 + 4 * f, 4)}, v2, s[24:27], s45 offen offset:{off + 64 * f}{OST}' for f in range(2)]


def wait_flag(lab, off_sreg, spin):
    return ['s_cmp_eq_u32 s20, 0', f's_cbranch_scc0 {lab}_ok',
            f'v_mov_b32 v60, {off_sreg}', f's_mov_b32 s62, {spin}', f'{lab}_spin:', 'global_load_dword v59, v60, s[12:13] sc1', 's_waitcnt vmcnt(0)',
            'v_readfirstlane_b32 s61, v59', 's_cmp_ge_u32 s61, 64', f's_cbranch_scc1 {lab}_ok', f's_sleep {SLEEP}',
            's_sub_u32 s62, s62, 1', 's_cmp_lg_u32 s62, 0', f's_cbranch_scc1 {lab}_spin', f'{lab}_ok:', 's_barrier']


def task_a(N, spin):
    A = []
    a = A.append
    a('s_cmp_ge_u32 s41, 7'); a('s_cselect_b32 s42, 1, 0'); a('s_mul_i32 s43, s42, 7'); a('s_sub_u32 s43, s41, s43')
    a('s_lshl_b32 s44, s43, 7')
    a(f's_mul_i32 s21, s20, {112 * 896}'); a('s_add_u32 s21, s21, s44')
    a('s_barrier')
    for k in range(4):
        a(f's_add_u32 m0, s18, {k * 4096}'); a('s_nop 0')
        for i in range(4):
            a(f'buffer_load_dwordx4 v{24 + i}, s[8:11], s21 offen offset:{i * 1024} lds')
        a(f's_add_u32 s21, s21, {28 * 896}')
    a('s_lshl_b32 s46, s40, 3'); a('s_lshl_b32 s42, s42, 2'); a('s_add_u32 s42, s42, s46'); a('s_add_u32 s42, s42, s20')
    a('s_lshl_b32 s19, s42, 14'); a(f's_add_u32 s19, s19, {CA}')
    a(f's_mul_i32 s45, s42, {16 * 1792}'); a('s_add_u32 s45, s45, s44')
    a('s_lshl_b32 s44, s40, 7'); a(f's_add_u32 s44, s44, {FA}')
    a('s_waitcnt vmcnt(0)')
    A += wait_flag(N + '_fa', 's44', spin)
    for h in range(16):
        a(f'buffer_load_dwordx4 {vr(64 + 4 * h, 4)}, v16, s[12:15], s19 offen offset:{(h % 4) * 1024}{LD}')
        if h % 4 == 3 and h < 15:
            a('s_add_u32 s19, s19, 4096')
    rd = lambda h: [f'ds_read_b64_tr_b16 {ar(16 * h + 4 * j + 2 * u, 2)}, v{20 + j} offset:{h * 4096 + u * 2048}' for j in range(4) for u in range(2)]
    for h in range(16):
        A += rd(h)
    a('s_waitcnt lgkmcnt(0)')
    for h in range(16):
        if h % 2 == 0:
            a(f's_waitcnt vmcnt({14 - h})')
        for j in range(4):
            c = vr(32 + 4 * j, 4)
            a(f'{MF} {c}, {ar(16 * h + 4 * j, 4)}, {vr(64 + 4 * h, 4)}, {"0" if h == 0 else c}')
    a('s_nop 7')
    return A + out_store(32, 0)


def task_b(N, spin):
    B = []
    a = B.append
    a('s_mul_i32 s42, s40, 56'); a('s_lshl_b32 s43, s41, 2'); a('s_add_u32 s42, s42, s43'); a('s_add_u32 s46, s42, s20')
    a('s_lshl_b32 s47, s46, 11'); a(f's_add_u32 s47, s47, {PART}')
    a('s_mul_i32 s42, s46, 9363'); a('s_lshr_b32 s42, s42, 16')
    a('s_mul_i32 s43, s42, 7'); a('s_sub_u32 s43, s46, s43')
    a(f's_mul_i32 s45, s42, {16 * 1792}'); a('s_lshl_b32 s44, s43, 7'); a('s_add_u32 s45, s45, s44')
    a('s_lshl_b32 s44, s40, 7'); a(f's_add_u32 s44, s44, {FB}')
    B += wait_flag(N + '_fb', 's44', spin)
    for h in range(16):
        for f in range(2):
            a(f'buffer_load_dwordx4 {vr(64 + 8 * h + 4 * f, 4)}, v16, s[12:15], s47 offen offset:{f * 1024}{LD}')
        if h < 15:
            a(f's_add_u32 s47, s47, {HSTR}')
    B += [f'v_mov_b32 v{32 + e}, 0' for e in range(16)]
    for h in range(16):
        if h % 2 == 0:
            a(f's_waitcnt vmcnt({2 * (14 - h)})')
        for e in range(8):
            a(f'v_dot2c_f32_bf16 v{32 + 2 * e}, s22, v{64 + 8 * h + e}')
            a(f'v_dot2c_f32_bf16 v{33 + 2 * e}, s23, v{64 + 8 * h + e}')
    a('s_nop 2')
    return B + out_store(32, 896)
```

```python
from asmlib import *
from layout import *
from gemm1 import acc, xf, wf, reads, dmas, MF, PFI
import gemm1

NAME = 'proj_kernel'
LDS = 131072
STMOD = ' sc0 sc1'
LOOPST = False
PF2 = None


def mfmas(vtype, buf, zero=False):
    L = []
    for i in range(8):
        for j in range(8):
            c = R(acc(i, j), 4)
            x, w = R(xf(buf, i), 4), R(wf(buf, j), 4)
            cc = '0' if zero else c
            L.append(f'{MF} {c}, {x}, {w}, {cc}' if vtype else f'{MF} {c}, {w}, {x}, {cc}')
    return L


def half_loop(vtype, p, tag, dma_gap, dma0=1):
    top = [f's_waitcnt vmcnt({2 if PF2 else 1}) lgkmcnt(0)', 's_barrier'] + (stamp_loop('s21') if LOOPST else [])
    fill = {}
    def add(g, x):
        fill.setdefault(g, []).append(x)
    add(-1, 's_cmp_eq_u32 s21, s39')
    add(-1, f's_cbranch_scc1 {tag}_sw{p}')
    add(-1, f'{tag}_swret{p}:')
    add(-1, 's_cmp_lt_u32 s21, s22')
    add(0, 's_cselect_b32 s6, s16, 0')
    add(0, 's_cselect_b32 s10, s17, 0')
    for n, x in enumerate(reads(0, 1 - p, 0)):
        add(2 + 2 * n, x)
    for n, x in enumerate(reads(1, 1 - p, 1)):
        add(64 + 2 + 2 * n, x)
    for n, (pre, x) in enumerate(dmas(p)):
        g = (dma0 + n * dma_gap) | 1
        for y in pre:
            add(g - 1, y)
        add(g, x)
    gl = (dma0 + 15 * dma_gap) | 1
    assert gl + 2 >= 64 and gl + 8 < 128
    add(gl + 1, 's_add_u32 s18, s18, 128')
    add(gl + 1, 's_add_u32 s19, s19, s23')
    add(gl + 2, 's_cmp_eq_u32 s21, s88')
    add(gl + 2, f's_cbranch_scc1 {tag}_pfswLBL')
    add(gl + 2, f'{tag}_pfretLBL:')
    add(gl + 3, 's_cmp_lt_u32 s21, s74')
    add(gl + 3, 's_cselect_b32 s70, s75, 0')
    add(gl + 5, PFI)
    add(gl + 6, 's_add_u32 s72, s72, s73')
    if PF2:
        add(gl + 9, PF2)
        add(gl + 10, 's_add_u32 s86, s86, s87')
    fa = {g: v for g, v in fill.items() if g < 64}
    fb = {g - 64: v for g, v in fill.items() if g >= 64}
    A = top + interleave(mfmas(vtype, 1), fa)
    A += ['s_cmp_eq_u32 s21, s38', f's_cbranch_scc1 {tag}_epi', 's_add_u32 s21, s21, 1']
    B = ['s_waitcnt lgkmcnt(0)'] + interleave(mfmas(vtype, 0), fb)
    Bz = ['s_waitcnt lgkmcnt(0)'] + interleave(mfmas(vtype, 0, True), fb)
    return A, [x.replace('LBL', str(p)) for x in B], [x.replace('LBL', 'z') for x in Bz]


def dec_kv_x():
    return ['s_lshr_b32 s3, s55, 2', 's_sub_u32 s3, 7, s3', 's_lshl_b32 s61, s3, 19',
            's_add_u32 s4, s46, s61', 's_addc_u32 s5, s47, 0', f's_sub_u32 s16, {2048 * 2048}, s61', 's_mov_b32 s32, 2048']


def dec_kv_w():
    return ['s_bitcmp1_b32 s55, 1', 's_cselect_b32 s8, s52, s50', 's_cselect_b32 s9, s53, s51',
            's_lshl_b32 s61, s56, 9', 's_add_u32 s8, s8, s61', 's_addc_u32 s9, s9, 0', f's_sub_u32 s17, {1024 * 8192}, s61',
            's_mov_b32 s33, 8192', 's_mov_b32 s34, 64']


def epi_kv(N, lab):
    return ['s_lshr_b32 s61, s55, 2', 's_sub_u32 s61, 7, s61', 's_lshl_b32 s61, s61, 17', 's_lshl_b32 s26, s56, 20', 's_add_u32 s26, s26, s61',
            's_lshl_b32 s61, s66, 16', 's_add_u32 s26, s26, s61',
            's_mov_b32 s79, 0', 'v_lshlrev_b32 v42, 4, v1',
            's_bitcmp1_b32 s55, 1', f's_cbranch_scc1 {N}_{lab}_v',
            's_mov_b32 s37, 0', 's_mov_b32 s27, 16384', 's_mov_b32 s28, 8192', 's_mov_b32 s29, 1024',
            's_lshl_b32 s61, s67, 12', f's_branch {N}_{lab}_d',
            f'{N}_{lab}_v:', 's_mov_b32 s37, 1', 's_mov_b32 s27, 2048', 's_mov_b32 s28, 1024', 's_mov_b32 s29, 16384',
            f's_add_u32 s26, s26, {VF}', 's_lshl_b32 s61, s67, 13',
            f'{N}_{lab}_d:', 's_add_u32 s26, s26, s61']


def voff_x():
    L = ['v_lshrrev_b32 v2, 3, v1', 's_lshl_b32 s61, s20, 6', 'v_add_u32 v2, s61, v2', 'v_mul_lo_u32 v2, v2, s32',
         'v_and_b32 v3, 7, v1', 'v_lshrrev_b32 v4, 4, v1', 'v_xor_b32 v3, v3, v4', 'v_lshlrev_b32 v3, 4, v3', 'v_xor_b32 v5, 64, v3',
         'v_add_u32 v16, v2, v3', 'v_add_u32 v5, v2, v5', 's_lshl_b32 s61, s32, 3', 's_mov_b32 s64, 0']
    for ii in range(1, 8):
        L += ['s_add_u32 s64, s64, s61', f's_sub_u32 s65, s64, {(ii % 4) * 1024}', f'v_add_u32 v{16 + ii}, s65, v{5 if ii & 1 else 16}']
    return L + ['s_mov_b32 s18, 0', 's_mov_b32 s6, s16']


def voff_w():
    L = ['v_lshrrev_b32 v2, 5, v1', 's_lshl_b32 s61, s20, 4', 'v_add_u32 v3, s61, v2', 'v_mul_lo_u32 v3, v3, s33',
         'v_bfe_u32 v4, v1, 1, 4', 'v_xor_b32 v4, v4, v2', 'v_and_b32 v5, 1, v4', 'v_lshlrev_b32 v5, 5, v5', 'v_and_b32 v6, 1, v1',
         'v_lshl_add_u32 v5, v6, 4, v5', 'v_add_u32 v3, v3, v5', 'v_lshrrev_b32 v4, 1, v4']
    for var in range(4):
        L += [f'v_xor_b32 v5, {var}, v4', 'v_mul_lo_u32 v5, v5, s34', f'v_add_u32 v{6 + var}, v3, v5']
    L += ['s_lshl_b32 s61, s33, 1', 's_mov_b32 s64, 0']
    for ii in range(8):
        var = (ii & 1) + 2 * (ii >> 2)
        if ii:
            L.append('s_add_u32 s64, s64, s61')
        L += [f's_sub_u32 s65, s64, {(ii % 4) * 1024}', f'v_add_u32 v{24 + ii}, s65, v{6 + var}']
    return L + ['s_lshl_b32 s23, s33, 6', 's_mov_b32 s19, 0', 's_mov_b32 s10, s17']


def pf_setup(N, lab, xs, wsr, xb, wb, xsz, wsz, tt, sh0, msk):
    return ['s_and_b32 s61, s20, 1', 's_cmp_ge_u32 s20, 2', f's_cbranch_scc1 {N}_{lab}_w',
            f's_mov_b32 s68, {xb[0]}', f's_mov_b32 s69, {xb[1]}', f's_mov_b32 s75, {xsz}', 's_mov_b32 s73, 128',
            f's_add_u32 s64, {msk}, 1', 's_mul_i32 s64, s64, s61', f's_add_u32 s64, s64, {sh0}',
            f'v_and_b32 v46, {msk}, v1', 'v_add_u32 v46, s64, v46', f'v_mul_lo_u32 v46, v46, {xs}', f's_branch {N}_{lab}_d',
            f'{N}_{lab}_w:',
            f's_mov_b32 s68, {wb[0]}', f's_mov_b32 s69, {wb[1]}', f's_mov_b32 s75, {wsz}', f's_lshl_b32 s73, {wsr}, 6',
            f's_lshl_b32 s64, {tt}, 3', 's_lshl_b32 s61, s61, 2', 's_add_u32 s64, s64, s61',
            'v_bfe_u32 v46, v1, 2, 2', 'v_add_u32 v46, s64, v46', f'v_mul_lo_u32 v46, v46, {wsr}', 'v_and_b32 v2, 3, v1',
            'v_lshl_add_u32 v46, v2, 7, v46',
            f'{N}_{lab}_d:', 's_mov_b32 s70, s75']


def gen(dma_gap=5, stamps=False, pfd=3):
    gemm1.STMOD = STMOD
    N = NAME
    P = []
    a = P.append
    a('s_cmp_ge_u32 s2, 256')
    a(f's_cbranch_scc1 {N}_exit')
    if stamps:
        P += stamp_begin()
    a(f's_load_dwordx4 s[44:47], s[0:1], {B_X}')
    a(f's_load_dwordx4 s[48:51], s[0:1], {B_WQ}')
    a(f's_load_dwordx2 s[52:53], s[0:1], {B_WUV}')
    a(f's_load_dwordx4 s[40:43], s[0:1], {A_X}')
    a(f's_load_dwordx2 s[12:13], s[0:1], {WS}')
    a('v_lshrrev_b32 v2, 6, v0')
    a('v_and_b32 v1, 63, v0')
    a('s_mov_b32 s7, 0x20000')
    a('v_readfirstlane_b32 s20, v2')
    a('s_mov_b32 s11, 0x20000'); a('s_mov_b32 s15, 0x20000'); a('s_mov_b32 s71, 0x20000')
    a(f's_mov_b32 s14, {PART}')
    a('s_and_b32 s54, s2, 7')
    a('s_lshr_b32 s55, s2, 3')
    a('s_and_b32 s56, s55, 1')
    a('s_lshl_b32 s57, s54, 1')
    a('s_add_u32 s56, s56, s57')
    a('s_lshl_b32 s24, s20, 13')
    a('s_add_u32 s25, s24, 65536')
    a('s_lshr_b32 s66, s20, 1')
    a('s_and_b32 s67, s20, 1')
    a('s_mov_b32 s32, 2048'); a('s_mov_b32 s33, 8192'); a('s_mov_b32 s34, 64')
    vx, vw = voff_x(), voff_w()
    P += vx[:-1] + vw[:-1]
    a('s_waitcnt lgkmcnt(0)')
    P += dec_kv_x() + dec_kv_w() + vx[-1:] + vw[-1:]
    d0 = dmas(0)
    for pre, x in d0[8:] + d0[:8]:
        for y in pre:
            a(y); a('s_nop 0')
        a(x)
    a('s_add_u32 s18, s18, 128'); a('s_add_u32 s19, s19, s23')
    a('s_and_b32 s76, s55, 3'); a('s_lshl_b32 s76, s76, 6')
    P += pf_setup(N, 'pf0', 's32', 's33', ('s4', 's5'), ('s8', 's9'), 's16', 's17', 's3', 's76', '31')
    a('s_mov_b32 s72, s73')
    for d in range(pfd + 1):
        a(PFI); a('s_add_u32 s72, s72, s73')
    P += epi_kv(N, 'e0')
    a('v_lshrrev_b32 v4, 4, v1')
    a('v_and_b32 v2, 15, v1'); a('v_lshrrev_b32 v3, 1, v2'); a('v_xor_b32 v3, v3, v4'); a('v_lshlrev_b32 v3, 4, v3')
    a('v_lshl_add_u32 v3, v2, 7, v3'); a('s_lshl_b32 s61, s66, 14'); a('v_add_u32 v32, s61, v3'); a('v_xor_b32 v33, 64, v32')
    a('v_lshrrev_b32 v3, 2, v2'); a('v_lshl_add_u32 v5, v4, 3, v3'); a('v_lshlrev_b32 v5, 9, v5'); a('v_and_b32 v6, 1, v4')
    a('v_lshl_add_u32 v6, v6, 2, v3'); a('v_lshl_add_u32 v5, v6, 5, v5'); a('v_and_b32 v6, 3, v1'); a('v_lshl_add_u32 v5, v6, 3, v5')
    a('s_lshl_b32 s61, s67, 8'); a('s_add_u32 s61, s61, 65536'); a('v_add_u32 v34, s61, v5')
    for j in range(1, 8):
        a(f'v_xor_b32 v{34 + j}, {32 * j}, v34')
    a('s_mov_b32 s38, 17'); a('s_mov_b32 s35, 0'); a('s_mov_b32 s78, 1.0'); a('v_mov_b32 v43, -1')
    a('s_mov_b32 s22, 16'); a('s_mov_b32 s39, -1'); a('s_mov_b32 s88, -1'); a('s_mov_b32 s89, 0'); a(f's_mov_b32 s74, {16 - (pfd - 1)}')
    a('s_cmp_ge_u32 s55, 22'); a(f's_cbranch_scc1 {N}_dec_done')
    a('s_mov_b32 s22, 23'); a('s_mov_b32 s39, 16'); a(f's_mov_b32 s88, {16 - (pfd - 1)}'); a('s_mov_b32 s89, 1'); a(f's_mov_b32 s74, {23 - (pfd - 1)}')
    a('s_cmp_ge_u32 s55, 16'); a(f's_cbranch_scc1 {N}_jobA')
    a('s_lshr_b32 s57, s55, 1')
    a('s_and_b32 s76, s55, 1'); a('s_lshl_b32 s76, s76, 7'); a('s_mov_b32 s77, 63')
    a(f's_mul_i32 s61, s57, {256 * 896}')
    a('s_add_u32 s40, s44, s61'); a('s_addc_u32 s41, s45, 0'); a(f's_sub_u32 s42, {2048 * 896}, s61')
    a('s_lshl_b32 s61, s56, 9')
    a('s_add_u32 s44, s48, s61'); a('s_addc_u32 s45, s49, 0'); a(f's_sub_u32 s48, {448 * 8192}, s61')
    a('s_mov_b32 s43, 8192'); a('s_mov_b32 s49, 64')
    a('s_lshl_b32 s61, s57, 17'); a('s_lshl_b32 s58, s56, 20'); a('s_add_u32 s58, s58, s61'); a(f's_add_u32 s58, s58, {QF}')
    a('s_lshl_b32 s61, s66, 16'); a('s_add_u32 s58, s58, s61'); a('s_lshl_b32 s61, s67, 12'); a('s_add_u32 s58, s58, s61')
    a(f's_mov_b32 s78, {f32bits(LOG2E / 16)}')
    a('s_mov_b32 s63, 0'); a('s_mov_b32 s59, 16384'); a('s_mov_b32 s60, 8192'); a('s_mov_b32 s62, 1024')
    a(f's_branch {N}_dec_done')
    a(f'{N}_jobA:')
    a('s_mov_b32 s57, s54')
    a('s_sub_u32 s64, s55, 16')
    a('s_and_b32 s76, s64, 3'); a('s_lshl_b32 s76, s76, 6'); a('s_mov_b32 s77, 31')
    a('s_mul_i32 s61, s64, 448')
    a('s_add_u32 s44, s42, s61'); a('s_addc_u32 s45, s43, 0'); a(f's_sub_u32 s48, {448 * 2688}, s61')
    a(f's_mul_i32 s61, s57, {256 * 896}')
    a('s_add_u32 s40, s40, s61'); a('s_addc_u32 s41, s41, 0'); a(f's_sub_u32 s42, {2048 * 896}, s61')
    a('s_mov_b32 s43, 2688'); a('s_mov_b32 s49, 56')
    a('s_lshl_b32 s58, s64, 20'); a(f's_add_u32 s58, s58, {QA}'); a('s_lshl_b32 s61, s57, 14'); a('s_add_u32 s58, s58, s61')
    a('s_lshl_b32 s61, s66, 13'); a('s_add_u32 s58, s58, s61'); a('s_lshl_b32 s61, s67, 19'); a('s_add_u32 s58, s58, s61')
    a('s_mov_b32 s35, 1'); a('s_mov_b32 s60, 256')
    a('s_mov_b32 s63, 1'); a('s_mov_b32 s59, 131072'); a('s_mov_b32 s62, 2048')
    a('s_cmp_ge_u32 s64, 4'); a(f's_cbranch_scc1 {N}_dec_done')
    a('s_mov_b32 s63, 0'); a('s_mov_b32 s59, 2048'); a('s_mov_b32 s62, 131072')
    a(f's_mov_b32 s78, {f32bits(LOG2E * 28 ** -0.5)}')
    a('s_cmp_lt_u32 s64, 2'); a(f's_cbranch_scc1 {N}_dec_done')
    a('s_mov_b32 s78, 1.0'); a('s_mov_b32 s35, 2'); a('s_mov_b32 s60, 128')
    a(f'{N}_dec_done:')
    a('s_mov_b32 s50, 896')
    if stamps:
        P += stamp_mid(0)
    a(f's_waitcnt vmcnt({pfd + 1})')
    a('s_barrier')
    if stamps:
        P += stamp_mid(1)
    P += reads(0, 0, 0)
    a('s_mov_b32 s21, 2')
    a('s_cmp_eq_u32 s37, 0')
    a(f's_cbranch_scc0 {N}_t1_entry')
    a(f's_branch {N}_t0_entry')
    out = list(P)
    sw = ['s_mov_b32 s4, s40', 's_mov_b32 s5, s41', 's_mov_b32 s16, s42', 's_mov_b32 s32, 896',
          's_mov_b32 s8, s44', 's_mov_b32 s9, s45', 's_mov_b32 s17, s48', 's_mov_b32 s33, s43', 's_mov_b32 s34, s49'] + voff_x() + voff_w()
    def pfsw(lab):
        return pf_setup(N, lab, 's50', 's43', ('s40', 's41'), ('s44', 's45'), 's42', 's48', 's57', 's76', 's77') + ['s_mov_b32 s72, 0']
    nx = ['s_mov_b32 s26, s58', 's_mov_b32 s27, s59', 's_mov_b32 s28, s60', 's_mov_b32 s29, s62', 's_mov_b32 s37, s63',
          's_mov_b32 s79, 1', 's_mov_b32 s38, 24', 's_add_u32 s21, s21, 1',
          's_cmp_eq_u32 s35, 0', f's_cbranch_scc1 {N}_lm_done',
          'v_lshrrev_b32 v4, 4, v1', 'v_and_b32 v2, 15, v1',
          'v_lshlrev_b32 v42, 9, v4', 'v_lshl_add_u32 v42, v2, 4, v42',
          's_cmp_eq_u32 s35, 1', f's_cbranch_scc1 {N}_lm1',
          'v_and_b32 v5, 8, v1', 'v_lshl_add_u32 v42, v5, 4, v42',
          f'{N}_lm1:', 'v_mov_b32 v44, 0', 's_cmp_eq_u32 s37, 0', 's_cselect_b32 s61, 48, 12', 'v_mov_b32 v5, v2',
          f's_cbranch_scc0 {N}_lm2', 'v_mov_b32 v5, v1',
          f'{N}_lm2:', 'v_cmp_gt_u32 vcc, s61, v5', 'v_mov_b32 v6, 0x3f803f80', 's_nop 0', 'v_cndmask_b32 v43, 0, -1, vcc',
          'v_cmp_eq_u32 vcc, 12, v2', 's_nop 1', 'v_cndmask_b32 v44, v44, v6, vcc',
          f'{N}_lm_done:', 's_cmp_eq_u32 s37, 0', f's_cbranch_scc0 {N}_t1_bz', f's_branch {N}_t0_bz']
    endc = (stamp_end(WS, 0) if stamps else []) + ['s_endpgm']
    for vt in (0, 1):
        tag = f'{N}_t{vt}'
        A0, B0, _ = half_loop(vt, 0, tag, dma_gap)
        A1, B1, Bz = half_loop(vt, 1, tag, dma_gap)
        fill = {}
        for n, x in enumerate(reads(1, 0, 1)):
            fill.setdefault(2 + 2 * n, []).append(x)
        for n, (pre, x) in enumerate(dmas(1)):
            g = 1 + 2 * ((n * 3) // 2)
            for y in pre:
                fill.setdefault(g - 1, []).append(y)
            fill.setdefault(g, []).append(x)
        fill.setdefault(60, []).extend(['s_add_u32 s18, s18, 128', 's_add_u32 s19, s19, s23', PFI])
        Bent = ['s_waitcnt lgkmcnt(0)'] + interleave(mfmas(vt, 0, True), fill)
        out += ['.p2align 6', f'{tag}_entry:'] + Bent + [f'{tag}_loop:'] + A0 + B0 + A1 + B1 + [f's_branch {tag}_loop']
        out += [f'{tag}_bz:'] + Bz + [f's_branch {tag}_loop']
        out += [f'{tag}_epi:', 's_nop 7', 's_cmp_eq_u32 s79, 0', f's_cbranch_scc0 {tag}_epifix'] + (stamp_mid(2) if stamps else [])
        epl = gemm1.epilogue(vt, False, False)[:-1]
        efx = gemm1.epilogue(vt, True, False)[:-1]
        out += epl + ['s_cmp_eq_u32 s89, 0', f's_cbranch_scc0 {N}_next'] + endc + [f'{tag}_epifix:'] + efx + endc
        for p in (0, 1):
            out += [f'{tag}_sw{p}:'] + sw + [f's_branch {tag}_swret{p}']
        for p in ('0', '1', 'z'):
            out += [f'{tag}_pfsw{p}:'] + pfsw(f't{vt}pf{p}') + [f's_branch {tag}_pfret{p}']
        dm = {('v', 45)}
        assert not check(P + Bent + A0 + B0 + A1 + ['s_nop 7', 's_cmp_eq_u32 s35, 0'] + epl + nx + Bz + A0 + B0 + A1 + B1 + A0 + ['s_nop 7'] + efx, tag, dummy=dm)
        i = A0.index(f'{tag}_swret0:')
        j = B0.index(f'{tag}_pfret0:')
        assert not check(P + Bent + A0[:i] + sw + A0[i:] + B0[:j] + pfsw('x') + B0[j:] + A1, tag + 'sw', dummy=dm)
    out += [f'{N}_next:'] + nx
    out += [f'{N}_exit:', 's_endpgm']
    text = khead(N) + '\n'.join(out) + '\n'
    return dict(name=N, text=text, grid=256, block=256, lds=LDS, vgpr=448, sgpr=102, accum=256)
```

```python
import re
from asmlib import *
from sched import Plan, resolve_lgw
from layout import *
import gemm1, gemm2, attna4, fin2
from gemm1 import reads, dmas, PFI
from gemm2 import half_loop, dec_kv_x, dec_kv_w, epi_kv, voff_x, voff_w, pf_setup, mfmas
from attnb import (S, P, O, RING, NEGM, Sched, softmax_items, max_items, xreduce, mask_code, r1_code, r2_code, rgap, rgap2,
                   add_waits, CT, OA, MF, TH, BARG, BARG2, D1G, NP1, pv_mfmas)

NAME = 'mega_kernel'
LDS = 163840
WT = ' sc0 sc1'
SPIN = 200000
FUSE = True
TASKS = {15: [('B', 0)], 14: [('B', 1), ('A', 4)], 13: [('B', 2), ('A', 7)], 12: [('B', 3), ('A', 9), ('A', 13)],
         11: [('B', 4), ('A', 14), ('B', 15)], 10: [('A', 5)], 9: [('B', 5), ('A', 0)], 8: [('B', 6), ('A', 2), ('A', 6)],
         7: [('B', 7), ('A', 12), ('B', 13)], 6: [('B', 8), ('A', 3), ('B', 14)], 5: [('A', 11)], 4: [('B', 9), ('A', 1)],
         3: [('B', 10), ('A', 15)], 2: [('B', 11), ('B', 12), ('A', 8)], 1: [], 0: [('A', 10)]}
VERB = True
NZERO = 40
STARTPF = 0
DUTYSW = 3
PROST = False
NSTORE = ((0, 0, 0, 8, 8, 8, 8), (13, 13, 6, 0, 0, 0, 0))
LD = ' sc1'
ACNT = {10: 1, 9: 1, 8: 1, 7: 1, 6: 1, 5: 2, 4: 2, 3: 2, 2: 1, 1: 2, 0: 2}


def Q(a, s): return 192 + 32 * a + 4 * s
def XQ(st, a, ks): return 16 * st + 8 * ks + 4 * a
XV = (14, 15, 59, 61)
PFQ = 'buffer_load_dword v45, v47, s[80:83], s86 offen ; tag=pf'
def QACC(dt, a): return 64 + 8 * dt + 4 * a
KS = lambda slot: 1 - slot
CSLOT = [1, 0, 2, 3, 1, 0, 2]
QSLOT = [2, 3, 0, 2, 3, 0, 2]
XSL = [2, 3, 0, 1, 2, 3, 0]
XOFF = [0, 16384, 98304, 114688]


def kread(slot, f): return f'ds_read_b128 a[{RING(f)}:{RING(f) + 3}], v16 offset:{KS(slot) * 32768 + f * 1024}'
def vread(slot, f): return f'ds_read_b128 a[{RING(f)}:{RING(f) + 3}], v17 offset:{slot * 32768 + f * 1024}'


def qk_mfmas(b, first=False):
    L = []
    for kt in range(4):
        for s in range(8):
            for a in range(2):
                d = vr(S(b, kt, a), 4)
                c = d if s else ('0' if first else vr(NEGM(a), 4))
                L.append(f'{MF} {d}, {ar(RING(kt * 8 + s), 4)}, {vr(Q(a, s), 4)}, {c}')
    return L


def dma_phys(isv, phys, tag=''):
    L = []
    t = f' ; tag={tag}' if tag else ''
    for i in range(8):
        pre = [f's_add_u32 m0, s18, {phys * 32768 + (i // 4) * 4096}'] if i % 4 == 0 else []
        if isv:
            L.append((pre, f'buffer_load_dwordx4 v{56 + i // 4}, s[8:11], s17 offen offset:{(i % 4) * 1024}{LD} lds{t}'))
        else:
            L.append((pre, f'buffer_load_dwordx4 v{48 + i}, s[4:7], s16 offen offset:{(i % 4) * 1024}{LD} lds{t}'))
    return L, ('s_add_u32 s17, s17, 32768' if isv else 's_add_u32 s16, s16, s26')


def dma_wq(phys, tag):
    L = []
    for ii in range(8):
        pre = [f's_add_u32 m0, s18, {phys * 32768 + (ii // 4) * 4096}'] if ii % 4 == 0 else []
        L.append((pre, f'buffer_load_dwordx4 v{24 + ii}, s[8:11], s19 offen offset:{(ii % 4) * 1024} lds ; tag={tag}'))
    return L, 's_add_u32 s19, s19, s23'


def dma_x(st):
    L = []
    for ii in range(4):
        pre = [f's_add_u32 m0, s25, {XOFF[XSL[st]]}'] if ii == 0 else []
        L.append((pre, f'buffer_load_dwordx4 v{XV[ii]}, s[68:71], s65 offen offset:{ii * 1024} lds ; tag=x{st}'))
    return L, 's_add_u32 s65, s65, 128'


def x_reads(st):
    return [f'ds_read_b128 {ar(XQ(st, a, ks), 4)}, v{(43 if XSL[st] >= 2 else 32) + ks} offset:{(XSL[st] % 2) * 16384 + a * 2048}' for ks in range(2) for a in range(2)]


def put_group(sc, grp_adv, g0, gap):
    grp, adv = grp_adv
    g = g0
    for pre, x in grp:
        for y in pre:
            sc.put(g - 1, y)
        sc.put(g, x)
        g += gap
    sc.put(g - gap, adv)


def flat_group(grp_adv):
    grp, adv = grp_adv
    L = []
    for pre, x in grp:
        for y in pre:
            L += [y, 's_nop 0']
        L.append(x)
    return L + [adv]


def switch_code():
    L = ['s_mov_b32 s4, s48', 's_mov_b32 s5, s49', f's_mov_b32 s6, {256 * 896}', 's_mov_b32 s16, 0', 's_mov_b32 s26, 128']
    for i in range(8):
        L.append(f'v_add_u32 v{48 + i}, {i * 8 * 896 - (i % 4) * 1024}, v160')
    return L


def fix_vm(lines, vm0, limit=60):
    vm = list(vm0)
    out = []
    for ln in lines:
        if ln.startswith('VMWAIT'):
            idx = max(max(i for i, t in enumerate(vm) if t == tag) if tag in vm else -1 for tag in ln.split()[1:])
            out.append(f's_waitcnt vmcnt({len(vm) - idx - 1}) lgkmcnt(0)' if idx >= 0 else 's_waitcnt lgkmcnt(0)')
            vm = vm[idx + 1:]
            continue
        I = parse(ln)
        if I is not None and I.cls == 'vmem' and 'v62, v63' not in ln and 'tag=skip' not in ln:
            if len(vm) >= limit:
                out.append('s_waitcnt vmcnt(40)')
                vm = vm[len(vm) - 40:]
            vm.append(ln.split('tag=')[1] if 'tag=' in ln else 'x')
        out.append(ln)
    return out, vm


def signal_code(off, inc=1, base='s[52:53]'):
    return [f'v_mov_b32 v3, {off}', f'v_mov_b32 v2, {inc}', 's_mov_b64 exec, 1', f'global_atomic_add v3, v2, {base} sc1', 's_mov_b64 exec, -1']


def spin_code(lab, vd, va, target, mask=-1):
    return [f's_mov_b32 s62, {SPIN}', f'{lab}spin:', f'v_readfirstlane_b32 s61, {vd}', f's_and_b32 s61, s61, {mask}', f's_cmp_ge_u32 s61, {target}',
            f's_cbranch_scc1 {lab}ok', 's_sleep 4', f'global_load_dword {vd}, {va}, s[52:53] sc1', 's_waitcnt vmcnt(0)',
            's_sub_u32 s62, s62, 1', 's_cmp_lg_u32 s62, 0', f's_cbranch_scc1 {lab}spin', f'{lab}ok:']


D1 = 76
NPAIR1 = 7


def plan_reads(pl, base, cur, nxt, nfirst=9, last_tgt=39, bar=47, n=128):
    prev = None
    for f in range(nfirst, 32):
        hi = base + min(8 * (f // 4) - 5, bar - 5)
        prev = pl.add(cur(f), max(base, base + 2 * (f - 16) + 1), base + ((f - nfirst) * last_tgt) // (31 - nfirst), deps=[prev] if prev else [], hi=hi)
    b = pl.fix('BARRIER', base + bar) if False else None
    if nxt:
        for f in range(nfirst):
            prev = pl.add(nxt(f), base + bar + 1, base + bar + 1 + (f * (62 - bar - 1)) // (nfirst - 1), deps=[prev], hi=base + (58 if f < 4 else 63))
    for k in range(1, 6):
        pl.fix('LGW 8', base + 8 * k - 1, last=True)


NTR = 15
TBAR = 52


def plan_tr(pl, cur, nxt, base=0):
    prev = None
    if cur:
        for n in range(NTR, 64):
            prev = pl.fix(cur[n], base + n - NTR)
        for k in range(1, 7):
            pl.fix('LGW 8', base + 8 * k - 1, last=True)
        if not nxt:
            pl.fix('LGW 8', base + 55, last=True)
    if nxt:
        for n in range(NTR):
            pl.fix(nxt[n], base + TBAR + 1 + (n * (63 - TBAR)) // NTR)


def plan_dma(pl, grp_adv, lo, t0, t1, hi):
    grp, adv = grp_adv
    prev = None
    for i, (pre, x) in enumerate(grp):
        t = t0 + (i * (t1 - t0)) // (len(grp) - 1)
        deps = [prev] if prev else []
        if pre:
            m = pl.add('\n'.join(pre), max(lo - 1, -1), t - 6, deps=deps, sep=0, hi=hi - (len(grp) - i))
            deps = [m]
        prev = pl.add(x, lo, t, deps=deps, hi=hi - (len(grp) - 1 - i))
    pl.add(adv, lo, t1 + 1, deps=[prev], sep=0)


def plan_softmax(pl, b, pairs, lo, t0, t1, hi_add=None, hi_cvt=lambda kg: None):
    it = softmax_items(b)
    pe = pa = None
    n = len(pairs)
    for k, q in enumerate(pairs):
        e0, e1, a0, cv, a1 = [x for _, x in it[5 * q:5 * q + 5]]
        ta = t0 + ((2 * k) * (t1 - t0)) // (2 * n)
        tb = t0 + ((2 * k + 1) * (t1 - t0)) // (2 * n)
        h = hi_cvt(q // 8)
        x0 = pl.add(e0, lo, ta, deps=[pe] if pe else [], hi=None if h is None else h - 2)
        x1 = pe = pl.add(e1, lo, tb, deps=[x0], hi=None if h is None else h - 1)
        y0 = pl.add(a0, lo, ta + 1, deps=[x0] + ([pa] if pa else []), hi=hi_add)
        pa = pl.add(a1, lo, tb + 1, deps=[x1, y0], hi=hi_add)
        pl.add(cv, lo, tb + 1, deps=[x1], hi=h)


def iteration(p, tag, masked):
    pl = Plan(128)
    pl.fix('LGW 8', -1)
    plan_reads(pl, 0, lambda f: kread(1 - p, f), lambda f: vread(p, f))
    plan_reads(pl, 64, lambda f: vread(p, f), lambda f: kread(p, f))
    pl.fix('LGW 8', 63, last=True)
    pl.fix('; PH', 127, last=True)
    for base in (0, 64):
        pl.fix('s_waitcnt vmcnt(16) lgkmcnt(0)\ns_barrier', base + 47)
    mk = []
    if masked:
        mk = [pl.fix('; MASK', 63)]
    plan_dma(pl, dma_phys(1, 2 + (1 - p)), 0, 1, 44, 46)
    plan_dma(pl, dma_phys(0, KS(1 - p)), 65, 66, 108, 110)
    prev = {}
    mx = max_items(1 - p)
    for i, x in enumerate(mx):
        I = parse(x)
        kt = max((r[1] - S(1 - p, 0, 0)) // 8 for r in I.r if r[1] >= 64)
        lo = 64 if masked else 16 * kt + 15 + 5
        acc = I.w[0]
        prev[acc] = pl.add(x, lo, max(lo, 30 + 2 * i), deps=[prev[acc]] if acc in prev else [], sep=1, hi=D1 - 5)
    m = pl.add('v_max_f32 v23, v21, v22', 64, D1 - 4, deps=list(prev.values()), hi=D1 - 4)
    c = pl.add('v_cmp_lt_f32 vcc, s22, v23', 64, D1 - 3, deps=[m], hi=D1 - 3)
    pl.fix(f's_cbranch_vccnz {tag}_r1\n; SPLIT', D1, deps=[c])
    plan_softmax(pl, p, range(NPAIR1, 16), 0, 0, 60, hi_add=D1 - 1, hi_cvt=lambda kg: 61 + 32 * kg)
    plan_softmax(pl, 1 - p, range(NPAIR1), D1 + 1, D1 + 1, 124)
    pl.add('s_add_u32 s19, s19, 1', 80, 112)
    L = interleave(qk_mfmas(1 - p) + pv_mfmas(p), pl.run())
    if masked:
        k = L.index('; MASK')
        L[k:k + 1] = (switch_code() if masked == 2 else []) + mask_code(1 - p)
    elif VERB:
        print('iteration overflow', pl.over, 'instrs', len(L))
    return L


def wread(addr_lo, addr_hi, phys, off, f):
    v = addr_hi if phys >= 2 else addr_lo
    return [f'ds_read_b64_tr_b16 a[{RING(f) + 2 * u}:{RING(f) + 2 * u + 1}], v{v} offset:{(phys % 2) * 32768 + off + u * 2048}' for u in range(2)]


def wo_read(c, f): return wread(161 + f % 4, 165 + f % 4, CSLOT[c], (f // 4) * 4096, f)
def wq_read(st, f): return wread(16 + f % 8, 34 + f % 8, QSLOT[st], (f // 16) * 16384 + ((f % 16) // 8) * 256, f)


def norm_items(s):
    L = []
    for a in range(2):
        t = 4 + 8 * 0
        for h in range(2):
            L += [f'v_accvgpr_read_b32 v{t + 4 * h + e}, a{O(2 * s + h, a) + e}' for e in range(4)]
        L += [f'v_cvt_pk_bf16_f32 v{CT(a, s) + d}, v{t + 2 * d}, v{t + 2 * d + 1}' for d in range(4)]
    return L


def store_items(c):
    b = c % 2
    L = []
    n = 0
    for a in range(2):
        for mp in range(2):
            tb = (4, 8, 12, 28)[n]
            for h in range(2):
                r = OA(b, 2 * mp + h, a)
                L += [f'v_mul_f32 v{r + e}, v{r + e}, v{24 + a}' for e in range(4)]
                L.append(f'v_cvt_pk_bf16_f32 v{tb + 2 * h}, v{r}, v{r + 1}')
                L.append(f'v_cvt_pk_bf16_f32 v{tb + 2 * h + 1}, v{r + 2}, v{r + 3}')
            L.append(f'buffer_store_dwordx4 v[{tb}:{tb + 3}], v{58 if a else 16}, s[12:15], s46 offen offset:{mp * 1024}{WT}')
            n += 1
    L.append('s_add_u32 s46, s46, 2048')
    return L


def tail_code(N, asetup):
    T = ['VMWAIT V', 's_barrier']
    T += [vread(1, f) for f in range(9)]
    items = softmax_items(1)[5 * NPAIR1:]
    ex = [x for k, x in items if k == 'e']
    ot = [x for k, x in items if k != 'e']
    d2 = flat_group(dma_phys(0, CSLOT[2], 'c2'))
    T += d2 + ex[:2]
    for i in range(0, len(ex), 2):
        T += ex[i + 2:i + 4] + (['s_nop 0'] if i + 2 >= len(ex) else []) + ot[3 * (i // 2):3 * (i // 2) + 3]
    wo = lambda c: [x for f in range(32) for x in wo_read(c, f)]
    pl = Plan(64)
    pl.fix('LGW 8', -1)
    plan_reads(pl, 0, lambda f: vread(1, f), None)
    lred = []
    for aa in range(2):
        lred += xreduce(24 + aa, 'v_add_f32') + [f'v_rcp_f32 v{24 + aa}, v{24 + aa}']
    lred = [x for x in lred if not x.startswith('s_nop')]
    ch = pl.chain(lred, 0, 1, 36, sep=2)
    pl.fix('VMWAIT c0\ns_barrier', 47)
    plan_dma(pl, dma_phys(0, CSLOT[3], 'c3'), 48, 48, 62, 63)
    for n in range(NTR):
        pl.fix(wo(0)[n], 48 + n)
    NPRE = 2
    prev = []
    for s in range(NPRE):
        prev = pl.chain(norm_items(s), 41 + 4 * s, 41 + 10 * s, 50 + 11 * s, deps=prev[-1:])
    T.append('s_nop 1')
    T += interleave(pv_mfmas(1), pl.run())
    T.append('s_nop 1')
    for c in range(7):
        pl = Plan(64)
        sp = []
        for f in range(32):
            s, mt = f // 4, f % 4
            for aa in range(2):
                d = vr(OAm(c % 2, mt, aa), 4)
                sp.append(f'{MF} {d}, {ar(RING(f), 4)}, {vr(CT(aa, s), 4)}, {d if s else 0}')
        pl.fix('LGW 8', -1)
        plan_tr(pl, wo(c), wo(c + 1) if c < 6 else None)
        if c == 1:
            pl.fix('v_mov_b32 v60, 64', 46); pl.fix('global_load_dword v59, v60, s[52:53] sc1 ; tag=poll', 49)
        if c == 2:
            pl.fix(f'VMWAIT c3 poll\nv_readfirstlane_b32 s61, v59\ns_cmp_lt_u32 s61, 48\ns_cbranch_scc1 {N}_achk\n{N}_achkr:\ns_barrier', TBAR)
        elif c < 6:
            pl.fix(f'VMWAIT c{c + 1}\ns_barrier', TBAR)
        if c == 3:
            pl.chain(asetup, 0, 0, 60)
        if c in (4, 5):
            fl = attna4.first_loads()
            fl[-1] += ' ; tag=aq'
            per = (len(fl) + 1) // 2
            prev = None
            for i, x in enumerate(fl[(c - 4) * per:(c - 3) * per]):
                g = 1 + (5 * i) // 2
                prev = pl.add(x, g, g, deps=[prev] if prev else [], sep=0, hi=g)
        if 1 <= c <= 3:
            grp, adv = dma_phys(0, CSLOT[c + 3], f'c{c + 3}')
            for i, (pre, x) in enumerate(grp):
                for y in pre:
                    pl.fix(y, 6 * i + 1)
                pl.fix(x, 6 * i + 2)
            pl.fix(adv, 46)
        if c == 0:
            it = [x for s in range(NPRE, 8) for x in norm_items(s)]
            prev = None
            for i, x in enumerate(it):
                s = NPRE + i // 24
                g = min((i * 54) // len(it), 8 * s - 3)
                prev = pl.add(x, g, g, deps=[prev] if prev else [], sep=0, hi=g)
        else:
            prev = None
            si = store_items(c - 1)
            for i, x in enumerate(si):
                g = 5 + (i * 58) // len(si)
                prev = pl.add(x, 5, g - 4, deps=[prev] if prev else [], sep=0, hi=g if 'store' in x else 63)
        T += interleave(sp, pl.run())
    T += ['s_nop 7'] + store_items(6) + ['s_cmp_eq_u32 s59, 0', f's_cbranch_scc1 {N}_end', 'VMWAIT aq']
    T, _ = resolve_lgw(T, [])
    T, _ = fix_vm(T, ['c0'] * 8 + ['V'] * 8 + ['c1'] * 8)
    return T


def OAm(b, mt, a): return 192 + 32 * b + 8 * mt + 4 * a
OA = OAm


PKBASE = {2: ('v', 192), 1: ('v', 224), 3: ('a', 128), 0: ('a', 160)}


def pack_code(vtype, fix):
    from gemm1 import acc
    L = []
    for g in (2, 3, 1, 0):
        for n in range(8):
            t0, t1 = (16 * g + n, 16 * g + n + 8) if vtype else (16 * g + 2 * n, 16 * g + 2 * n + 1)
            q = n if vtype else None
            src = []
            for t in (t0, t1):
                k, r = acc(t // 8, t % 8)
                for e in range(4):
                    if k == 'a':
                        L.append(f'v_accvgpr_read_b32 v{2 + len(src)}, a{r + e}')
                        src.append(f'v{2 + len(src)}')
                    else:
                        src.append(f'v{r + e}')
            if fix and not vtype:
                L += [f'v_mul_f32 {x}, s78, {x}' for x in src]
            dk, db = PKBASE[g]
            tb = db + 4 * n if dk == 'v' else 10
            for d in range(4):
                L.append(f'v_cvt_pk_bf16_f32 v{tb + d}, {src[2 * d]}, {src[2 * d + 1]}')
            if fix and vtype and n % 2 == 1:
                L += [f'v_and_or_b32 v{tb + d}, v{tb + d}, v43, v44' for d in range(4)]
            if fix and not vtype:
                L += [f'v_and_b32 v{tb + d}, v{tb + d}, v43' for d in (2, 3)]
            if dk == 'a':
                L += [f'v_accvgpr_write_b32 a{db + 4 * n + d}, v{tb + d}' for d in range(4)]
    if vtype:
        L += ['s_mov_b32 s73, s28', 's_mov_b32 s74, s27', 's_lshl_b32 s76, s27, 1', 's_mov_b32 s27, s29']
    else:
        L += ['s_mov_b32 s73, s29', 's_lshl_b32 s74, s29, 1', 's_mov_b32 s76, s28']
    L += ['s_mov_b32 s72, 0', 's_add_u32 s75, s74, s73', 's_add_u32 s77, s76, s73', 's_add_u32 s78, s76, s74', 's_add_u32 s79, s76, s75']
    return L


def pk_stores():
    L = []
    for g in (0, 1, 2, 3):
        dk, db = PKBASE[g]
        for n in range(8):
            pre = ['s_add_u32 s26, s26, s27'] if (n == 0 and g) else []
            L.append(pre + [f's_add_u32 s31, s26, s{72 + n}',
                            f'buffer_store_dwordx4 {R((dk, db + 4 * n), 4)}, v42, s[12:15], s31 offen{WT} ; tag=st'])
    return L


STAMPS = False
def SA(k): return stamp_at(k) if STAMPS else []
def SB(k): return [] if PROST else SA(k)


def dbl(grp_adv, so, delta, m0own, m0other):
    grp, adv = grp_adv
    other = []
    for n, (pre, x) in enumerate(grp):
        pre2 = [y.replace(m0own, m0other) for y in pre]
        if n == 0:
            pre2 = [f's_add_u32 s30, {so}, {delta}'] + pre2
        other.append((pre2, x.replace(f', {so} offen', ', s30 offen')))
    return grp + other, adv


def qproj_head(N):
    L = []
    a = L.append
    a('s_lshl_b32 s61, s67, 8')
    for j in range(8):
        a(f'v_subrev_u32 v{34 + j}, s61, v{34 + j}')
        a(f'v_add_u32 v{16 + j}, 0xffff0000, v{34 + j}')
    L += ['v_and_b32 v2, 15, v1', 'v_lshrrev_b32 v3, 1, v2', 'v_lshrrev_b32 v4, 4, v1', 'v_xor_b32 v3, v3, v4', 'v_lshlrev_b32 v3, 4, v3',
          'v_lshl_add_u32 v3, v2, 7, v3', 'v_add_u32 v32, s25, v3', 'v_xor_b32 v33, 64, v32',
          'v_add_u32 v43, 98304, v32', 'v_add_u32 v44, 98304, v33']
    a('s_cmp_lt_u32 s55, 24'); a(f's_cbranch_scc1 {N}_late')
    a('s_waitcnt vmcnt(18)')
    for grp in pk_stores():
        L += [x.replace('tag=st', 'tag=skip') for x in grp]
    L += ['s_waitcnt vmcnt(0)', 's_barrier', 'v_mov_b32 v42, 0x7ff00000', 's_cmp_eq_u32 s20, 0', f's_cbranch_scc0 {N}_late'] + [x + ' ; tag=skip' for x in signal_code('s3')]
    a(f'{N}_late:')
    a('s_lshr_b32 s41, s55, 1'); a('s_sub_u32 s41, 15, s41')
    a('s_lshl_b32 s21, s41, 1'); a('s_add_u32 s42, s21, 2'); a('s_lshl_b32 s6, s42, 15')
    a('s_lshl_b32 s43, s56, 20'); a('s_add_u32 s4, s12, s43'); a('s_addc_u32 s5, s13, 0')
    a('s_sub_u32 s4, s4, 16384'); a('s_subb_u32 s5, s5, 0'); a('s_add_u32 s6, s6, 16384')
    a('s_mov_b32 s16, 16384'); a('s_mov_b32 s17, 0')
    a('v_lshlrev_b32 v2, 4, v1'); a('v_add_u32 v56, s18, v2'); a('v_add_u32 v57, 4096, v56')
    for i in range(8):
        a(f'v_mov_b32 v{48 + i}, v{56 + i // 4}')
    a('s_xor_b32 s28, s18, 16384'); a('s_xor_b32 s29, s25, 8192')
    L += SB(1)
    a('VMWAIT x0')
    a('s_barrier')
    L += SB(2)
    L += x_reads(0)
    L += flat_group(dma_x(2)) + flat_group(dma_x(3))
    L += [x for f in range(32) for x in wq_read(0, f)][:NTR]
    L += ['s_cmp_ge_u32 s20, 2', f's_cbranch_scc1 {N}_qH']
    return L


def qproj_role(N, role):
    L, rare = [], []
    a = L.append
    sg = -1 if role else 1
    hx = lambda v: hex(v & 0xffffffff)
    ns = NSTORE[role]
    wq = lambda st: [x for f in range(32) for x in wq_read(st, f)]
    for st in range(7):
        pl = Plan(64)
        sp = []
        for f in range(32):
            ks, dt = f // 16, f % 16
            for aa in range(2):
                d = vr(QACC(dt, aa), 4)
                sp.append(f'{MF} {d}, {ar(RING(f), 4)}, {ar(XQ(st, aa, ks), 4)}, {d if (st or ks) else 0}')
        pl.fix('LGW 8', -1)
        plan_tr(pl, wq(st), wq(st + 1) if st < 6 else None)
        zr = range(112, 128) if st == 0 else range(16 * (st - 1), 16 * st)
        pl.chain([f'v_accvgpr_write_b32 a{r}, 0' for r in zr], 8, 8, 50)
        if st < 2:
            pl.fix(PFQ, 49); pl.fix('s_add_u32 s86, s86, s87', 50)
        duty = (st >= DUTYSW) == bool(role)
        groups = []
        if 1 <= st <= 4:
            groups.append(dbl(dma_wq(QSLOT[st + 2], f'w{st + 2}'), 's19', hx(sg * 32 * 8192), 's18', 's28'))
        if 1 <= st <= 3:
            groups.append(dbl(dma_x(st + 3), 's65', hx(sg * 64 * 896), 's25', 's29'))
        if st == 6:
            groups += [dbl(dma_phys(0, KS(0), 'k0'), 's16', hx(sg * 16384), 's18', 's28')]
        g = 2
        for grp, adv in groups:
            if duty:
                for pre, x in grp:
                    if pre:
                        pl.fix('\n'.join(pre), g - 1)
                    pl.fix(x, g)
                    g += 2
                pl.fix(adv, g - 2, last=True)
            else:
                pl.fix(adv, 58)
        for i, grp in enumerate(pk_stores()[sum(ns[:st]):sum(ns[:st + 1])]):
            g = 2 + 2 * ((i * 30) // ns[st])
            pl.fix('\n'.join(grp[:-1]), g - 1)
            pl.fix(grp[-1], g)
        if st == 5:
            pl.fix(f's_add_u32 s8, s4, {VF + 16384}\ns_addc_u32 s9, s5, 0\ns_sub_u32 s10, s6, 16384', 0)
            if role:
                pl.fix('s_lshl_b32 s61, s56, 2', 2); pl.fix('v_mov_b32 v3, s61', 4); pl.fix('global_load_dword v2, v3, s[52:53] sc1 ; tag=poll', 6)
        if st < 6:
            w = f'VMWAIT w{st + 1} x{st + 1}' + (' x6' if st == 4 else '') + (' poll' if st == 5 else '')
            if st == 5 and role:
                w += f'\nv_readfirstlane_b32 s61, v2\ns_and_b32 s61, s61, 255\ns_cmp_lt_u32 s61, 4\ns_cbranch_scc1 {N}_chk\n{N}_chkr:'
                rare.extend([f'{N}_chk:'] + spin_code(N + '_q', 'v2', 'v3', 4, 255) + [f's_branch {N}_chkr'])
            xr = x_reads(st + 1) if st < 5 else []
            if st == 4:
                xr += x_reads(6)
            pl.fix('\n'.join([w, 's_barrier'] + xr), TBAR)
        L += interleave(sp, pl.run())
        L += SB(3 + st)
    a(f's_mov_b32 s61, {f32bits(LOG2E / 16)}')
    L += ['v_lshlrev_b32 v16, 4, v1', 'v_add_u32 v17, 0x10000, v16', 'v_add_u32 v58, 14336, v16',
          'v_lshrrev_b32 v2, 4, v1', 'v_lshlrev_b32 v2, 2, v2', 'v_and_b32 v3, 15, v1', 'v_sub_u32 v20, v2, v3',
          f's_mov_b32 s22, {TH}', 's_lshl_b32 s24, s20, 5', 's_mov_b32 s19, 1', 's_mov_b32 s26, 32768']
    for s in range(8):
        for aa in range(2):
            src = [QACC(2 * s + e // 4, aa) + e % 4 for e in range(8)]
            L += [f'v_mul_f32 v{r}, s61, v{r}' for r in src]
            L += [f'v_cvt_pk_bf16_f32 v{Q(aa, s) + d}, v{src[2 * d]}, v{src[2 * d + 1]}' for d in range(4)]
    L += SB(10)
    a('VMWAIT k0')
    a('s_barrier')
    L += SB(11)
    L = [x.replace('s_add_u32 s16, s16, s26', 's_add_u32 s16, s16, 32768') for x in L]
    return L, rare


def qproj_tail(N):
    L, rare = [], []
    a = L.append
    pl = Plan(64)
    L += [kread(0, f) for f in range(9)]
    pl.fix('LGW 8', -1)
    plan_reads(pl, 0, lambda f: kread(0, f), None)
    pl.fix('LGW 16', 47, last=True)
    plan_dma(pl, dma_phys(0, KS(1), 'k1'), 0, 1, 28, 40)
    plan_dma(pl, dma_phys(1, 2, 'v0'), 30, 31, 60, 62)
    fl = [f'v_accvgpr_write_b32 a{r}, 0' for r in range(96, 112)]
    fl += ['s_lshl_b32 s44, s56, 2', 'v_mov_b32 v60, s44']
    fl += ['s_lshl_b32 s44, s41, 3', 's_lshl_b32 s45, s20, 1', 's_add_u32 s44, s44, s45',
           's_lshl_b32 s46, s56, 7', 's_add_u32 s46, s46, s44', 's_mul_i32 s46, s46, 14336', f's_add_u32 s46, s46, {PART}',
           f's_mul_i32 s47, s56, {256 * 896}', 's_add_u32 s48, s48, s47', 's_addc_u32 s49, s49, 0',
           'v_lshrrev_b32 v2, 3, v1', 's_lshl_b32 s47, s20, 6', 'v_add_u32 v2, s47, v2', 'v_mul_u32_u24 v2, 896, v2',
           'v_lshrrev_b32 v3, 4, v1', 'v_lshlrev_b32 v4, 1, v3', 'v_and_b32 v5, 7, v1', 'v_xor_b32 v4, v4, v5',
           'v_lshl_add_u32 v160, v4, 4, v2',
           'v_bfe_u32 v4, v1, 2, 2', 'v_lshl_add_u32 v5, v3, 2, v4', 'v_lshrrev_b32 v6, 1, v5', 'v_and_b32 v6, 3, v6',
           'v_lshlrev_b32 v5, 7, v5', 'v_lshl_add_u32 v5, v6, 5, v5', 'v_and_b32 v6, 3, v1', 'v_lshl_add_u32 v161, v6, 3, v5']
    fl += [f'v_xor_b32 v{161 + j}, {32 * j}, v161' for j in range(1, 4)] + [f'v_add_u32 v{165 + j}, 0x10000, v{161 + j}' for j in range(4)]
    k = fl.index('s_add_u32 s48, s48, s47')
    fl[k:k + 2] = ['\n'.join(fl[k:k + 2])]
    pl.chain(fl, 0, 0, 60)
    L += interleave(qk_mfmas(0, True), pl.run())
    a('s_barrier')
    a('s_cmp_lg_u32 s21, 0')
    a(f's_cbranch_scc1 {N}_nomask0')
    L += switch_code() + mask_code(0)
    a(f'{N}_nomask0:')
    L += flat_group(dma_phys(0, KS(0), 'k2'))
    L += ['s_nop 7']
    L += max_items(0) + r1_code(0, True)
    for k, x in softmax_items(0)[:5 * NPAIR1]:
        a(x)
        if k == 'e':
            a('s_nop 0')
    a('s_waitcnt vmcnt(16)')
    a('s_barrier')
    L += ['s_cmp_eq_u32 s20, 0', f's_cbranch_scc1 {N}_sig2', f'{N}_sig2r:']
    rare.extend([f'{N}_sig2:', 's_cmp_ge_u32 s55, 24', f's_cbranch_scc1 {N}_sig2r'] + signal_code('s3', 256) + [f's_branch {N}_sig2r'])
    L += [kread(1, f) for f in range(9)]
    return L, rare


def pre_issue(full):
    L = ['s_waitcnt lgkmcnt(0)', f's_load_dwordx2 s[68:69], s[0:1], {B_X}', f's_load_dwordx2 s[48:49], s[0:1], {B_WO}']
    if full:
        L += [f's_load_dwordx2 s[8:9], s[0:1], {B_WQ}', 's_mov_b32 s33, 8192', 's_mov_b32 s34, 64', 's_lshl_b32 s17, s56, 9'] + voff_w()[:-1]
    L += ['s_lshl_b32 s18, s20, 13', 's_lshr_b32 s41, s55, 1', 's_sub_u32 s41, 15, s41', f's_mul_i32 s61, s41, {128 * 896}',
          f's_mov_b32 s70, {192 * 896}', 's_lshl_b32 s25, s20, 12', 's_add_u32 s25, s25, 32768', f's_mov_b32 s65, {64 * 896}',
          'v_lshrrev_b32 v2, 3, v1', 's_lshl_b32 s64, s20, 5', 'v_add_u32 v2, s64, v2', 'v_mul_u32_u24 v2, 896, v2',
          'v_and_b32 v3, 7, v1', 'v_lshrrev_b32 v4, 4, v1', 'v_xor_b32 v3, v3, v4', 'v_lshlrev_b32 v3, 4, v3', 'v_xor_b32 v4, 64, v3',
          f'v_add_u32 v{XV[0]}, v2, v3', 'v_add_u32 v4, v2, v4', f'v_add_u32 v{XV[1]}, {8 * 896 - 1024}, v4',
          f'v_add_u32 v{XV[2]}, {16 * 896 - 2048}, v{XV[0]}', f'v_add_u32 v{XV[3]}, {24 * 896 - 3072}, v4',
          's_waitcnt vmcnt(0) lgkmcnt(0)' if False else 's_waitcnt lgkmcnt(0)', 's_add_u32 s68, s68, s61', 's_addc_u32 s69, s69, 0',
          f's_sub_u32 s68, s68, {64 * 896}', 's_subb_u32 s69, s69, 0']
    if full:
        L += ['s_add_u32 s8, s8, s17', 's_addc_u32 s9, s9, 0', f's_sub_u32 s10, {448 * 8192}, s17']
        L += flat_group(dma_wq(QSLOT[0], 'w0')) + flat_group(dma_wq(QSLOT[1], 'w1'))
    L += flat_group(dma_x(0)) + flat_group(dma_x(1)) + flat_group(dma_wq(QSLOT[2], 'w2'))
    if not full:
        L.append('s_mov_b32 s82, s36')
    L += ['s_mul_i32 s86, s87, 3', PFQ, 's_add_u32 s86, s86, s87', PFQ, 's_add_u32 s86, s86, s87']
    return L


def gen(dma_gap=5, stamps=False, pfd=3):
    gemm1.STMOD = WT + ' ; tag=st'
    gemm2.PF2 = 'buffer_load_dword v45, v47, s[80:83], s86 offen'
    global STAMPS
    STAMPS = stamps
    N = NAME
    P_ = []
    a = P_.append
    a('s_cmp_ge_u32 s2, 256')
    a(f's_cbranch_scc1 {N}_exit')
    if stamps:
        P_ += stamp_begin()
    a(f's_load_dwordx4 s[44:47], s[0:1], {B_X}')
    a(f's_load_dwordx4 s[48:51], s[0:1], {B_WQ}')
    a(f's_load_dwordx2 s[52:53], s[0:1], {B_WUV}')
    a(f's_load_dwordx4 s[40:43], s[0:1], {A_X}')
    a(f's_load_dwordx2 s[12:13], s[0:1], {WS}')
    a('v_lshrrev_b32 v2, 6, v0')
    a('v_and_b32 v1, 63, v0')
    a('s_mov_b32 s7, 0x20000')
    a('v_readfirstlane_b32 s20, v2')
    a('s_mov_b32 s11, 0x20000'); a('s_mov_b32 s15, 0x20000'); a('s_mov_b32 s71, 0x20000')
    a(f's_mov_b32 s14, {PART_END}')
    a('s_and_b32 s54, s2, 7'); a('s_lshr_b32 s55, s2, 3')
    a('s_and_b32 s56, s55, 1'); a('s_lshl_b32 s57, s54, 1'); a('s_add_u32 s56, s56, s57')
    a('s_lshl_b32 s24, s20, 13'); a('s_add_u32 s25, s24, 65536')
    a('s_lshr_b32 s66, s20, 1'); a('s_and_b32 s67, s20, 1')
    a('s_mov_b32 s32, 2048'); a('s_mov_b32 s33, 8192'); a('s_mov_b32 s34, 64')
    vx, vw = voff_x(), voff_w()
    P_ += vx[:-1] + vw[:-1]
    a('s_waitcnt lgkmcnt(0)')
    if stamps and PROST:
        P_ += stamp_init() + SA(0)
    P_ += dec_kv_x() + dec_kv_w() + vx[-1:] + vw[-1:]
    a(f's_load_dwordx2 s[52:53], s[0:1], {DBG}')
    PF_MARK = len(P_)
    a('s_and_b32 s76, s55, 3'); a('s_lshl_b32 s76, s76, 6')
    P_ += pf_setup(N, 'pf0', 's32', 's33', ('s4', 's5'), ('s8', 's9'), 's16', 's17', 's3', 's76', '31')
    a('s_mov_b32 s72, 0')
    for d in range(pfd + 2):
        a(PFI); a('s_add_u32 s72, s72, s73')
    a('v_lshrrev_b32 v4, 4, v1')
    a('v_and_b32 v2, 15, v1'); a('v_lshrrev_b32 v3, 1, v2'); a('v_xor_b32 v3, v3, v4'); a('v_lshlrev_b32 v3, 4, v3')
    a('v_lshl_add_u32 v3, v2, 7, v3'); a('s_lshl_b32 s61, s66, 14'); a('v_add_u32 v32, s61, v3'); a('v_xor_b32 v33, 64, v32')
    a('v_lshrrev_b32 v3, 2, v2'); a('v_lshl_add_u32 v5, v4, 3, v3'); a('v_lshlrev_b32 v5, 9, v5'); a('v_and_b32 v6, 1, v4')
    a('v_lshl_add_u32 v6, v6, 2, v3'); a('v_lshl_add_u32 v5, v6, 5, v5'); a('v_and_b32 v6, 3, v1'); a('v_lshl_add_u32 v5, v6, 3, v5')
    a('s_lshl_b32 s61, s67, 8'); a('s_add_u32 s61, s61, 65536'); a('v_add_u32 v34, s61, v5')
    for j in range(1, 8):
        a(f'v_xor_b32 v{34 + j}, {32 * j}, v34')
    a('s_mov_b32 s38, 17'); a('s_mov_b32 s35, 0'); a('s_mov_b32 s78, 1.0'); a('v_mov_b32 v43, -1')
    a('s_mov_b32 s39, 16'); a(f's_mov_b32 s88, {16 - (pfd - 1)}'); a(f's_mov_b32 s74, {23 - (pfd - 1)}')
    a('s_cmp_ge_u32 s55, 26'); a(f's_cbranch_scc1 {N}_jobA')
    a('s_mov_b32 s22, 18'); a('s_mov_b32 s89, 0')
    a('s_lshr_b32 s57, s55, 1'); a('s_sub_u32 s64, 15, s57'); a('s_and_b32 s57, s57, 7')
    a('s_mov_b32 s76, 0'); a('s_mov_b32 s77, 63')
    a(f's_mul_i32 s61, s64, {128 * 896}')
    a('s_add_u32 s40, s44, s61'); a('s_addc_u32 s41, s45, 0'); a(f's_mov_b32 s42, {128 * 896}')
    a('s_lshl_b32 s61, s56, 9')
    a('s_add_u32 s44, s48, s61'); a('s_addc_u32 s45, s49, 0'); a(f's_sub_u32 s48, {448 * 8192}, s61')
    a('s_mov_b32 s43, 8192'); a('s_mov_b32 s49, 64')
    a('s_lshl_b32 s3, s56, 2')
    a(f's_branch {N}_dec_done')
    a(f'{N}_jobA:')
    a('s_mov_b32 s22, 23'); a('s_mov_b32 s89, 1'); a('s_mov_b32 s3, 64')
    a('s_mov_b32 s57, s54')
    a('s_sub_u32 s64, s55, 26')
    a('s_and_b32 s76, s64, 3'); a('s_lshl_b32 s76, s76, 6'); a('s_mov_b32 s77, 31')
    a('s_mul_i32 s61, s64, 448')
    a('s_add_u32 s44, s42, s61'); a('s_addc_u32 s45, s43, 0'); a(f's_sub_u32 s48, {448 * 2688}, s61')
    a(f's_mul_i32 s61, s57, {256 * 896}')
    a('s_add_u32 s40, s40, s61'); a('s_addc_u32 s41, s41, 0'); a(f's_sub_u32 s42, {2048 * 896}, s61')
    a('s_mov_b32 s43, 2688'); a('s_mov_b32 s49, 56')
    a('s_lshl_b32 s58, s64, 20'); a(f's_add_u32 s58, s58, {QA}'); a('s_lshl_b32 s61, s57, 14'); a('s_add_u32 s58, s58, s61')
    a('s_lshl_b32 s61, s66, 13'); a('s_add_u32 s58, s58, s61'); a('s_lshl_b32 s61, s67, 19'); a('s_add_u32 s58, s58, s61')
    a('s_mov_b32 s35, 1'); a('s_mov_b32 s60, 256')
    a('s_mov_b32 s63, 1'); a('s_mov_b32 s59, 131072'); a('s_mov_b32 s62, 2048')
    a('s_cmp_ge_u32 s64, 4'); a(f's_cbranch_scc1 {N}_dec_done')
    a('s_mov_b32 s63, 0'); a('s_mov_b32 s59, 2048'); a('s_mov_b32 s62, 131072')
    a(f's_mov_b32 s78, {f32bits(LOG2E * 28 ** -0.5)}')
    a('s_cmp_lt_u32 s64, 2'); a(f's_cbranch_scc1 {N}_dec_done')
    a('s_mov_b32 s78, 1.0'); a('s_mov_b32 s35, 2'); a('s_mov_b32 s60, 128')
    a(f'{N}_dec_done:')
    a('s_cmp_eq_u32 s2, 255'); a(f's_cbranch_scc0 {N}_noclr')
    a('v_and_b32 v2, 31, v1'); a('v_lshlrev_b32 v2, 7, v2'); a(f'v_add_u32 v2, {FLG}, v2'); a('v_mov_b32 v3, 0')
    a(f'global_store_dword v2, v3, s[12:13]{WT}')
    a(f'{N}_noclr:')
    a('s_mov_b32 s50, 896')
    if stamps:
        P_ += stamp_init()
    if STARTPF:
        a(f's_waitcnt vmcnt({pfd + 1 - (STARTPF - 1)})')
    d0 = dmas(0)
    D0 = []
    for pre, x in d0[8:] + d0[:8]:
        for y in pre:
            D0 += [y, 's_nop 0']
        D0.append(x)
    D0 += ['s_add_u32 s18, s18, 128', 's_add_u32 s19, s19, s23']
    if stamps and PROST:
        D0 = D0 + SA(1)
    if STARTPF:
        P_ += D0
    else:
        P_[PF_MARK:PF_MARK] = D0
    warm = pf_setup(N, 'pfw', 's50', 's43', ('s40', 's41'), ('s44', 's45'), 's42', 's48', 's57', 's76', 's77')
    ren = {'s68': 's80', 's69': 's81', 's70': 's82', 's75': 's82', 's73': 's87', 'v46': 'v47'}
    for x in warm:
        for k_, v_ in ren.items():
            x = re.sub(rf'\b{k_}\b', v_, x)
        a(x)
    a('s_mov_b32 s83, 0x20000'); a('s_mul_i32 s86, s87, -4'); a('s_mov_b32 s36, s82')
    P_ += epi_kv(N, 'e0')
    a('s_waitcnt vmcnt(0) lgkmcnt(0)' if STARTPF else f's_waitcnt vmcnt({pfd + 2}) lgkmcnt(0)')
    if stamps and PROST:
        P_ = P_[:-1] + SA(2) + P_[-1:] + SA(3)
        a = P_.append
    a('s_barrier')
    P_ += reads(0, 0, 0)
    a('s_mov_b32 s21, 2')
    a('s_cmp_eq_u32 s37, 0')
    a(f's_cbranch_scc0 {N}_t1_entry')
    a(f's_branch {N}_t0_entry')
    out = list(P_)

    def sw(lab):
        return (['s_cmp_eq_u32 s21, 18', f's_cbranch_scc1 {lab}_sig',
                 's_mov_b32 s4, s40', 's_mov_b32 s5, s41', 's_mov_b32 s32, 896',
                 's_mov_b32 s8, s44', 's_mov_b32 s9, s45', 's_mov_b32 s17, s48', 's_mov_b32 s33, s43', 's_mov_b32 s34, s49',
                 's_mul_i32 s16, s42, s89', 's_mov_b32 s39, 18', 's_mov_b32 s19, 0',
                 's_cmp_eq_u32 s89, 0', f's_cbranch_scc1 {lab}_end'] + voff_x() + voff_w() + [f's_branch {lab}_end',
                 f'{lab}_sig:', 's_cmp_eq_u32 s20, 0', f's_cbranch_scc0 {lab}_end', 's_lshl_b32 s61, s56, 2'] + signal_code('s61') +
                [f'{lab}_end:'])

    def pfsw(lab):
        return pf_setup(N, lab, 's50', 's43', ('s40', 's41'), ('s44', 's45'), 's42', 's48', 's57', 's76', 's77') + ['s_mov_b32 s72, 0', 's_mov_b32 s82, 0']
    nx = ['s_mov_b32 s26, s58', 's_mov_b32 s27, s59', 's_mov_b32 s28, s60', 's_mov_b32 s29, s62', 's_mov_b32 s37, s63',
          's_mov_b32 s79, 1', 's_mov_b32 s38, 24', 's_add_u32 s21, s21, 1',
          'v_lshrrev_b32 v4, 4, v1', 'v_and_b32 v2, 15, v1',
          'v_lshlrev_b32 v42, 9, v4', 'v_lshl_add_u32 v42, v2, 4, v42',
          's_cmp_eq_u32 s35, 1', f's_cbranch_scc1 {N}_lm1',
          'v_and_b32 v5, 8, v1', 'v_lshl_add_u32 v42, v5, 4, v42',
          f'{N}_lm1:', 'v_mov_b32 v44, 0', 's_cmp_eq_u32 s37, 0', 's_cselect_b32 s61, 48, 12', 'v_mov_b32 v5, v2',
          f's_cbranch_scc0 {N}_lm2', 'v_mov_b32 v5, v1',
          f'{N}_lm2:', 'v_cmp_gt_u32 vcc, s61, v5', 'v_mov_b32 v6, 0x3f803f80', 's_nop 0', 'v_cndmask_b32 v43, 0, -1, vcc',
          'v_cmp_eq_u32 vcc, 12, v2', 's_nop 1', 'v_cndmask_b32 v44, v44, v6, vcc',
          's_cmp_eq_u32 s37, 0', f's_cbranch_scc0 {N}_t1_bz', f's_branch {N}_t0_bz']
    can = ['x0'] * 4 + ['x1'] * 4 + ['w2'] * 8 + ['pf'] * 2
    QH, vmh = fix_vm(qproj_head(N), can)
    QH, pendh = resolve_lgw(QH, [])
    QR, qrare = [], []
    for role in (0, 1):
        r, rr = qproj_role(N, role)
        r, _ = resolve_lgw(r, pendh)
        r, _ = fix_vm(r, vmh)
        QR.append(r)
        qrare += rr
    QT, rr = qproj_tail(N)
    QT, pend = resolve_lgw(QT, [])
    qrare += rr
    qp = QH + QR[0] + QT
    vm_in = ['w0'] * 8 + ['x'] * 6 + ['w1'] * 8 + ['x'] * 5
    QPres = None
    dm = {('v', 45)}
    for vt in (0, 1):
        tag = f'{N}_t{vt}'
        A0, B0, _ = half_loop(vt, 0, tag, dma_gap)
        A1, B1, Bz = half_loop(vt, 1, tag, dma_gap)
        fill = {}
        for n, x in enumerate(reads(1, 0, 1)):
            fill.setdefault(2 + 2 * n, []).append(x)
        for n, (pre, x) in enumerate(dmas(1)):
            g = 1 + 2 * ((n * 3) // 2)
            for y in pre:
                fill.setdefault(g - 1, []).append(y)
            fill.setdefault(g, []).append(x)
        fill.setdefault(60, []).extend(['s_add_u32 s18, s18, 128', 's_add_u32 s19, s19, s23', PFI, PFI])
        Bent = ['s_waitcnt lgkmcnt(0)'] + interleave(mfmas(vt, 0, True), fill)
        out += ['.p2align 6', f'{tag}_entry:'] + Bent + (SA(4) if PROST else []) + [f'{tag}_loop:'] + A0 + B0 + A1 + B1 + [f's_branch {tag}_loop']
        out += [f'{tag}_bz:'] + Bz + [f's_branch {tag}_loop']
        st0 = SB(0)
        p_i, vm1 = fix_vm(['s_add_u32 s19, s19, s23'] + pre_issue(False), ['w1'] * 8 + ['x'] * 5)
        e_p = gemm1.epilogue(vt, False, False)[:-1]
        p_f, vm2 = fix_vm(pre_issue(True), ['x'] * 13)
        k_p, k_f = pack_code(vt, False), pack_code(vt, True)
        for v in (vm1, vm2):
            assert v[-len(can):] == can[-len(v):], v
        QPres = qp
        out += [f'{tag}_epi:', 's_cmp_eq_u32 s79, 0', f's_cbranch_scc0 {tag}_epifix'] + st0
        out += ['s_cmp_eq_u32 s89, 0', f's_cbranch_scc0 {tag}_nopre'] + p_i + k_p + [f's_branch {N}_qproj']
        out += [f'{tag}_nopre:', 's_nop 7'] + e_p + [f's_branch {N}_next']
        out += [f'{tag}_epifix:'] + st0 + p_f + k_f + [f's_branch {N}_qproj']
        for p in (0, 1):
            out += [f'{tag}_sw{p}:'] + sw(f'{tag}_s{p}') + [f's_branch {tag}_swret{p}']
        for p in ('0', '1', 'z'):
            out += [f'{tag}_pfsw{p}:'] + pfsw(f't{vt}pf{p}') + [f's_branch {tag}_pfret{p}']
        G1 = P_ + Bent + A0 + B0 + A1
        assert not check(G1 + ['s_nop 7'] + e_p + nx + Bz + A0 + B0 + A1 + B1 + A0 + p_f + k_f + qp, tag, dummy=dm)
        assert not check(G1 + p_i + k_p + qp, tag + 'b', dummy=dm)
        assert not check(G1 + p_i + k_p + QH + QR[1] + QT, tag + 'c', dummy=dm)
        i = A0.index(f'{tag}_swret0:')
        j = B0.index(f'{tag}_pfret0:')
        assert not check(P_ + Bent + A0[:i] + sw('x') + A0[i:] + B0[:j] + pfsw('x') + B0[j:] + A1, tag + 'sw', dummy=dm)
    out += [f'{N}_next:'] + nx
    its = {}
    for key, p, m in (('i0', 0, 0), ('i1', 1, 0), ('m1', 1, 2), ('m0', 0, 1)):
        L, pe = resolve_lgw(iteration(p, f'{N}_{key}', m), pend)
        assert pe == pend, 'ring not periodic'
        k = L.index('; SPLIT')
        its[key] = (L[:k], L[k + 1:], p)
    cnt = [ACNT.get(15 - r, 0) for r in range(16)]
    start = [sum(cnt[:r]) for r in range(16)]
    assert sum(cnt) == 16
    pc = sum(c << (2 * r) for r, c in enumerate(cnt))
    ps = sum(s << (4 * r) for r, s in enumerate(start) if s < 16)
    asetup = ['s_lshr_b32 s57, s55, 1', 's_lshl_b32 s58, s57, 1', f's_lshr_b32 s59, {hex(pc)}, s58', 's_and_b32 s59, s59, 3',
              f's_mov_b32 s60, {hex(ps & 0xffffffff)}', f's_mov_b32 s61, {hex(ps >> 32)}', 's_lshl_b32 s58, s57, 2', 's_lshr_b64 s[60:61], s[60:61], s58',
              's_and_b32 s41, s60, 15', 's_lshl_b32 s76, s21, 6', f's_add_u32 s76, s76, {fin2.FB}',
              's_lshl_b32 s77, s41, 7', f's_add_u32 s77, s77, {fin2.FA}'] + attna4.setup() + ['s_cmp_eq_u32 s59, 0\ns_cselect_b32 s66, 0, s66\ns_cselect_b32 s70, 0, s70']
    T = tail_code(N, asetup)
    st1 = SB(12)
    st2 = SB(14)
    full = lambda k: its[k][0] + its[k][1]
    out += ['.p2align 6', f'{N}_qH:'] + QR[1] + [f's_branch {N}_qT', '.p2align 6', f'{N}_qproj:'] + QH + QR[0] + [f'{N}_qT:'] + QT + st1 + ['s_cmp_eq_u32 s21, 0', f's_cbranch_scc1 {N}_m0']
    out += ['.p2align 6', f'{N}_loop:'] + full('i0') + [f'{N}_i0_end:', 's_cmp_eq_u32 s19, s21', f's_cbranch_scc1 {N}_m1']
    out += full('i1') + [f'{N}_i1_end:', 's_cmp_gt_u32 s19, 5', f's_cbranch_scc1 {N}_loop', 's_cmp_eq_u32 s20, 0', f's_cbranch_scc0 {N}_loop',
                         's_cmp_eq_u32 s19, 5', f's_cbranch_scc1 {N}_l2chk',
                         'global_load_dword v59, v60, s[52:53] sc1',
                         f's_branch {N}_loop', f'{N}_l2chk:'] + spin_code(N + '_l2', 'v59', 'v60', 12 * 256) + [f's_branch {N}_loop']
    out += [f'{N}_m1:'] + full('m1') + [f'{N}_m1_end:', f'{N}_m0:'] + full('m0') + [f'{N}_m0_end:'] + SB(13) + T + st2
    rare = list(qrare)
    for key, (h, r, p) in its.items():
        rare += [f'{N}_{key}_r1:'] + r1_code(1 - p) + r + r2_code() + [f's_branch {N}_{key}_end']
        assert not check(QPres + (full('i0') if p else []) + h + r1_code(1 - p) + r + r2_code() + full('i0' if p else 'i1'), N + key + 'rare', dummy=dm)
    assert not check(QPres + full('i0') + full('i1') + full('i0') + full('m1') + full('m0') + T, N + 'B', dummy=dm)
    it, arare = attna4.item(N + 'A', WT)
    rare += [f'{N}_achk:'] + spin_code(N + '_a', 'v59', 'v60', 48) + [f's_branch {N}_achkr']
    out += [f's_mov_b32 s22, {attna4.TH}', 's_mov_b32 s62, 0'] + SB(15)
    k = it.index('s_and_b32 s72, s72, 0xffff')
    it[k:k] = ['s_cmp_eq_u32 s19, 1', f's_cbranch_scc1 {N}_psig', f'{N}_psigr:']
    rare += [f'{N}_psig:'] + signal_code('s76', 1, 's[12:13]') + [f's_branch {N}_psigr']
    out += [f'{N}_anext:'] + it + ['s_xor_b32 s62, s62, 32768', 's_sub_u32 s59, s59, 1', 's_mov_b32 s76, s77', 's_add_u32 s77, s77, 128',
                                   's_waitcnt vmcnt(2)', 's_cmp_lg_u32 s59, 0', f's_cbranch_scc1 {N}_anext', f'{N}_end:']
    if FUSE:
        ta, tb = fin2.task_a(N, SPIN), fin2.task_b(N, SPIN)
        nsl = max(len(v) for v in TASKS.values())
        assert sorted(t for v in TASKS.values() for t in v) == sorted([(k, q) for k in 'AB' for q in range(16)])
        F = ['s_waitcnt vmcnt(0)'] + signal_code('s76', 1, 's[12:13]') + SB(13) + ['s_cmp_ge_u32 s56, 14', f's_cbranch_scc1 {N}_fin'] + fin2.setup()
        F += ['s_lshr_b32 s57, s55, 1', 's_lshl_b32 s58, s57, 2', 's_lshl_b32 s57, s57, 1', 's_mov_b32 s41, s56', 's_mov_b32 s63, 0', f'{N}_tnext:']
        for sl in range(nsl):
            qt = sum((TASKS[15 - r][sl][1] if len(TASKS[15 - r]) > sl else 0) << (4 * r) for r in range(16))
            ty = sum(({'A': 1, 'B': 2}[TASKS[15 - r][sl][0]] if len(TASKS[15 - r]) > sl else 0) << (2 * r) for r in range(16))
            F += [f's_mov_b32 s60, {hex(qt & 0xffffffff)}', f's_mov_b32 s61, {hex(qt >> 32)}', f's_mov_b32 s78, {hex(ty)}',
                  f's_cmp_eq_u32 s63, {sl}', f's_cbranch_scc1 {N}_tgo']
        F += [f's_branch {N}_fin', f'{N}_tgo:', 's_add_u32 s63, s63, 1', 's_lshr_b64 s[60:61], s[60:61], s58', 's_and_b32 s40, s60, 15',
              's_lshr_b32 s78, s78, s57', 's_and_b32 s78, s78, 3', 's_cmp_eq_u32 s78, 0', f's_cbranch_scc1 {N}_fin',
              's_cmp_eq_u32 s78, 1', f's_cbranch_scc1 {N}_ta']
        F += tb + SB(14) + [f's_branch {N}_tnext', f'{N}_ta:'] + ta + SB(12) + [f's_branch {N}_tnext', f'{N}_fin:']
        assert not check(F, N + 'fin')
        out += F
    out += (stamp_end(WS, 0) if stamps else []) + ['s_endpgm'] + rare + arare
    out += [f'{N}_exit:', 's_endpgm']
    text = khead(N) + '\n'.join(out) + '\n'
    return dict(name=N, text=text, grid=256, block=256, lds=LDS, vgpr=512, sgpr=102, accum=256)
```

```python
from asmlib import parse, TRANS


class Item:
    def __init__(self, text, lo, tgt, deps=(), sep=1, last=False, hi=None):
        self.text, self.lo, self.tgt, self.deps, self.sep, self.last, self.hi = text, lo, tgt, list(deps), sep, last, hi
        self.gap = None
        t = text.split('\n')[0]
        if t.startswith('VMWAIT') or t.startswith('LGW') or t == 'S33':
            self.cls, self.cost = 's', 4
        elif t.startswith(';') or t.endswith(':'):
            self.cls, self.cost = 's', 0
        else:
            I = parse(t)
            op = I.op
            if I.cls == 'ds':
                self.cls, self.cost = 'rd', 4
            elif I.cls == 'vmem':
                self.cls, self.cost = 'vm', 8
            elif I.cls == 'valu':
                self.cls, self.cost = ('ex', 8) if op in TRANS else ('v', 4)
            elif 'branch' in op:
                self.cls, self.cost = 'br', 8
            else:
                self.cls, self.cost = 's', 4
        if t.startswith('; PH'):
            self.cost = 4
        self.cost += 4 * text.count('\n') - 4 * sum(1 for x in text.split('\n')[1:] if x.endswith(':') or x.startswith(';'))


class Plan:
    def __init__(self, n):
        self.n = n
        self.items = []

    def add(self, text, lo=0, tgt=None, deps=(), sep=1, last=False, hi=None):
        it = Item(text, lo, lo if tgt is None else tgt, deps, sep, last, hi)
        self.items.append(it)
        return it

    def fix(self, text, g, **kw):
        return self.add(text, g, g, hi=g, **kw)

    def chain(self, texts, lo, t0, t1, sep=0, deps=()):
        out, prev = [], None
        for i, x in enumerate(texts):
            it = self.add(x, lo, t0 + (i * (t1 - t0)) // max(len(texts) - 1, 1), deps=([prev] if prev else []) + list(deps), sep=sep)
            out.append(it)
            prev = it
        return out

    def run(self):
        slots = {g: [] for g in range(-1, self.n)}
        todo = list(self.items)
        over = 0
        for g in range(-1, self.n):
            budget = 8 if g >= 0 else 10 ** 6
            cur = []
            def ready(it):
                if it.lo > g:
                    return False
                return all(d.gap is not None and g - d.gap >= it.sep for d in it.deps)

            def place(it):
                nonlocal budget
                cur.append(it)
                it.gap = g
                todo.remove(it)
                budget -= it.cost
            big = ('rd', 'vm', 'ex', 'br')
            while True:
                f = [it for it in todo if ready(it) and ((it.hi is not None and it.hi <= g) or g == self.n - 1)]
                if not f:
                    break
                place(f[0])
            for early in (0, 3):
                lead = [it for it in todo if it.cls in big and ready(it) and it.cost <= budget and it.tgt <= g + early
                        and not any(c.cls in big for c in cur)]
                if lead:
                    lead.sort(key=lambda it: (it.tgt, it.cls != 'rd'))
                    place(lead[0])
                    break
                if early == 0 and len([it for it in todo if it.cls not in big and ready(it) and it.tgt <= g]) * 4 >= budget:
                    break
            while True:
                sm = [it for it in todo if it.cls not in big and ready(it) and it.cost <= budget and it.tgt <= g + 5]
                if not sm:
                    break
                sm.sort(key=lambda it: it.tgt)
                place(sm[0])
            def key(it):
                if it.last:
                    return 3
                if it.cls in ('rd', 'vm'):
                    return 1
                if it.cls in ('v', 'ex'):
                    return 2
                return 2 if any(d in cur and d.cls in ('rd', 'vm', 'v', 'ex') for d in it.deps) else 0
            cur2 = sorted(cur, key=key)
            ok = all(cur2.index(d) < cur2.index(it) for it in cur2 for d in it.deps if d in cur2)
            slots[g] = cur2 if ok else cur
            if g >= 0:
                over += max(0, -budget)
        assert not todo, [t.text for t in todo][:5]
        self.over = over
        return {g: [x for it in v for x in it.text.split('\n')] for g, v in slots.items()}


def resolve_lgw(lines, pend0):
    out, pend = [], list(pend0)
    ins = [None if (ln.startswith('LGW') or ln.startswith('VMWAIT')) else parse(ln) for ln in lines]
    for i, ln in enumerate(lines):
        if ln.startswith('LGW'):
            k = int(ln.split()[1])
            need = set()
            j = i + 1
            while k and j < len(lines):
                if ins[j] is not None and ins[j].cls == 'mfma':
                    need |= set(ins[j].srcA + ins[j].srcB)
                    k -= 1
                j += 1
            idx = max([n for n, d in enumerate(pend) if d & need], default=-1)
            n = len(pend) - idx - 1
            assert n <= 15 or idx < 0
            out.append(f's_waitcnt lgkmcnt({min(n, 15)})')
            pend = pend[idx + 1:]
            continue
        I = ins[i]
        if ln.startswith('VMWAIT') or (I is not None and I.cls == 'wait' and I.wait.get('lgkmcnt') == 0):
            pend = []
        if I is not None and I.cls == 'ds':
            pend.append(set(I.w))
        if I is not None and I.cls == 'mfma':
            assert not any(d & set(I.r) for d in pend), ('uncovered read', ln)
        out.append(ln)
    return out, pend
```

```python
from build import *
import mega, fin
ks = lambda st: [mega.gen(stamps=st)] + ([] if mega.FUSE else [fin.gen(stamps=st)])
assemble(ks(True), 'm.s')
if len(sys.argv) > 1:
    assemble(ks(False), f'cdna_kernels/{KN}.s', single=True)
```

```python
import re
from asmlib import *
from sched import Plan, resolve_lgw
from layout import *
import gemm1, gemm2, attna4, fin2
from gemm1 import reads, dmas, PFI
from gemm2 import half_loop, dec_kv_x, dec_kv_w, epi_kv, voff_x, voff_w, pf_setup, mfmas
from attnb import (S, P, O, RING, NEGM, Sched, softmax_items, max_items, xreduce, mask_code, r1_code, r2_code, rgap, rgap2,
                   add_waits, CT, OA, MF, TH, BARG, BARG2, D1G, NP1, pv_mfmas)

NAME = 'mega_kernel'
LDS = 163840
WT = ' sc0 sc1'
SPIN = 200000
FUSE = True
GDMA = 5
TOUCH = False
TASKS = {15: [('B', 0)], 14: [('B', 1), ('A', 4)], 13: [('B', 2), ('A', 7)], 12: [('B', 3), ('A', 9), ('A', 13)],
         11: [('B', 4), ('A', 14), ('B', 15)], 10: [('A', 5)], 9: [('B', 5), ('A', 0)], 8: [('B', 6), ('A', 2), ('A', 6)],
         7: [('B', 7), ('A', 12), ('B', 13)], 6: [('B', 8), ('A', 3), ('B', 14)], 5: [('A', 11)], 4: [('B', 9), ('A', 1)],
         3: [('B', 10), ('A', 15)], 2: [('B', 11), ('B', 12), ('A', 8)], 1: [], 0: [('A', 10)]}
VERB = True
NZERO = 40
STARTPF = 0
DUTYSW = 3
PROST = False
NSTORE = ((0, 0, 0, 8, 8, 8, 8), (13, 13, 6, 0, 0, 0, 0))
LD = ' sc1'
ACNT = {10: 1, 9: 1, 8: 1, 7: 1, 6: 1, 5: 2, 4: 2, 3: 2, 2: 1, 1: 2, 0: 2}


def Q(a, s): return 192 + 32 * a + 4 * s
def XQ(st, a, ks): return 16 * st + 8 * ks + 4 * a
XV = (14, 15, 59, 61)
PFQ = 'buffer_load_dword v45, v47, s[80:83], s86 offen ; tag=pf'
def QACC(dt, a): return 128 + 8 * dt + 4 * a
def QRING(f): return 64 + 4 * (f % 16)
KS = lambda slot: 3 - slot
CSLOT = [3, 2, 0, 1, 3, 2, 0]
QSLOT = [2, 3, 0, 2, 3, 0, 2]
XSL = [2, 3, 0, 1, 2, 3, 0]
XOFF = [0, 16384, 98304, 114688]


def kread(slot, f): return f'ds_read_b128 a[{RING(f)}:{RING(f) + 3}], v17 offset:{(KS(slot) - 2) * 32768 + f * 1024}'
def vread(slot, f): return f'ds_read_b128 a[{RING(f)}:{RING(f) + 3}], v16 offset:{slot * 32768 + f * 1024}'


def qk_mfmas(b, first=False):
    L = []
    for kt in range(4):
        for s in range(8):
            for a in range(2):
                d = vr(S(b, kt, a), 4)
                c = d if s else ('0' if first else vr(NEGM(a), 4))
                L.append(f'{MF} {d}, {ar(RING(kt * 8 + s), 4)}, {vr(Q(a, s), 4)}, {c}')
    return L


def dma_phys(isv, phys, tag=''):
    L = []
    t = f' ; tag={tag}' if tag else ''
    for i in range(8):
        pre = [f's_add_u32 m0, s18, {phys * 32768 + (i // 4) * 4096}'] if i % 4 == 0 else []
        if isv:
            L.append((pre, f'buffer_load_dwordx4 v{56 + i // 4}, s[8:11], s17 offen offset:{(i % 4) * 1024}{LD} lds{t}'))
        else:
            L.append((pre, f'buffer_load_dwordx4 v{48 + i}, s[4:7], s16 offen offset:{(i % 4) * 1024}{LD} lds{t}'))
    return L, ('s_add_u32 s17, s17, 32768' if isv else 's_add_u32 s16, s16, s26')


def dma_wq(phys, tag):
    L = []
    for ii in range(8):
        pre = [f's_add_u32 m0, s18, {phys * 32768 + (ii // 4) * 4096}'] if ii % 4 == 0 else []
        L.append((pre, f'buffer_load_dwordx4 v{24 + ii}, s[8:11], s19 offen offset:{(ii % 4) * 1024} lds ; tag={tag}'))
    return L, 's_add_u32 s19, s19, s23'


def dma_x(st):
    L = []
    for ii in range(4):
        pre = [f's_add_u32 m0, s25, {XOFF[XSL[st]]}'] if ii == 0 else []
        L.append((pre, f'buffer_load_dwordx4 v{XV[ii]}, s[68:71], s65 offen offset:{ii * 1024} lds ; tag=x{st}'))
    return L, 's_add_u32 s65, s65, 128'


def x_reads(st):
    return [f'ds_read_b128 {ar(XQ(st, a, ks), 4)}, v{(43 if XSL[st] >= 2 else 32) + ks} offset:{(XSL[st] % 2) * 16384 + a * 2048}' for ks in range(2) for a in range(2)]


def put_group(sc, grp_adv, g0, gap):
    grp, adv = grp_adv
    g = g0
    for pre, x in grp:
        for y in pre:
            sc.put(g - 1, y)
        sc.put(g, x)
        g += gap
    sc.put(g - gap, adv)


def flat_group(grp_adv):
    grp, adv = grp_adv
    L = []
    for pre, x in grp:
        for y in pre:
            L += [y, 's_nop 0']
        L.append(x)
    return L + [adv]


def switch_code():
    L = ['s_mov_b32 s4, s48', 's_mov_b32 s5, s49', f's_mov_b32 s6, {256 * 896}', 's_mov_b32 s16, 0', 's_mov_b32 s26, 128']
    for i in range(8):
        L.append(f'v_add_u32 v{48 + i}, {i * 8 * 896 - (i % 4) * 1024}, v160')
    return L


def fix_vm(lines, vm0, limit=60):
    vm = list(vm0)
    out = []
    for ln in lines:
        if ln.startswith('VMWAIT'):
            idx = max(max(i for i, t in enumerate(vm) if t == tag) if tag in vm else -1 for tag in ln.split()[1:])
            out.append(f's_waitcnt vmcnt({len(vm) - idx - 1}) lgkmcnt(0)' if idx >= 0 else 's_waitcnt lgkmcnt(0)')
            vm = vm[idx + 1:]
            continue
        I = parse(ln)
        if I is not None and I.cls == 'vmem' and 'v62, v63' not in ln and 'tag=skip' not in ln:
            if len(vm) >= limit:
                out.append('s_waitcnt vmcnt(40)')
                vm = vm[len(vm) - 40:]
            vm.append(ln.split('tag=')[1] if 'tag=' in ln else 'x')
        out.append(ln)
    return out, vm


def signal_code(off, inc=1, base='s[52:53]'):
    return [f'v_mov_b32 v3, {off}', f'v_mov_b32 v2, {inc}', 's_mov_b64 exec, 1', f'global_atomic_add v3, v2, {base} sc1', 's_mov_b64 exec, -1']


def spin_code(lab, vd, va, target, mask=-1):
    return [f's_mov_b32 s62, {SPIN}', f'{lab}spin:', f'v_readfirstlane_b32 s61, {vd}', f's_and_b32 s61, s61, {mask}', f's_cmp_ge_u32 s61, {target}',
            f's_cbranch_scc1 {lab}ok', 's_sleep 4', f'global_load_dword {vd}, {va}, s[52:53] sc1', 's_waitcnt vmcnt(0)',
            's_sub_u32 s62, s62, 1', 's_cmp_lg_u32 s62, 0', f's_cbranch_scc1 {lab}spin', f'{lab}ok:']


D1 = 76
NPAIR1 = 7


def plan_reads(pl, base, cur, nxt, nfirst=9, last_tgt=39, bar=47, n=128):
    prev = None
    for f in range(nfirst, 32):
        hi = base + min(8 * (f // 4) - 5, bar - 5)
        prev = pl.add(cur(f), max(base, base + 2 * (f - 16) + 1), base + ((f - nfirst) * last_tgt) // (31 - nfirst), deps=[prev] if prev else [], hi=hi)
    b = pl.fix('BARRIER', base + bar) if False else None
    if nxt:
        for f in range(nfirst):
            prev = pl.add(nxt(f), base + bar + 1, base + bar + 1 + (f * (62 - bar - 1)) // (nfirst - 1), deps=[prev], hi=base + (58 if f < 4 else 63))
    for k in range(1, 6):
        pl.fix('LGW 8', base + 8 * k - 1, last=True)


NTR = 15
TBAR = 52


def plan_tr(pl, cur, nxt, base=0):
    prev = None
    if cur:
        for n in range(NTR, 64):
            prev = pl.fix(cur[n], base + n - NTR)
        for k in range(1, 7):
            pl.fix('LGW 8', base + 8 * k - 1, last=True)
        if not nxt:
            pl.fix('LGW 8', base + 55, last=True)
    if nxt:
        for n in range(NTR):
            pl.fix(nxt[n], base + TBAR + 1 + (n * (63 - TBAR)) // NTR)


def plan_dma(pl, grp_adv, lo, t0, t1, hi):
    grp, adv = grp_adv
    prev = None
    for i, (pre, x) in enumerate(grp):
        t = t0 + (i * (t1 - t0)) // (len(grp) - 1)
        deps = [prev] if prev else []
        if pre:
            m = pl.add('\n'.join(pre), max(lo - 1, -1), t - 6, deps=deps, sep=0, hi=hi - (len(grp) - i))
            deps = [m]
        prev = pl.add(x, lo, t, deps=deps, hi=hi - (len(grp) - 1 - i))
    pl.add(adv, lo, t1 + 1, deps=[prev], sep=0)


def plan_softmax(pl, b, pairs, lo, t0, t1, hi_add=None, hi_cvt=lambda kg: None):
    it = softmax_items(b)
    pe = pa = None
    n = len(pairs)
    for k, q in enumerate(pairs):
        e0, e1, a0, cv, a1 = [x for _, x in it[5 * q:5 * q + 5]]
        ta = t0 + ((2 * k) * (t1 - t0)) // (2 * n)
        tb = t0 + ((2 * k + 1) * (t1 - t0)) // (2 * n)
        h = hi_cvt(q // 8)
        x0 = pl.add(e0, lo, ta, deps=[pe] if pe else [], hi=None if h is None else h - 2)
        x1 = pe = pl.add(e1, lo, tb, deps=[x0], hi=None if h is None else h - 1)
        y0 = pl.add(a0, lo, ta + 1, deps=[x0] + ([pa] if pa else []), hi=hi_add)
        pa = pl.add(a1, lo, tb + 1, deps=[x1, y0], hi=hi_add)
        pl.add(cv, lo, tb + 1, deps=[x1], hi=h)


def iteration(p, tag, masked):
    pl = Plan(128)
    pl.fix('LGW 8', -1)
    plan_reads(pl, 0, lambda f: kread(1 - p, f), lambda f: vread(p, f))
    plan_reads(pl, 64, lambda f: vread(p, f), lambda f: kread(p, f))
    pl.fix('LGW 8', 63, last=True)
    pl.fix('; PH', 127, last=True)
    for base in (0, 64):
        pl.fix('s_waitcnt vmcnt(16) lgkmcnt(0)\ns_barrier', base + 47)
    mk = []
    if masked:
        mk = [pl.fix('; MASK', 63)]
    plan_dma(pl, dma_phys(1, 1 - p), 0, 1, 44, 46)
    plan_dma(pl, dma_phys(0, KS(1 - p)), 65, 66, 108, 110)
    prev = {}
    mx = max_items(1 - p)
    for i, x in enumerate(mx):
        I = parse(x)
        kt = max((r[1] - S(1 - p, 0, 0)) // 8 for r in I.r if r[1] >= 64)
        lo = 64 if masked else 16 * kt + 15 + 5
        acc = I.w[0]
        prev[acc] = pl.add(x, lo, max(lo, 30 + 2 * i), deps=[prev[acc]] if acc in prev else [], sep=1, hi=D1 - 5)
    m = pl.add('v_max_f32 v23, v21, v22', 64, D1 - 4, deps=list(prev.values()), hi=D1 - 4)
    c = pl.add('v_cmp_lt_f32 vcc, s22, v23', 64, D1 - 3, deps=[m], hi=D1 - 3)
    pl.fix(f's_cbranch_vccnz {tag}_r1\n; SPLIT', D1, deps=[c])
    plan_softmax(pl, p, range(NPAIR1, 16), 0, 0, 60, hi_add=D1 - 1, hi_cvt=lambda kg: 61 + 32 * kg)
    plan_softmax(pl, 1 - p, range(NPAIR1), D1 + 1, D1 + 1, 124)
    pl.add('s_add_u32 s19, s19, 1', 80, 112)
    L = interleave(qk_mfmas(1 - p) + pv_mfmas(p), pl.run())
    if masked:
        k = L.index('; MASK')
        L[k:k + 1] = (switch_code() if masked == 2 else []) + mask_code(1 - p)
    elif VERB:
        print('iteration overflow', pl.over, 'instrs', len(L))
    return L


def wread(addr_lo, addr_hi, phys, off, f):
    v = addr_hi if phys >= 2 else addr_lo
    return [f'ds_read_b64_tr_b16 a[{RING(f) + 2 * u}:{RING(f) + 2 * u + 1}], v{v} offset:{(phys % 2) * 32768 + off + u * 2048}' for u in range(2)]


def wo_read(c, f): return wread(161 + f % 4, 165 + f % 4, CSLOT[c], (f // 4) * 4096, f)
def wq_read(st, f): return wread(16 + f % 8, 34 + f % 8, QSLOT[st], (f // 16) * 16384 + ((f % 16) // 8) * 256, f)


def norm_items(s):
    L = []
    for a in range(2):
        t = 4 + 8 * 0
        for h in range(2):
            L += [f'v_accvgpr_read_b32 v{t + 4 * h + e}, a{O(2 * s + h, a) + e}' for e in range(4)]
        L += [f'v_cvt_pk_bf16_f32 v{CT(a, s) + d}, v{t + 2 * d}, v{t + 2 * d + 1}' for d in range(4)]
    return L


def store_items(c):
    b = c % 2
    L = []
    n = 0
    for a in range(2):
        for mp in range(2):
            tb = (4, 8, 12, 28)[n]
            for h in range(2):
                r = OA(b, 2 * mp + h, a)
                L += [f'v_mul_f32 v{r + e}, v{r + e}, v{24 + a}' for e in range(4)]
                L.append(f'v_cvt_pk_bf16_f32 v{tb + 2 * h}, v{r}, v{r + 1}')
                L.append(f'v_cvt_pk_bf16_f32 v{tb + 2 * h + 1}, v{r + 2}, v{r + 3}')
            L.append(f'buffer_store_dwordx4 v[{tb}:{tb + 3}], v{58 if a else 16}, s[12:15], s46 offen offset:{mp * 1024}{WT}')
            n += 1
    L.append('s_add_u32 s46, s46, 2048')
    return L


def tail_code(N, asetup):
    T = ['VMWAIT V', 's_barrier']
    T += [vread(1, f) for f in range(9)]
    items = softmax_items(1)[5 * NPAIR1:]
    ex = [x for k, x in items if k == 'e']
    ot = [x for k, x in items if k != 'e']
    d2 = flat_group(dma_phys(0, CSLOT[2], 'c2'))
    T += d2 + ex[:2]
    for i in range(0, len(ex), 2):
        T += ex[i + 2:i + 4] + (['s_nop 0'] if i + 2 >= len(ex) else []) + ot[3 * (i // 2):3 * (i // 2) + 3]
    wo = lambda c: [x for f in range(32) for x in wo_read(c, f)]
    pl = Plan(64)
    pl.fix('LGW 8', -1)
    plan_reads(pl, 0, lambda f: vread(1, f), None)
    lred = []
    for aa in range(2):
        lred += xreduce(24 + aa, 'v_add_f32') + [f'v_rcp_f32 v{24 + aa}, v{24 + aa}']
    lred = [x for x in lred if not x.startswith('s_nop')]
    ch = pl.chain(lred, 0, 1, 36, sep=2)
    pl.fix('VMWAIT c0\ns_barrier', 47)
    plan_dma(pl, dma_phys(0, CSLOT[3], 'c3'), 48, 48, 62, 63)
    for n in range(NTR):
        pl.fix(wo(0)[n], 48 + n)
    NPRE = 2
    prev = []
    for s in range(NPRE):
        prev = pl.chain(norm_items(s), 41 + 4 * s, 41 + 10 * s, 50 + 11 * s, deps=prev[-1:])
    T.append('s_nop 1')
    T += interleave(pv_mfmas(1), pl.run())
    T.append('s_nop 1')
    for c in range(7):
        pl = Plan(64)
        sp = []
        for f in range(32):
            s, mt = f // 4, f % 4
            for aa in range(2):
                d = vr(OAm(c % 2, mt, aa), 4)
                sp.append(f'{MF} {d}, {ar(RING(f), 4)}, {vr(CT(aa, s), 4)}, {d if s else 0}')
        pl.fix('LGW 8', -1)
        plan_tr(pl, wo(c), wo(c + 1) if c < 6 else None)
        if c == 1:
            pl.fix('v_mov_b32 v60, 64', 46); pl.fix('global_load_dword v59, v60, s[52:53] sc1 ; tag=poll', 49)
        if c == 2:
            pl.fix(f'VMWAIT c3 poll\nv_readfirstlane_b32 s61, v59\ns_cmp_lt_u32 s61, 48\ns_cbranch_scc1 {N}_achk\n{N}_achkr:\ns_barrier', TBAR)
        elif c < 6:
            pl.fix(f'VMWAIT c{c + 1}\ns_barrier', TBAR)
        if c == 3:
            pl.chain(asetup, 0, 0, 60)
        if c in (4, 5):
            fl = attna4.first_loads()
            fl[-1] += ' ; tag=aq'
            per = (len(fl) + 1) // 2
            prev = None
            for i, x in enumerate(fl[(c - 4) * per:(c - 3) * per]):
                g = 1 + (5 * i) // 2
                prev = pl.add(x, g, g, deps=[prev] if prev else [], sep=0, hi=g)
        if 1 <= c <= 3:
            grp, adv = dma_phys(0, CSLOT[c + 3], f'c{c + 3}')
            for i, (pre, x) in enumerate(grp):
                for y in pre:
                    pl.fix(y, 6 * i + 1)
                pl.fix(x, 6 * i + 2)
            pl.fix(adv, 46)
        if c == 0:
            it = [x for s in range(NPRE, 8) for x in norm_items(s)]
            prev = None
            for i, x in enumerate(it):
                s = NPRE + i // 24
                g = min((i * 54) // len(it), 8 * s - 3)
                prev = pl.add(x, g, g, deps=[prev] if prev else [], sep=0, hi=g)
        else:
            prev = None
            si = store_items(c - 1)
            for i, x in enumerate(si):
                g = 5 + (i * 58) // len(si)
                prev = pl.add(x, 5, g - 4, deps=[prev] if prev else [], sep=0, hi=g if 'store' in x else 63)
        T += interleave(sp, pl.run())
    T += ['s_nop 7'] + store_items(6) + ['s_cmp_eq_u32 s59, 0', f's_cbranch_scc1 {N}_end', 'VMWAIT aq']
    T, _ = resolve_lgw(T, [])
    T, _ = fix_vm(T, ['c0'] * 8 + ['V'] * 8 + ['c1'] * 8)
    return T


def OAm(b, mt, a): return 192 + 32 * b + 8 * mt + 4 * a
OA = OAm


PKBASE = {g: ('v', 128 + 32 * g) for g in range(4)}


def pack_code(vtype, fix):
    from gemm1 import acc
    L = []
    for g in (2, 3, 1, 0):
        for n in (range(7, -1, -1) if g == 1 else range(8)):
            t0, t1 = (16 * g + n, 16 * g + n + 8) if vtype else (16 * g + 2 * n, 16 * g + 2 * n + 1)
            src = []
            for t in (t0, t1):
                k, r = acc(t // 8, t % 8)
                for e in range(4):
                    if k == 'a':
                        L.append(f'v_accvgpr_read_b32 v{2 + len(src)}, a{r + e}')
                        L.append(f'v_accvgpr_write_b32 a{r + e}, 0')
                        src.append(f'v{2 + len(src)}')
                    else:
                        src.append(f'v{r + e}')
            if fix and not vtype:
                L += [f'v_mul_f32 {x}, s78, {x}' for x in src]
            tb = PKBASE[g][1] + 4 * n
            for d in ((3, 2, 1, 0) if g == 1 else range(4)):
                L.append(f'v_cvt_pk_bf16_f32 v{tb + d}, {src[2 * d]}, {src[2 * d + 1]}')
            if fix and vtype and n % 2 == 1:
                L += [f'v_and_or_b32 v{tb + d}, v{tb + d}, v43, v44' for d in range(4)]
            if fix and not vtype:
                L += [f'v_and_b32 v{tb + d}, v{tb + d}, v43' for d in (2, 3)]
    L += ['s_mov_b32 s43, 4096', f's_mov_b32 s44, {4096 ^ 12288}'] if vtype else ['s_mov_b32 s43, 8192', 's_mov_b32 s44, 0']
    if vtype:
        L += ['s_mov_b32 s73, s28', 's_mov_b32 s74, s27', 's_lshl_b32 s76, s27, 1', 's_mov_b32 s27, s29']
    else:
        L += ['s_mov_b32 s73, s29', 's_lshl_b32 s74, s29, 1', 's_mov_b32 s76, s28']
    L += ['s_mov_b32 s72, 0', 's_add_u32 s75, s74, s73', 's_add_u32 s77, s76, s73', 's_add_u32 s78, s76, s74', 's_add_u32 s79, s76, s75']
    return L


def pk_stores():
    L = []
    for g in (0, 1, 2, 3):
        dk, db = PKBASE[g]
        for n in range(8):
            pre = ['s_add_u32 s26, s26, s27'] if (n == 0 and g) else []
            L.append(pre + [f's_add_u32 s31, s26, s{72 + n}',
                            f'buffer_store_dwordx4 {R((dk, db + 4 * n), 4)}, v42, s[12:15], s31 offen{WT} ; tag=st'])
    return L


STAMPS = False
def SA(k): return stamp_at(k) if STAMPS else []
def SB(k): return [] if PROST else SA(k)


def qw_reads():
    return [f'ds_read_b64_tr_b16 a[{QRING(f) + 2 * u}:{QRING(f) + 2 * u + 1}], v{16 + f % 8} offset:{(f // 16) * 16384 + ((f % 16) // 8) * 256 + u * 2048}'
            for f in range(32) for u in range(2)]


def qx_reads(ks): return [f'ds_read_b128 {ar(8 * ks + 4 * a, 4)}, v{32 + ks} offset:{a * 2048}' for a in range(2)]


def qproj_head(N):
    L = []
    a = L.append
    a('s_lshl_b32 s61, s67, 8')
    for j in range(8):
        a(f'v_subrev_u32 v{16 + j}, s61, v{34 + j}')
        a(f'v_add_u32 v{34 + j}, 0xffff0000, v{16 + j}')
    L += ['v_and_b32 v2, 15, v1', 'v_lshrrev_b32 v3, 1, v2', 'v_lshrrev_b32 v4, 4, v1', 'v_xor_b32 v3, v3, v4', 'v_lshlrev_b32 v3, 4, v3',
          'v_lshl_add_u32 v3, v2, 7, v3', 'v_add_u32 v43, s25, v3', 'v_xor_b32 v44, 64, v43',
          'v_add_u32 v32, 98304, v43', 'v_add_u32 v33, 98304, v44', 's_mov_b32 s42, 0']
    a('s_cmp_ge_u32 s55, 24'); a(f's_cbranch_scc1 {N}_early'); a(f'{N}_late:')
    early = [f'{N}_early:', 's_waitcnt vmcnt(12)'] + [x for grp in pk_stores() for x in grp]
    early += ['s_waitcnt vmcnt(0)', 's_barrier', 's_mov_b32 s42, 128', 's_cmp_eq_u32 s20, 0', f's_cbranch_scc0 {N}_late'] + signal_code('s3') + [f's_branch {N}_late']
    a('s_lshl_b32 s21, s41, 1'); a('s_add_u32 s6, s21, 2'); a('s_lshl_b32 s6, s6, 15')
    a('s_lshl_b32 s61, s56, 20'); a('s_add_u32 s4, s12, s61'); a('s_addc_u32 s5, s13, 0')
    a('s_sub_u32 s4, s4, 16384'); a('s_subb_u32 s5, s5, 0'); a('s_add_u32 s6, s6, 16384')
    a('s_mov_b32 s16, 16384'); a('s_mov_b32 s17, 0')
    a('v_lshlrev_b32 v2, 4, v1'); a('v_add_u32 v56, s18, v2'); a('v_add_u32 v57, 4096, v56')
    for i in range(8):
        a(f'v_mov_b32 v{48 + i}, v{56 + i // 4}')
    L += ['s_xor_b32 s28, s18, 16384', 's_xor_b32 s29, s25, 8192', 's_mov_b32 s33, 0', 's_mov_b32 s34, 65536', 's_mov_b32 s35, 0',
          's_mov_b32 s36, 98304', 's_mov_b32 s37, 16384',
          's_cmp_ge_u32 s20, 2', 's_cselect_b32 s38, 0x18, 0x07', 's_cselect_b32 s40, 0x31, 0x0f', 's_cselect_b32 s47, -1, 1',
          f's_mul_i32 s45, s47, {32 * 8192}', f's_mul_i32 s46, s47, {64 * 896}', 's_lshl_b32 s47, s47, 14']
    L += SB(1)
    a('VMWAIT x0')
    a('s_barrier')
    L += SB(2)
    L += qx_reads(0)
    L += flat_group(dma_x(2))
    L += qw_reads()[:NTR]
    L += ['s_cmp_lt_u32 s20, 2', f's_cbranch_scc1 {N}_qD']
    return L, early


def qproj_body(N, kind):
    pl = Plan(64)
    sp = []
    for f in range(32):
        ks, dt = f // 16, f % 16
        for aa in range(2):
            d = ar(QACC(dt, aa), 4)
            sp.append(f'{MF} {d}, {ar(QRING(f), 4)}, {ar(8 * ks + 4 * aa, 4)}, {d}')
    pl.fix('LGW 8', -1)
    qr = qw_reads()
    plan_tr(pl, qr, qr)
    for i, x in enumerate(qx_reads(1)):
        pl.fix(x, i)
    cw = sum(q << (4 * i) for i, q in enumerate([6, 0, 4, 6, 0, 4, 6]))
    cx = sum(q << (4 * i) for i, q in enumerate([7, 0, 1, 6, 7, 0, 1]))
    nx = pl.chain(['s_lshl_b32 s24, s33, 2', f's_lshr_b32 s32, {hex(cw)}, s24', f's_lshr_b32 s39, {hex(cx)}, s24', 's_and_b32 s32, s32, 15', 's_and_b32 s39, s39, 15',
                   's_lshl_b32 s39, s39, 14', 'v_add_u32 v32, s39, v43', 'v_add_u32 v33, s39, v44', 's_lshl_b32 s32, s32, 14'], 3, 3, 26)
    for i, it in enumerate(nx):
        it.hi = 14 + 2 * i
    for j in range(8):
        pl.add(f'v_add_u32 v{16 + j}, s32, v{34 + j}', 35 + 2 * j, 35 + 2 * j, deps=[nx[-1]], hi=TBAR - 1)
    if kind == 'D':
        g = 2
        for so, dl, m0s, prv, srd, regs, n in (('s19', 's45', ('s18', 's28'), 's35', 's[8:11]', [24 + i for i in range(8)], 8),
                                               ('s65', 's46', ('s25', 's29'), 's37', 's[68:71]', XV, 4)):
            for w in range(2):
                for i in range(n):
                    pre = []
                    if i == 0 and w:
                        pre.append(f's_add_u32 s30, {so}, {dl}')
                    if i % 4 == 0:
                        pre.append(f's_add_u32 m0, {m0s[w]}, {prv}' if i == 0 else 's_add_u32 m0, m0, 4096')
                    if pre:
                        pl.fix('\n'.join(pre), g - 1, last=True)
                    pl.fix(f'buffer_load_dwordx4 v{regs[i]}, {srd}, {"s30" if w else so} offen offset:{(i % 4) * 1024} lds', g)
                    g += 2
        pl.chain([f'v_accvgpr_write_b32 a{r}, 0' for r in range(16, 28)], 4, 12, 50)
        cnt = 24
    else:
        for k in range(6):
            g = 2 + 8 * k
            T = 64 + 8 * (k % 2)
            pre = 's_cmp_lt_u32 s42, 128\ns_cselect_b32 s31, s26, 0x7ff00000\n' if k % 2 == 0 else ''
            pl.fix(pre + 's_set_gpr_idx_on s42, gpr_idx(SRC0)\n' + '\n'.join(f'v_mov_b64 {vr(T + 2 * i, 2)}, {vr(128 + 2 * i, 2)}' for i in range(4)) +
                   '\ns_set_gpr_idx_off', g, last=True)
            pl.fix('s_add_u32 s42, s42, 8', g + 1, last=True)
            for e in range(2):
                pl.fix(f'buffer_store_dwordx4 {vr(T + 4 * e, 4)}, v42, s[12:15], s31 offen offset:{(2 * (k % 2) + e) * 1024}{WT}', g + 2 + 3 * e)
            if k % 2:
                pl.fix('s_add_u32 s26, s26, s43', g + 6, last=True); pl.fix('s_xor_b32 s43, s43, s44', g + 7)
        pl.fix('s_min_u32 s42, s42, 128', 50, last=True)
        cnt = 12
    pl.fix('s_bitcmp0_b32 s40, s33', TBAR - 1, last=True)
    pl.fix(f's_cbranch_scc1 {N}_q{kind}nw\ns_waitcnt vmcnt({cnt})\n{N}_q{kind}nw:\ns_waitcnt vmcnt(36) lgkmcnt(0)\ns_barrier\n' + '\n'.join(qx_reads(0)), TBAR)
    pl.chain(['s_add_u32 s19, s19, s23', 's_add_u32 s65, s65, 128', 's_mov_b32 s35, s34', 's_mov_b32 s34, s32', 's_mov_b32 s37, s36', 's_mov_b32 s36, s39',
              's_add_u32 s33, s33, 1'], TBAR + 1, TBAR + 1, 61)
    pl.fix('s_cmp_ge_u32 s33, 5', 63, last=True)
    L = interleave(sp, pl.run())
    if VERB:
        print('qproj body', kind, 'overflow', pl.over, 'instrs', len(L))
    return L


def qproj_loop(N, pend):
    S_, pe = resolve_lgw(qproj_body(N, 'S'), pend)
    D_, pe2 = resolve_lgw(qproj_body(N, 'D'), pend)
    assert pe == pend and pe2 == pend
    k0 = []
    for w in range(2):
        for i in range(8):
            if i % 4 == 0:
                k0 += [f's_add_u32 m0, {"s28" if w else "s18"}, {KS(0) * 32768 + (i // 4) * 4096}', 's_nop 0']
            k0.append(f'buffer_load_dwordx4 v{48 + i}, s[4:7], {"s30" if w else "s16"} offen offset:{(i % 4) * 1024}{LD} lds')
    glue5 = [f's_add_u32 s8, s4, {VF + 16384}', 's_addc_u32 s9, s5, 0', 's_sub_u32 s10, s6, 16384', 's_cmp_lt_u32 s20, 2', f's_cbranch_scc1 {N}_qS',
             's_lshl_b32 s61, s56, 2', 'v_mov_b32 v3, s61', 'global_load_dword v2, v3, s[52:53] sc1']
    glue6 = ['v_readfirstlane_b32 s61, v2', 's_add_u32 s30, s16, s47', 's_and_b32 s61, s61, 255', 's_cmp_lt_u32 s61, 4', f's_cbranch_scc1 {N}_chk', f'{N}_chkr:'] + k0
    rare = [f'{N}_chk:'] + spin_code(N + '_q', 'v2', 'v3', 4, 255) + [f's_branch {N}_chkr']
    conv = ['s_add_u32 s16, s16, 32768', f's_mov_b32 s60, {f32bits(LOG2E / 16)}', 's_mov_b32 s61, s60',
            'v_lshlrev_b32 v16, 4, v1', 'v_add_u32 v17, 0x10000, v16', 'v_add_u32 v58, 14336, v16',
            'v_lshrrev_b32 v2, 4, v1', 'v_lshlrev_b32 v2, 2, v2', 'v_and_b32 v3, 15, v1', 'v_sub_u32 v20, v2, v3',
            f's_mov_b32 s22, {TH}', 's_lshl_b32 s24, s20, 5', 's_mov_b32 s19, 1', 's_mov_b32 s26, 32768']
    for s in range(8):
        for aa in range(2):
            t = 72 + 8 * ((2 * s + aa) % 2)
            conv += [f'v_accvgpr_read_b32 v{t + 8 + e}, a{QACC(2 * s + e // 4, aa) + e % 4}' for e in range(8)]
            conv += [f'v_pk_mul_f32 {vr(t + 8 + 2 * d, 2)}, {vr(t + 8 + 2 * d, 2)}, s[60:61]' for d in range(4)]
            conv += [f'v_cvt_pk_bf16_f32 v{Q(aa, s) + d}, v{t + 8 + 2 * d}, v{t + 9 + 2 * d}' for d in range(4)]
    conv += SB(10) + ['s_cmp_lt_u32 s20, 2', f's_cbranch_scc1 {N}_k0w', 's_waitcnt vmcnt(12)', f'{N}_k0w:', 's_waitcnt vmcnt(36) lgkmcnt(0)', 's_barrier'] + SB(11)
    code = ([f'{N}_qS:'] + S_ + [f's_cbranch_scc1 {N}_qG', f'{N}_qN:', 's_bitcmp1_b32 s38, s33', f's_cbranch_scc0 {N}_qS',
             f'{N}_qD:'] + D_ + [f's_cbranch_scc0 {N}_qN',
             f'{N}_qG:', 's_cmp_eq_u32 s33, 6', f's_cbranch_scc1 {N}_qG6', 's_cmp_eq_u32 s33, 7', f's_cbranch_scc1 {N}_qX'] + glue5 + [f's_branch {N}_qS',
             f'{N}_qG6:', 's_cmp_lt_u32 s20, 2', f's_cbranch_scc1 {N}_qS'] + glue6 + [f's_branch {N}_qS', f'{N}_qX:'] + conv)
    nw = lambda X: [x for x in X if not (x.startswith('s_waitcnt vmcnt') and 'lgkm' not in x)]
    trL = D_ * 3 + S_ + nw(S_) + glue5[:3] + nw(S_) * 2 + nw(conv)
    trH = S_ + nw(S_) * 2 + nw(D_) + D_ + glue5 + S_ + glue6 + nw(S_) + conv
    return code, rare, trL, trH


def qproj_tail(N):
    L, rare = [], []
    a = L.append
    pl = Plan(64)
    L += [kread(0, f) for f in range(9)]
    pl.fix('LGW 8', -1)
    plan_reads(pl, 0, lambda f: kread(0, f), None)
    pl.fix('LGW 16', 47, last=True)
    plan_dma(pl, dma_phys(0, KS(1), 'k1'), 0, 1, 28, 40)
    plan_dma(pl, dma_phys(1, 0, 'v0'), 30, 31, 60, 62)
    zl = [f'v_accvgpr_write_b32 a{r}, 0' for r in list(range(16)) + list(range(28, 128))]
    fl = []
    fl += ['s_lshl_b32 s44, s56, 2', 'v_mov_b32 v60, s44']
    fl += ['s_lshl_b32 s44, s41, 3', 's_lshl_b32 s45, s20, 1', 's_add_u32 s44, s44, s45',
           's_lshl_b32 s46, s56, 7', 's_add_u32 s46, s46, s44', 's_mul_i32 s46, s46, 14336', f's_add_u32 s46, s46, {PART}',
           f's_mul_i32 s47, s56, {256 * 896}', 's_add_u32 s48, s48, s47', 's_addc_u32 s49, s49, 0',
           'v_lshrrev_b32 v2, 3, v1', 's_lshl_b32 s47, s20, 6', 'v_add_u32 v2, s47, v2', 'v_mul_u32_u24 v2, 896, v2',
           'v_lshrrev_b32 v3, 4, v1', 'v_lshlrev_b32 v4, 1, v3', 'v_and_b32 v5, 7, v1', 'v_xor_b32 v4, v4, v5',
           'v_lshl_add_u32 v160, v4, 4, v2',
           'v_bfe_u32 v4, v1, 2, 2', 'v_lshl_add_u32 v5, v3, 2, v4', 'v_lshrrev_b32 v6, 1, v5', 'v_and_b32 v6, 3, v6',
           'v_lshlrev_b32 v5, 7, v5', 'v_lshl_add_u32 v5, v6, 5, v5', 'v_and_b32 v6, 3, v1', 'v_lshl_add_u32 v161, v6, 3, v5']
    fl += [f'v_xor_b32 v{161 + j}, {32 * j}, v161' for j in range(1, 4)] + [f'v_add_u32 v{165 + j}, 0x10000, v{161 + j}' for j in range(4)]
    k = fl.index('s_add_u32 s48, s48, s47')
    fl[k:k + 2] = ['\n'.join(fl[k:k + 2])]
    pl.chain(fl + zl[:NZERO], 0, 0, 62)
    L += interleave(qk_mfmas(0, True), pl.run())
    a('s_barrier')
    a('s_cmp_lg_u32 s21, 0')
    a(f's_cbranch_scc1 {N}_nomask0')
    L += switch_code() + mask_code(0)
    a(f'{N}_nomask0:')
    L += flat_group(dma_phys(0, KS(0), 'k2'))
    L += zl[NZERO:] + ['s_nop 7']
    L += max_items(0) + r1_code(0, True)
    for k, x in softmax_items(0)[:5 * NPAIR1]:
        a(x)
        if k == 'e':
            a('s_nop 0')
    a('s_waitcnt vmcnt(16)')
    a('s_barrier')
    L += ['s_cmp_eq_u32 s20, 0', f's_cbranch_scc0 {N}_sig2r', 's_cmp_ge_u32 s55, 24', f's_cbranch_scc1 {N}_sig2r'] + signal_code('s3', 256) + [f'{N}_sig2r:']
    L += [kread(1, f) for f in range(9)]
    return L, rare


def pre_issue(full):
    L = ['s_waitcnt lgkmcnt(0)', f's_load_dwordx2 s[68:69], s[0:1], {B_X}', f's_load_dwordx2 s[48:49], s[0:1], {B_WO}']
    if full:
        L += [f's_load_dwordx2 s[8:9], s[0:1], {B_WQ}', 's_mov_b32 s33, 8192', 's_mov_b32 s34, 64', 's_lshl_b32 s17, s56, 9'] + voff_w()[:-1]
    L += ['s_lshl_b32 s18, s20, 13', 's_lshr_b32 s41, s55, 1', 's_sub_u32 s41, 15, s41', f's_mul_i32 s61, s41, {128 * 896}',
          f's_mov_b32 s70, {192 * 896}', 's_lshl_b32 s25, s20, 12', 's_add_u32 s25, s25, 32768', f's_mov_b32 s65, {64 * 896}',
          'v_lshrrev_b32 v2, 3, v1', 's_lshl_b32 s64, s20, 5', 'v_add_u32 v2, s64, v2', 'v_mul_u32_u24 v2, 896, v2',
          'v_and_b32 v3, 7, v1', 'v_lshrrev_b32 v4, 4, v1', 'v_xor_b32 v3, v3, v4', 'v_lshlrev_b32 v3, 4, v3', 'v_xor_b32 v4, 64, v3',
          f'v_add_u32 v{XV[0]}, v2, v3', 'v_add_u32 v4, v2, v4', f'v_add_u32 v{XV[1]}, {8 * 896 - 1024}, v4',
          f'v_add_u32 v{XV[2]}, {16 * 896 - 2048}, v{XV[0]}', f'v_add_u32 v{XV[3]}, {24 * 896 - 3072}, v4',
          's_waitcnt vmcnt(0) lgkmcnt(0)' if False else 's_waitcnt lgkmcnt(0)', 's_add_u32 s68, s68, s61', 's_addc_u32 s69, s69, 0',
          f's_sub_u32 s68, s68, {64 * 896}', 's_subb_u32 s69, s69, 0']
    if full:
        L += ['s_add_u32 s8, s8, s17', 's_addc_u32 s9, s9, 0', f's_sub_u32 s10, {448 * 8192}, s17']
        L += flat_group(dma_wq(QSLOT[0], 'w0')) + flat_group(dma_wq(QSLOT[1], 'w1'))
    L += flat_group(dma_x(0)) + flat_group(dma_x(1))
    L += ['s_mul_i32 s86, s87, 3'] + [PFQ, 's_add_u32 s86, s86, s87'] * 4
    return L


PF2I = 'buffer_load_dword v45, v47, s[80:83], s86 offen'


def gemm_half(vt, p, tag, mode='loop'):
    pl = Plan(128)
    hook = ['s_cmp_eq_u32 s21, s39', 's_waitcnt vmcnt(2) lgkmcnt(0)\ns_barrier']
    ent = mode == 'ent'
    lo = 64 if ent else 0
    if not ent:
        pl.fix(f's_cbranch_scc1 {tag}_hk{p}\n{tag}_hkr{p}:', 0)
        pl.chain(reads(0, 1 - p, 0), 1, 1, 50, sep=1)
        pl.chain([f'v_accvgpr_write_b32 a{192 + 32 * p + r}, 0' for r in range(32)], 3, 3, 58)
        pl.fix('s_cmp_eq_u32 s21, s38', 62, last=True)
        pl.fix(f's_cbranch_scc1 {tag}_epi\ns_add_u32 s21, s21, 1\ns_waitcnt lgkmcnt(0)\n; CUT', 63)
    pl.chain(reads(1, 1 - p, 1), 64, 64, 112, sep=1)
    prev = None
    dm = dmas(p)
    for n, (pre, x) in enumerate(dm):
        t = lo + 2 + (3 * n if ent else GDMA * n)
        if 60 <= t <= 64:
            t = 65
        deps = [prev] if prev else []
        if pre:
            deps = [pl.add(pre[0], max(lo + 1, t - 3), t - 6, deps=deps, sep=0, hi=t - 1 if t - 1 not in (62, 63) else 61)]
        prev = pl.add(x, t, t, deps=deps, hi=t + 1 if t + 1 < 62 or t > 64 else t)
    t = prev.tgt
    pl.add('s_add_u32 s18, s18, 128', t + 1, t + 1, deps=[prev], hi=120)
    pl.add('s_add_u32 s19, s19, s23', t + 1, t + 1, deps=[prev], hi=120)
    q1 = pl.add(PFI, t + 3, t + 3, deps=[prev], hi=118)
    q2 = pl.add(PFI if ent else PF2I, t + 6, t + 6, deps=[q1], hi=121)
    if not ent:
        pl.add('s_add_u32 s72, s72, s73', t + 4, t + 4, deps=[q1], hi=124)
        pl.add('s_add_u32 s86, s86, s87', t + 7, t + 7, deps=[q2], hi=124)
    pl.fix(hook[0], 126, last=True)
    pl.fix(hook[1], 127)
    L = interleave(mfmas(vt, 1) + mfmas(vt, 0, mode != 'loop'), pl.run())
    if ent:
        mf = [i for i, x in enumerate(L) if 'mfma' in x]
        return ['s_waitcnt lgkmcnt(0)'] + L[mf[64]:]
    k = L.index('; CUT')
    if mode == 'z':
        return ['s_waitcnt lgkmcnt(0)'] + L[k + 1:]
    return L[:k], L[k + 1:]


def gen(dma_gap=5, stamps=False, pfd=3):
    gemm1.STMOD = WT + ' ; tag=st'
    global STAMPS
    STAMPS = stamps
    N = NAME
    P_ = []
    a = P_.append
    a('s_cmp_ge_u32 s2, 256')
    a(f's_cbranch_scc1 {N}_exit')
    if stamps:
        P_ += stamp_begin()
    a(f's_load_dwordx4 s[44:47], s[0:1], {B_X}')
    a(f's_load_dwordx4 s[48:51], s[0:1], {B_WQ}')
    a(f's_load_dwordx2 s[52:53], s[0:1], {B_WUV}')
    a(f's_load_dwordx4 s[40:43], s[0:1], {A_X}')
    a(f's_load_dwordx2 s[12:13], s[0:1], {WS}')
    a('v_lshrrev_b32 v2, 6, v0')
    a('v_and_b32 v1, 63, v0')
    a('s_mov_b32 s7, 0x20000')
    a('v_readfirstlane_b32 s20, v2')
    a('s_mov_b32 s11, 0x20000'); a('s_mov_b32 s15, 0x20000'); a('s_mov_b32 s71, 0x20000')
    a(f's_mov_b32 s14, {PART_END}')
    a('s_and_b32 s54, s2, 7'); a('s_lshr_b32 s55, s2, 3')
    a('s_and_b32 s56, s55, 1'); a('s_lshl_b32 s57, s54, 1'); a('s_add_u32 s56, s56, s57')
    a('s_lshl_b32 s24, s20, 13'); a('s_add_u32 s25, s24, 65536')
    a('s_lshr_b32 s66, s20, 1'); a('s_and_b32 s67, s20, 1')
    a('s_mov_b32 s32, 2048'); a('s_mov_b32 s33, 8192'); a('s_mov_b32 s34, 64')
    vx, vw = voff_x(), voff_w()
    P_ += vx[:-1] + vw[:-1]
    a('s_waitcnt lgkmcnt(0)')
    if stamps and PROST:
        P_ += stamp_init() + SA(0)
    P_ += dec_kv_x() + dec_kv_w() + vx[-1:] + vw[-1:]
    a(f's_load_dwordx2 s[52:53], s[0:1], {DBG}')
    PF_MARK = len(P_)
    a('s_and_b32 s76, s55, 3'); a('s_lshl_b32 s76, s76, 6')
    P_ += pf_setup(N, 'pf0', 's32', 's33', ('s4', 's5'), ('s8', 's9'), 's16', 's17', 's3', 's76', '31')
    a('s_mov_b32 s72, 0')
    for d in range(pfd + 2):
        a(PFI); a('s_add_u32 s72, s72, s73')
    a('v_lshrrev_b32 v4, 4, v1')
    a('v_and_b32 v2, 15, v1'); a('v_lshrrev_b32 v3, 1, v2'); a('v_xor_b32 v3, v3, v4'); a('v_lshlrev_b32 v3, 4, v3')
    a('v_lshl_add_u32 v3, v2, 7, v3'); a('s_lshl_b32 s61, s66, 14'); a('v_add_u32 v32, s61, v3'); a('v_xor_b32 v33, 64, v32')
    a('v_lshrrev_b32 v3, 2, v2'); a('v_lshl_add_u32 v5, v4, 3, v3'); a('v_lshlrev_b32 v5, 9, v5'); a('v_and_b32 v6, 1, v4')
    a('v_lshl_add_u32 v6, v6, 2, v3'); a('v_lshl_add_u32 v5, v6, 5, v5'); a('v_and_b32 v6, 3, v1'); a('v_lshl_add_u32 v5, v6, 3, v5')
    a('s_lshl_b32 s61, s67, 8'); a('s_add_u32 s61, s61, 65536'); a('v_add_u32 v34, s61, v5')
    for j in range(1, 8):
        a(f'v_xor_b32 v{34 + j}, {32 * j}, v34')
    a('s_mov_b32 s38, 17'); a('s_mov_b32 s35, 0'); a('s_mov_b32 s78, 1.0'); a('v_mov_b32 v43, -1')
    a('s_mov_b32 s39, 14')
    a('s_cmp_ge_u32 s55, 26'); a(f's_cbranch_scc1 {N}_jobA')
    a('s_mov_b32 s89, 0')
    a('s_lshr_b32 s57, s55, 1'); a('s_sub_u32 s64, 15, s57'); a('s_and_b32 s57, s57, 7')
    a('s_mov_b32 s76, 0'); a('s_mov_b32 s77, 63')
    a(f's_mul_i32 s61, s64, {128 * 896}')
    a('s_add_u32 s40, s44, s61'); a('s_addc_u32 s41, s45, 0'); a(f's_mov_b32 s42, {128 * 896}')
    a('s_lshl_b32 s61, s56, 9')
    a('s_add_u32 s44, s48, s61'); a('s_addc_u32 s45, s49, 0'); a(f's_sub_u32 s48, {448 * 8192}, s61')
    a('s_mov_b32 s43, 8192'); a('s_mov_b32 s49, 64')
    a('s_lshl_b32 s3, s56, 2')
    a(f's_branch {N}_dec_done')
    a(f'{N}_jobA:')
    a('s_mov_b32 s89, 1'); a('s_mov_b32 s3, 64')
    a('s_mov_b32 s57, s54')
    a('s_sub_u32 s64, s55, 26')
    a('s_and_b32 s76, s64, 3'); a('s_lshl_b32 s76, s76, 6'); a('s_mov_b32 s77, 31')
    a('s_mul_i32 s61, s64, 448')
    a('s_add_u32 s44, s42, s61'); a('s_addc_u32 s45, s43, 0'); a(f's_sub_u32 s48, {448 * 2688}, s61')
    a(f's_mul_i32 s61, s57, {256 * 896}')
    a('s_add_u32 s40, s40, s61'); a('s_addc_u32 s41, s41, 0'); a(f's_sub_u32 s42, {2048 * 896}, s61')
    a('s_mov_b32 s43, 2688'); a('s_mov_b32 s49, 56')
    a('s_lshl_b32 s58, s64, 20'); a(f's_add_u32 s58, s58, {QA}'); a('s_lshl_b32 s61, s57, 14'); a('s_add_u32 s58, s58, s61')
    a('s_lshl_b32 s61, s66, 13'); a('s_add_u32 s58, s58, s61'); a('s_lshl_b32 s61, s67, 19'); a('s_add_u32 s58, s58, s61')
    a('s_mov_b32 s35, 1'); a('s_mov_b32 s60, 256')
    a('s_mov_b32 s63, 1'); a('s_mov_b32 s59, 131072'); a('s_mov_b32 s62, 2048')
    a('s_cmp_ge_u32 s64, 4'); a(f's_cbranch_scc1 {N}_dec_done')
    a('s_mov_b32 s63, 0'); a('s_mov_b32 s59, 2048'); a('s_mov_b32 s62, 131072')
    a(f's_mov_b32 s78, {f32bits(LOG2E * 28 ** -0.5)}')
    a('s_cmp_lt_u32 s64, 2'); a(f's_cbranch_scc1 {N}_dec_done')
    a('s_mov_b32 s78, 1.0'); a('s_mov_b32 s35, 2'); a('s_mov_b32 s60, 128')
    a(f'{N}_dec_done:')
    a('s_cmp_eq_u32 s2, 255'); a(f's_cbranch_scc0 {N}_noclr')
    a('v_and_b32 v2, 31, v1'); a('v_lshlrev_b32 v2, 7, v2'); a(f'v_add_u32 v2, {FLG}, v2'); a('v_mov_b32 v3, 0')
    a(f'global_store_dword v2, v3, s[12:13]{WT}')
    a(f'{N}_noclr:')
    a('s_mov_b32 s50, 896')
    if stamps:
        P_ += stamp_init()
    if STARTPF:
        a(f's_waitcnt vmcnt({pfd + 1 - (STARTPF - 1)})')
    d0 = dmas(0)
    D0 = []
    for pre, x in d0[8:] + d0[:8]:
        for y in pre:
            D0 += [y, 's_nop 0']
        D0.append(x)
    D0 += ['s_add_u32 s18, s18, 128', 's_add_u32 s19, s19, s23']
    if stamps and PROST:
        D0 = D0 + SA(1)
    if STARTPF:
        P_ += D0
    else:
        P_[PF_MARK:PF_MARK] = D0
    warm = pf_setup(N, 'pfw', 's50', 's43', ('s40', 's41'), ('s44', 's45'), 's42', 's48', 's57', 's76', 's77')
    ren = {'s68': 's80', 's69': 's81', 's70': 's82', 's75': 's82', 's73': 's87', 'v46': 'v47'}
    for x in warm:
        for k_, v_ in ren.items():
            x = re.sub(rf'\b{k_}\b', v_, x)
        a(x)
    a('s_mov_b32 s83, 0x20000'); a('s_mul_i32 s86, s87, -4')
    P_ += epi_kv(N, 'e0')
    a('s_mov_b32 s21, 2')
    if TOUCH:
        P_ += ['s_mov_b64 exec, 0', 's_cmp_eq_u32 s20, 1', f's_cbranch_scc1 {N}_qproj', 's_cmp_eq_u32 s20, 2', f's_cbranch_scc1 {N}_qH',
               's_cmp_eq_u32 s20, 3', f's_cbranch_scc1 {N}_qT', 's_cmp_eq_u32 s37, 0', f's_cbranch_scc1 {N}_t0_epi', f's_branch {N}_t1_epi',
               f'{N}_warm:', 's_mov_b64 exec, -1']
    PAD = [f's_cbranch_execz {N}_warm'] if TOUCH else []
    a('s_cmp_eq_u32 s37, 0')
    a(f's_cbranch_scc0 {N}_t1_entry')
    ENT = [f's_waitcnt vmcnt({pfd + 2}) lgkmcnt(0)', 's_barrier'] + reads(0, 0, 0)
    out = list(P_)
    P_ = [x for x in P_ if 'exec' not in x] + ENT
    far = []

    def hk_near(lab):
        return ['s_cmp_eq_u32 s21, 14', f's_cbranch_scc0 {lab}_b', 's_mov_b32 s86, 0', 's_mov_b32 s70, 0', 's_mov_b32 s39, 16', f's_branch {lab}_r',
                f'{lab}_b:', 's_cmp_eq_u32 s89, 0', f's_cbranch_scc0 {lab}_far',
                's_mov_b32 s8, s44', 's_mov_b32 s9, s45', 's_mov_b32 s10, s48', 's_mov_b32 s6, 0', 's_mov_b32 s19, 0', f's_branch {lab}_r']

    def hk_far(lab):
        return (['s_cmp_eq_u32 s21, 16', f's_cbranch_scc0 {lab}_c',
                 's_mov_b32 s4, s40', 's_mov_b32 s5, s41', 's_mov_b32 s32, 896', 's_mov_b32 s16, s42',
                 's_mov_b32 s8, s44', 's_mov_b32 s9, s45', 's_mov_b32 s17, s48', 's_mov_b32 s33, s43', 's_mov_b32 s34, s49',
                 's_mov_b32 s39, 18'] + voff_x() + voff_w() + [f's_branch {lab}_r',
                 f'{lab}_c:', 's_cmp_eq_u32 s21, 18', f's_cbranch_scc0 {lab}_d', 's_mov_b32 s39, 23',
                 's_cmp_eq_u32 s20, 0', f's_cbranch_scc0 {lab}_r', 's_lshl_b32 s61, s56, 2'] + signal_code('s61') + [f's_branch {lab}_r',
                 f'{lab}_d:', 's_mov_b32 s6, 0', 's_mov_b32 s10, 0', 's_mov_b32 s82, 0', f's_branch {lab}_r'])

    nx = ['s_mov_b32 s26, s58', 's_mov_b32 s27, s59', 's_mov_b32 s28, s60', 's_mov_b32 s29, s62', 's_mov_b32 s37, s63',
          's_mov_b32 s79, 1', 's_mov_b32 s38, 24', 's_add_u32 s21, s21, 1',
          'v_lshrrev_b32 v4, 4, v1', 'v_and_b32 v2, 15, v1',
          'v_lshlrev_b32 v42, 9, v4', 'v_lshl_add_u32 v42, v2, 4, v42',
          's_cmp_eq_u32 s35, 1', f's_cbranch_scc1 {N}_lm1',
          'v_and_b32 v5, 8, v1', 'v_lshl_add_u32 v42, v5, 4, v42',
          f'{N}_lm1:', 'v_mov_b32 v44, 0', 's_cmp_eq_u32 s37, 0', 's_cselect_b32 s61, 48, 12', 'v_mov_b32 v5, v2',
          f's_cbranch_scc0 {N}_lm2', 'v_mov_b32 v5, v1',
          f'{N}_lm2:', 'v_cmp_gt_u32 vcc, s61, v5', 'v_mov_b32 v6, 0x3f803f80', 's_nop 0', 'v_cndmask_b32 v43, 0, -1, vcc',
          'v_cmp_eq_u32 vcc, 12, v2', 's_nop 1', 'v_cndmask_b32 v44, v44, v6, vcc',
          's_cmp_eq_u32 s37, 0', f's_cbranch_scc0 {N}_t1_bz', f's_branch {N}_t0_bz']
    can = ['x0'] * 4 + ['x1'] * 4 + ['pf'] * 4
    QH, early = qproj_head(N)
    QH, vmh = fix_vm(QH, can)
    QH, pendh = resolve_lgw(QH, [])
    QL, qrare, trL, trH = qproj_loop(N, pendh)
    qrare += early
    QT, rr = qproj_tail(N)
    QT, pend = resolve_lgw(QT, [])
    qrare += rr
    qp = QH + trL + QT
    vm_in = ['w0'] * 8 + ['x'] * 6 + ['w1'] * 8 + ['x'] * 5
    QPres = None
    dm = {('v', 45)}
    for vt in (0, 1):
        tag = f'{N}_t{vt}'
        A0, B0 = gemm_half(vt, 0, tag)
        A1, B1 = gemm_half(vt, 1, tag)
        Bz, Bent = gemm_half(vt, 1, tag, 'z'), gemm_half(vt, 1, tag, 'ent')
        if gemm2.LOOPST:
            A0[3:3] = stamp_loop('s21'); A1[3:3] = stamp_loop('s21')
        out += [f'{tag}_entry:'] + ENT + Bent + [f'{tag}_loop:'] + A0 + B0 + A1 + B1 + [f's_branch {tag}_loop']
        h0 = [x.replace(f'{tag}_h0_r', f'{tag}_hkr0') for x in hk_near(f'{tag}_h0')]
        out += [f'{tag}_hk0:'] + h0
        far += [f'{tag}_h0_far:'] + [x.replace(f'{tag}_h0_r', f'{tag}_hkr0') for x in hk_far(f'{tag}_h0')]
        far += [f'{tag}_hk1:'] + [x.replace(f'{tag}_h1_r', f'{tag}_hkr1') for x in hk_far(f'{tag}_h1')]
        far += [f'{tag}_bz:'] + Bz + [f's_branch {tag}_loop']
        st0 = SB(0)
        p_i, vm1 = fix_vm(['s_add_u32 s19, s19, s23'] + pre_issue(False), ['w1'] * 8 + ['x'] * 5)
        e_p = gemm1.epilogue(vt, False, False)[:-1]
        p_f, vm2 = fix_vm(pre_issue(True), ['x'] * 13)
        k_p, k_f = pack_code(vt, False), pack_code(vt, True)
        for v in (vm1, vm2):
            assert v[-len(can):] == can[-len(v):], v
        QPres = qp
        out += [f'{tag}_epi:'] + PAD + ['s_cmp_eq_u32 s89, 0', f's_cbranch_scc0 {tag}_epi2'] + st0 + p_i + k_p + ([f's_branch {N}_qproj'] if vt == 0 else [])
        far += [f'{tag}_epi2:', 's_cmp_eq_u32 s79, 0', f's_cbranch_scc0 {tag}_epifix', 's_nop 7'] + e_p + [f's_branch {N}_next']
        far += [f'{tag}_epifix:'] + st0 + p_f + k_f + [f's_branch {N}_qproj']
        G1 = P_ + Bent + A0 + B0 + A1
        assert not check(G1 + ['s_nop 7'] + e_p + nx + Bz + A0 + B0 + A1 + B1 + A0 + p_f + k_f + qp, tag, dummy=dm)
        assert not check(G1 + p_i + k_p + qp, tag + 'b', dummy=dm)
        assert not check(G1 + p_i + k_p + QH + trH + QT, tag + 'c', dummy=dm)
        i = A0.index(f'{tag}_hkr0:')
        assert not check(P_ + Bent + A0[:i] + hk_near('x') + hk_far('x') + A0[i:] + B0 + A1, tag + 'hk', dummy=dm)
    far += [f'{N}_next:'] + nx
    its = {}
    for key, p, m in (('i0', 0, 0), ('i1', 1, 0), ('m1', 1, 2), ('m0', 0, 1)):
        L, pe = resolve_lgw(iteration(p, f'{N}_{key}', m), pend)
        assert pe == pend, 'ring not periodic'
        k = L.index('; SPLIT')
        its[key] = (L[:k], L[k + 1:], p)
    cnt = [ACNT.get(15 - r, 0) for r in range(16)]
    start = [sum(cnt[:r]) for r in range(16)]
    assert sum(cnt) == 16
    pc = sum(c << (2 * r) for r, c in enumerate(cnt))
    ps = sum(s << (4 * r) for r, s in enumerate(start) if s < 16)
    asetup = ['s_lshr_b32 s57, s55, 1', 's_lshl_b32 s58, s57, 1', f's_lshr_b32 s59, {hex(pc)}, s58', 's_and_b32 s59, s59, 3',
              f's_mov_b32 s60, {hex(ps & 0xffffffff)}', f's_mov_b32 s61, {hex(ps >> 32)}', 's_lshl_b32 s58, s57, 2', 's_lshr_b64 s[60:61], s[60:61], s58',
              's_and_b32 s41, s60, 15', 's_lshl_b32 s76, s21, 6', f's_add_u32 s76, s76, {fin2.FB}',
              's_lshl_b32 s77, s41, 7', f's_add_u32 s77, s77, {fin2.FA}'] + attna4.setup() + ['s_cmp_eq_u32 s59, 0\ns_cselect_b32 s66, 0, s66\ns_cselect_b32 s70, 0, s70']
    T = tail_code(N, asetup)
    st1 = SB(12)
    st2 = SB(14)
    full = lambda k: its[k][0] + its[k][1]
    out += [f'{N}_qproj:'] + PAD + QH + QL + QT + st1 + ['s_cmp_eq_u32 s21, 0', f's_cbranch_scc1 {N}_m0']
    out += ['.p2align 6', f'{N}_loop:'] + full('i0') + [f'{N}_i0_end:', 's_cmp_eq_u32 s19, s21', f's_cbranch_scc1 {N}_m1']
    out += full('i1') + [f'{N}_i1_end:', 's_cmp_gt_u32 s19, 5', f's_cbranch_scc1 {N}_loop', 's_cmp_eq_u32 s20, 0', f's_cbranch_scc0 {N}_loop',
                         's_cmp_eq_u32 s19, 5', f's_cbranch_scc1 {N}_l2chk',
                         'global_load_dword v59, v60, s[52:53] sc1',
                         f's_branch {N}_loop', f'{N}_l2chk:'] + spin_code(N + '_l2', 'v59', 'v60', 12 * 256) + [f's_branch {N}_loop']
    out += [f'{N}_m1:'] + full('m1') + [f'{N}_m1_end:', f'{N}_m0:'] + full('m0') + [f'{N}_m0_end:'] + SB(13) + T + st2
    rare = list(qrare)
    for key, (h, r, p) in its.items():
        rare += [f'{N}_{key}_r1:'] + r1_code(1 - p) + r + r2_code() + [f's_branch {N}_{key}_end']
        assert not check(QPres + (full('i0') if p else []) + h + r1_code(1 - p) + r + r2_code() + full('i0' if p else 'i1'), N + key + 'rare', dummy=dm)
    assert not check(QPres + full('i0') + full('i1') + full('i0') + full('m1') + full('m0') + T, N + 'B', dummy=dm)
    it, arare = attna4.item(N + 'A', WT)
    rare += [f'{N}_achk:'] + spin_code(N + '_a', 'v59', 'v60', 48) + [f's_branch {N}_achkr']
    out += [f's_mov_b32 s22, {attna4.TH}', 's_mov_b32 s62, 65536'] + SB(15)
    k = it.index('s_and_b32 s72, s72, 0xffff')
    it[k:k] = ['s_cmp_eq_u32 s19, 1', f's_cbranch_scc1 {N}_psig', f'{N}_psigr:']
    rare += [f'{N}_psig:'] + signal_code('s76', 1, 's[12:13]') + [f's_branch {N}_psigr']
    out += [f'{N}_anext:'] + it + ['s_xor_b32 s62, s62, 32768', 's_sub_u32 s59, s59, 1', 's_mov_b32 s76, s77', 's_add_u32 s77, s77, 128',
                                   's_waitcnt vmcnt(2)', 's_cmp_lg_u32 s59, 0', f's_cbranch_scc1 {N}_anext', f'{N}_end:']
    if FUSE:
        ta, tb = fin2.task_a(N, SPIN), fin2.task_b(N, SPIN)
        nsl = max(len(v) for v in TASKS.values())
        assert sorted(t for v in TASKS.values() for t in v) == sorted([(k, q) for k in 'AB' for q in range(16)])
        F = ['s_waitcnt vmcnt(0)'] + signal_code('s76', 1, 's[12:13]') + SB(13) + ['s_cmp_ge_u32 s56, 14', f's_cbranch_scc1 {N}_fin'] + fin2.setup()
        F += ['s_lshr_b32 s57, s55, 1', 's_lshl_b32 s58, s57, 2', 's_lshl_b32 s57, s57, 1', 's_mov_b32 s41, s56', 's_mov_b32 s63, 0', f'{N}_tnext:']
        for sl in range(nsl):
            qt = sum((TASKS[15 - r][sl][1] if len(TASKS[15 - r]) > sl else 0) << (4 * r) for r in range(16))
            ty = sum(({'A': 1, 'B': 2}[TASKS[15 - r][sl][0]] if len(TASKS[15 - r]) > sl else 0) << (2 * r) for r in range(16))
            F += [f's_mov_b32 s60, {hex(qt & 0xffffffff)}', f's_mov_b32 s61, {hex(qt >> 32)}', f's_mov_b32 s78, {hex(ty)}',
                  f's_cmp_eq_u32 s63, {sl}', f's_cbranch_scc1 {N}_tgo']
        F += [f's_branch {N}_fin', f'{N}_tgo:', 's_add_u32 s63, s63, 1', 's_lshr_b64 s[60:61], s[60:61], s58', 's_and_b32 s40, s60, 15',
              's_lshr_b32 s78, s78, s57', 's_and_b32 s78, s78, 3', 's_cmp_eq_u32 s78, 0', f's_cbranch_scc1 {N}_fin',
              's_cmp_eq_u32 s78, 1', f's_cbranch_scc1 {N}_ta']
        F += tb + SB(14) + [f's_branch {N}_tnext', f'{N}_ta:'] + ta + SB(12) + [f's_branch {N}_tnext', f'{N}_fin:']
        assert not check(F, N + 'fin')
        out += F
    out += (stamp_end(WS, 0) if stamps else []) + ['s_endpgm'] + far + rare + arare
    out += [f'{N}_exit:', 's_endpgm']
    text = khead(N) + '\n'.join(out) + '\n'
    return dict(name=N, text=text, grid=256, block=256, lds=LDS, vgpr=512, sgpr=102, accum=256)
```

```python
from asmlib import *
from layout import *

NAME = 'attnb_kernel'
MF = 'v_mfma_f32_16x16x32_bf16'
LDS = 131072
TH = 0x41f00000


def S(b, kt, a): return 64 + 32 * b + 8 * kt + 4 * a
def P(b, kg, a): return 128 + 16 * b + 8 * kg + 4 * a
def O(dt, a): return 8 * dt + 4 * a
def Q(a, s): return 128 + 32 * a + 4 * s
def RING(f): return 192 + 4 * (f % 16)
def NEGM(a): return 32 + 4 * a


class Sched:
    def __init__(self, n, cap=8):
        self.n, self.cap = n, cap
        self.slots = {g: [] for g in range(-1, n)}
        self.used = {g: 0 for g in range(-1, n)}

    def put(self, g, text, cost=4):
        self.slots[g].append(text)
        self.used[g] += cost

    def fit(self, g, cost, gmax):
        while g < gmax and self.used[g] + cost > self.cap:
            g += 1
        return g


def kread(slot, f): return f'ds_read_b128 a[{RING(f)}:{RING(f) + 3}], v16 offset:{slot * 32768 + f * 1024}'
def vread(slot, f): return f'ds_read_b128 a[{RING(f)}:{RING(f) + 3}], v17 offset:{slot * 32768 + f * 1024}'


def qk_mfmas(b, first=False):
    L = []
    for kt in range(4):
        for s in range(8):
            for a in range(2):
                d = vr(S(b, kt, a), 4)
                c = d if s else ('0' if first else vr(NEGM(a), 4))
                f = kt * 8 + s
                L.append(f'{MF} {d}, {ar(RING(f), 4)}, {ar(Q(a, s), 4)}, {c}')
    return L


def pv_mfmas(b):
    L = []
    for kg in range(2):
        for dt in range(16):
            for a in range(2):
                f = kg * 16 + dt
                o = ar(O(dt, a), 4)
                L.append(f'{MF} {o}, {ar(RING(f), 4)}, {vr(P(b, kg, a), 4)}, {o}')
    return L


def dma_group(isv, slot):
    srd, so = ('s[8:11]', 's17') if isv else ('s[4:7]', 's16')
    L = []
    for i in range(8):
        pre = [f's_add_u32 m0, s18, {isv * 65536 + slot * 32768 + (i // 4) * 4096}'] if i % 4 == 0 else []
        L.append((pre, f'buffer_load_dwordx4 v{18 + i // 4}, {srd}, {so} offen offset:{(i % 4) * 1024} lds'))
    return L, f's_add_u32 {so}, {so}, 32768'


def softmax_items(b):
    it = []
    for kg in range(2):
        for a in range(2):
            for h in range(2):
                kt = 2 * kg + h
                for r2 in range(2):
                    r0 = S(b, kt, a) + 2 * r2
                    it.append(('e', f'v_exp_f32 v{r0}, v{r0}'))
                    it.append(('e', f'v_exp_f32 v{r0 + 1}, v{r0 + 1}'))
                    it.append(('v', f'v_add_f32 v{24 + a}, v{r0}, v{24 + a}'))
                    it.append(('v', f'v_cvt_pk_bf16_f32 v{P(b, kg, a) + 2 * h + r2}, v{r0}, v{r0 + 1}'))
                    it.append(('v', f'v_add_f32 v{24 + a}, v{r0 + 1}, v{24 + a}'))
    return it


def max_items(b):
    L = []
    for a in range(2):
        regs = [S(b, kt, a) + r for kt in range(4) for r in range(4)]
        L.append(f'v_max3_f32 v{21 + a}, v{regs[0]}, v{regs[1]}, v{regs[2]}')
        for i in range(3, 15, 2):
            L.append(f'v_max3_f32 v{21 + a}, v{regs[i]}, v{regs[i + 1]}, v{21 + a}')
        L.append(f'v_max_f32 v{21 + a}, v{regs[15]}, v{21 + a}')
    out = []
    for x, y in zip(L[:8], L[8:]):
        out += [x, y]
    return out


def xreduce(reg, op, tmp=2):
    return [f'v_mov_b32 v{tmp}, v{reg}', 's_nop 1', f'v_permlane16_swap_b32 v{tmp}, v{reg}', 's_nop 1', f'{op} v{reg}, v{reg}, v{tmp}',
            f'v_mov_b32 v{tmp}, v{reg}', 's_nop 1', f'v_permlane32_swap_b32 v{tmp}, v{reg}', 's_nop 1', f'{op} v{reg}, v{reg}, v{tmp}']


def mask_code(b):
    L = ['s_nop 7', 'v_mov_b32 v3, 0xf149f2ca']
    for kt in range(4):
        for a in range(2):
            for r in range(4):
                L.append(f's_add_i32 s25, s24, {16 * (a - kt) - r}')
                L.append(f'v_cmp_ge_i32 s[{28 + 2 * r}:{29 + 2 * r}], s25, v20')
            for r in range(4):
                L.append(f'v_cndmask_b32 v{S(b, kt, a) + r}, v3, v{S(b, kt, a) + r}, s[{28 + 2 * r}:{29 + 2 * r}]')
    L.append('s_sub_i32 s24, s24, 64')
    return L


def r1_code(b, first=False):
    L = ['s_nop 7']
    for a in range(2):
        t = 21 + a
        L += xreduce(t, 'v_max_f32')
        if not first:
            L.append(f'v_max_f32 v{t}, 0, v{t}')
            L.append(f'v_exp_f32 v{26 + a}, -v{t}')
        for e in range(4):
            L.append(f'v_sub_f32 v{NEGM(a) + e}, 0, v{t}' if first else f'v_sub_f32 v{NEGM(a) + e}, v{NEGM(a) + e}, v{t}')
        for kt in range(4):
            for r in range(4):
                L.append(f'v_sub_f32 v{S(b, kt, a) + r}, v{S(b, kt, a) + r}, v{t}')
        L.append(f'v_mov_b32 v{24 + a}, 0' if first else f'v_mul_f32 v{24 + a}, v{24 + a}, v{26 + a}')
    if not first:
        L.append('s_mov_b32 s23, 1')
    return L


def r2_code():
    L = ['s_nop 7']
    for dt in range(16):
        for a in range(2):
            o = O(dt, a)
            for e in range(4):
                L.append(f'v_accvgpr_read_b32 v{4 + e}, a{o + e}')
            for e in range(4):
                L.append(f'v_mul_f32 v{4 + e}, v{4 + e}, v{26 + a}')
            for e in range(4):
                L.append(f'v_accvgpr_write_b32 a{o + e}, v{4 + e}')
    L += ['s_mov_b32 s23, 0', 's_nop 1']
    return L


def rgap(f):
    return (7 * f) // 4 - 16


BARG = 47
D1G = 64 + 22
NP1 = 30


def add_waits(lines, pend0):
    out = []
    pend = list(pend0)
    for ln in lines:
        I = parse(ln)
        if I is not None and I.cls == 'mfma':
            need = -1
            for i, d in enumerate(pend):
                if d & set(I.r):
                    need = i
            if need >= 0:
                n = len(pend) - need - 1
                out.append(f's_waitcnt lgkmcnt({n})')
                pend = pend[need + 1:]
        if I is not None and I.cls == 'ds':
            pend.append(set(I.w))
        if I is not None and I.cls == 'wait' and I.wait.get('lgkmcnt') == 0:
            pend = []
        out.append(ln)
    return out, pend


EXP = {}

def iteration(p, tag, dgap=6):
    sc = Sched(128)
    for f in range(32):
        g = rgap(f)
        if g >= 0:
            sc.put(g, kread(1 - p, f))
            sc.put(64 + g, vread(p, f))
        else:
            sc.put(64 + g, vread(p, f))
            sc.put(128 + g, kread(p, f))
    for base in (0, 64):
        sc.put(base + BARG, 's_waitcnt vmcnt(16) lgkmcnt(0)', 0)
        if not EXP.get('nobar'):
            sc.put(base + BARG, 's_barrier', 4)
    for isv, base in ((1, 0), (0, 64)):
        grp, adv = dma_group(isv, 1 - p)
        for i, (pre, x) in enumerate(grp):
            g = sc.fit(base + 1 + i * dgap, 4, base + BARG - 1)
            for y in pre:
                sc.put(g - 1, y)
            if not EXP.get('nodma'):
                sc.put(g, x)
        sc.put(g + 1, adv)
    sc.put(64, 's_cmp_ge_u32 s19, s21')
    sc.put(64, f's_cbranch_scc1 {tag}_mask')
    sc.put(64, f'{tag}_maskret:', 0)
    mx = max_items(1 - p)
    g = 66
    for x in mx:
        g = sc.fit(g, 4, D1G - 2)
        sc.put(g, x)
    sc.put(D1G - 1, 'v_max_f32 v23, v21, v22')
    sc.put(D1G, 'v_cmp_lt_f32 vcc, s22, v23')
    sc.put(D1G, f's_cbranch_vccnz {tag}_r1')
    sc.put(D1G, f'{tag}_r1ret:', 0)

    def place(items, g0, g1):
        n = sum(8 if k == 'e' else 4 for k, _ in items)
        acc = 0
        g = g0
        laste = -10
        for k, x in items:
            c = 8 if k == 'e' else 4
            tgt = g0 + (acc * (g1 - g0)) // n
            g = max(g, tgt)
            if k == 'v':
                g = max(g, laste + 1)
            g = sc.fit(g, c, g1)
            if k == 'e':
                laste = g
            sc.put(g, x, c)
            acc += c
        return g
    it_next = softmax_items(1 - p)
    it_cur = softmax_items(p)
    if not EXP.get('nosm'):
        place(it_cur[NP1:], 0, 61)
        place(it_next[:NP1], D1G + 1, 126)
    sp = qk_mfmas(1 - p) + pv_mfmas(p)
    L = interleave(sp, sc.slots)
    L += ['s_cmp_eq_u32 s23, 0', f's_cbranch_scc0 {tag}_r2', f'{tag}_r2ret:', 's_add_u32 s19, s19, 1']
    over = sum(max(0, sc.used[g] - 8) for g in sc.used)
    rare = [f'{tag}_mask:'] + mask_code(1 - p) + [f's_branch {tag}_maskret',
            f'{tag}_r1:'] + r1_code(1 - p) + [f's_branch {tag}_r1ret',
            f'{tag}_r2:'] + r2_code() + [f's_branch {tag}_r2ret']
    return L, rare, over


def gen(stamps=False, dgap=6):
    N = NAME
    Pq = []
    a = Pq.append
    a('s_cmp_ge_u32 s2, 256')
    a(f's_cbranch_scc1 {N}_exit')
    if stamps:
        Pq += stamp_begin()
    a(f's_load_dwordx2 s[12:13], s[0:1], {WS}')
    a('v_and_b32 v1, 63, v0')
    a('v_lshrrev_b32 v2, 6, v0')
    a('v_lshlrev_b32 v16, 4, v1')
    a('v_readfirstlane_b32 s20, v2')
    a('s_and_b32 s40, s2, 7')
    a('s_lshr_b32 s41, s2, 3')
    a('s_and_b32 s42, s41, 1')
    a('s_lshl_b32 s40, s40, 1')
    a('s_add_u32 s40, s40, s42')
    a('s_lshr_b32 s41, s41, 1')
    a('s_sub_u32 s41, 15, s41')
    a('s_lshl_b32 s21, s41, 1')
    a('s_add_u32 s42, s21, 2')
    a('s_lshl_b32 s6, s42, 15')
    a('s_mov_b32 s10, s6')
    a('s_mov_b32 s7, 0x20000'); a('s_mov_b32 s11, 0x20000'); a('s_mov_b32 s15, 0x20000')
    a(f's_mov_b32 s14, {PART}')
    a('s_lshl_b32 s18, s20, 13')
    a('v_add_u32 v18, s18, v16')
    a('v_add_u32 v19, 4096, v18')
    a('v_add_u32 v17, 0x10000, v16')
    a('s_lshl_b32 s43, s40, 20')
    a('s_mov_b32 s16, 0'); a('s_mov_b32 s17, 0')
    a('s_waitcnt lgkmcnt(0)')
    a('s_add_u32 s4, s12, s43'); a('s_addc_u32 s5, s13, 0')
    a(f's_add_u32 s8, s4, {VF}'); a('s_addc_u32 s9, s5, 0')

    def dma_now(isv, slot):
        grp, adv = dma_group(isv, slot)
        for pre, x in grp:
            for y in pre:
                a(y); a('s_nop 0')
            a(x)
        a(adv)
    dma_now(0, 0)
    a('s_lshl_b32 s44, s41, 3'); a('s_lshl_b32 s45, s20, 1'); a('s_add_u32 s44, s44, s45')
    a('s_lshl_b32 s45, s44, 13'); a('s_add_u32 s45, s45, s43'); a(f's_add_u32 s45, s45, {QF}')
    for aa in range(2):
        for s in range(8):
            if s % 4 == 0 and (aa or s):
                a('s_add_u32 s45, s45, 4096')
            a(f'buffer_load_dwordx4 a[{Q(aa, s)}:{Q(aa, s) + 3}], v16, s[12:15], s45 offen offset:{(s % 4) * 1024}')
    dma_now(0, 1)
    dma_now(1, 0)
    a('v_lshrrev_b32 v2, 4, v1'); a('v_lshlrev_b32 v2, 2, v2'); a('v_and_b32 v3, 15, v1'); a('v_sub_u32 v20, v2, v3')
    a(f's_mov_b32 s22, {TH}')
    a('s_mov_b32 s23, 0')
    a('s_lshl_b32 s24, s20, 5')
    a('s_mov_b32 s19, 1')
    a('s_lshl_b32 s46, s44, 17'); a('s_lshl_b32 s47, s40, 13'); a('s_add_u32 s46, s46, s47'); a(f's_add_u32 s46, s46, {CF}')
    for r in range(128):
        a(f'v_accvgpr_write_b32 a{r}, 0')
    if stamps:
        Pq += stamp_mid(0) + ['s_waitcnt lgkmcnt(0)']
    a('s_waitcnt vmcnt(16)')
    a('s_barrier')
    sc = Sched(64)
    for f in range(32):
        g = rgap(f)
        sc.put(max(g, -1), kread(0, f))
    pro, pend = add_waits(interleave(qk_mfmas(0, True), sc.slots), [])
    Pq += pro
    a('s_barrier')
    dma_now(0, 0)
    a('s_cmp_lg_u32 s21, 0')
    a(f's_cbranch_scc1 {N}_nomask0')
    Pq += mask_code(0)
    a(f'{N}_nomask0:')
    a('s_nop 7')
    Pq += max_items(0)
    Pq += r1_code(0, True)
    it0 = softmax_items(0)
    for k, x in it0[:NP1]:
        a(x)
        if k == 'e':
            a('s_nop 0')
    a('s_waitcnt vmcnt(16)')
    a('s_barrier')
    pend = []
    for f in range(32):
        if rgap(f) < 0:
            a(kread(1, f))
            pend.append(set(regs_of(f'a[{RING(f)}:{RING(f) + 3}]')))
    if stamps:
        Pq += stamp_mid(1) + ['s_waitcnt lgkmcnt(0)']
    I0, rare0, ov0 = iteration(0, f'{N}_p0', dgap)
    I1, rare1, ov1 = iteration(1, f'{N}_p1', dgap)
    I0, pe = add_waits(I0, pend)
    assert pe == pend or True
    I1, pe2 = add_waits(I1, pe)
    I0b, pe3 = add_waits(iteration(0, f'{N}_p0', dgap)[0], pe2)
    assert I0b == I0, 'wait pattern not periodic'
    print('attnb overflow cycles', ov0, ov1, 'instrs', len(I0))
    exit0 = ['s_cmp_gt_u32 s19, s21', f's_cbranch_scc1 {N}_tail']
    T = ['s_waitcnt vmcnt(0) lgkmcnt(0)', 's_barrier']
    for f in range(32):
        if rgap(f) < 0:
            T.append(vread(1, f))
    for k, x in softmax_items(1)[NP1:]:
        T.append(x)
        if k == 'e':
            T.append('s_nop 0')
    sc = Sched(64)
    for f in range(32):
        if rgap(f) >= 0:
            sc.put(rgap(f), vread(1, f))
    pendt = [set(regs_of(f'a[{RING(f)}:{RING(f) + 3}]')) for f in range(32) if rgap(f) < 0]
    T.append('s_nop 1')
    t2, _ = add_waits(interleave(pv_mfmas(1), sc.slots), pendt)
    T += t2
    if stamps:
        T += stamp_mid(2)
    for aa in range(2):
        T += xreduce(24 + aa, 'v_add_f32')
        T.append(f'v_rcp_f32 v{24 + aa}, v{24 + aa}')
    T.append('s_nop 0')
    n = 0
    for aa in range(2):
        for s in range(8):
            tb = 160 + 4 * (n % 4)
            for e in range(8):
                T.append(f'v_accvgpr_read_b32 v{4 + e}, a{O(2 * s + e // 4, aa) + e % 4}')
            for e in range(8):
                T.append(f'v_mul_f32 v{4 + e}, v{4 + e}, v{24 + aa}')
            for d in range(4):
                T.append(f'v_cvt_pk_bf16_f32 v{tb + d}, v{4 + 2 * d}, v{5 + 2 * d}')
            if s == 4:
                T.append('s_add_u32 s46, s46, 4096')
            T.append(f'buffer_store_dwordx4 v[{tb}:{tb + 3}], v16, s[12:15], s46 offen offset:{(s % 4) * 1024}')
            n += 1
        T.append(f's_add_u32 s46, s46, {131072 - 4096}')
    if stamps:
        T += stamp_end(WS, 512)
    T.append('s_endpgm')
    out = Pq + ['.p2align 6', f'{N}_loop:'] + I0 + exit0 + I1 + [f's_branch {N}_loop', f'{N}_tail:'] + T + rare0 + rare1
    out += [f'{N}_exit:', 's_endpgm']
    assert not check(Pq + I0 + exit0 + I1 + I0 + exit0 + T, N)
    def splice(L, lab, code):
        i = L.index(lab)
        return L[:i] + code + L[i:]
    t = splice(I0, f'{N}_p0_maskret:', mask_code(1))
    t = splice(t, f'{N}_p0_r1ret:', r1_code(1))
    t = splice(t, f'{N}_p0_r2ret:', r2_code())
    assert not check(Pq + t + exit0 + I1, N + '_rare')
    text = khead(N) + '\n'.join(out) + '\n'
    return dict(name=N, text=text, grid=256, block=256, lds=LDS, vgpr=448, sgpr=102, accum=192)
```

```python
from build import *
import gemm1, attnb
g = gemm1.gen(stamps=True)
assemble([g, attnb.gen(stamps=True)], 'k1.s')
attnb.EXP = {'nodma': 1}
gemm1.STMOD = ' sc1'
assemble([gemm1.gen(stamps=True), attnb.gen(stamps=True)], 'k2.s')
attnb.EXP = {'nobar': 1}
gemm1.STMOD = ' sc0 sc1'
assemble([gemm1.gen(stamps=True), attnb.gen(stamps=True)], 'k3.s')
attnb.EXP = {'nosm': 1}
gemm1.STMOD = ' nt'
assemble([gemm1.gen(stamps=True), attnb.gen(stamps=True)], 'k4.s')
attnb.EXP = {}
gemm1.STMOD = ''
assemble([g, attnb.gen(stamps=True, dgap=5)], 'k5.s')
```

```python
import re

REG_RE = re.compile(r'^(-?)(?:abs\()?([vas])(?:(\d+)|\[(\d+):(\d+)\])\)?$')
TRANS = ('v_exp_f32', 'v_log_f32', 'v_rcp_f32', 'v_rsq_f32', 'v_sqrt_f32', 'v_sin_f32', 'v_cos_f32')


def vr(n, c=1):
    return f'v{n}' if c == 1 else f'v[{n}:{n + c - 1}]'


def ar(n, c=1):
    return f'a{n}' if c == 1 else f'a[{n}:{n + c - 1}]'


def sr(n, c=1):
    return f's{n}' if c == 1 else f's[{n}:{n + c - 1}]'


def R(kind_n, c=1):
    k, n = kind_n
    return f'{k}{n}' if c == 1 else f'{k}[{n}:{n + c - 1}]'


def regs_of(tok):
    tok = tok.strip()
    if tok in ('vcc', 'exec', 'm0', 'scc'):
        return [(tok, 0)]
    if tok in ('vcc_lo', 'vcc_hi'):
        return [('vcc', 0)]
    if tok in ('exec_lo', 'exec_hi'):
        return [('exec', 0)]
    m = REG_RE.match(tok)
    if not m:
        return []
    k = m.group(2)
    if m.group(3) is not None:
        return [(k, int(m.group(3)))]
    return [(k, i) for i in range(int(m.group(4)), int(m.group(5)) + 1)]


class Ins:
    __slots__ = ('text', 'op', 'cls', 'w', 'r', 'srcA', 'srcB', 'srcC', 'passes', 'lds_dma', 'nop', 'wait', 'ops')


def parse(line):
    t = line.split(';')[0].split('//')[0].strip()
    if not t or t.endswith(':') or t.startswith('.'):
        return None
    parts = t.split(None, 1)
    op = parts[0]
    rest = parts[1] if len(parts) > 1 else ''
    ops = [o.strip() for o in rest.split(',')] if rest else []
    mods = ''
    if ops:
        lp = ops[-1].split()
        if lp:
            ops[-1] = lp[0]
            mods = ' '.join(lp[1:])
    I = Ins()
    I.text, I.op, I.w, I.r = t, op, [], []
    I.srcA = I.srcB = I.srcC = []
    I.passes = 0
    I.lds_dma = False
    I.nop = 1
    I.wait = None
    I.ops = ops
    base = op.replace('_e32', '').replace('_e64', '')
    if op.startswith('v_mfma'):
        I.cls = 'mfma'
        I.w = regs_of(ops[0])
        I.srcA, I.srcB, I.srcC = regs_of(ops[1]), regs_of(ops[2]), regs_of(ops[3])
        I.r = I.srcA + I.srcB + I.srcC
        I.passes = 8 if '32x32x16' in op else 4 if '16x16x32' in op else None
        assert I.passes
    elif op.startswith('v_'):
        I.cls = 'valu'
        I.w = regs_of(ops[0])
        srcs = ops[1:]
        if base in ('v_add_co_u32', 'v_addc_co_u32', 'v_sub_co_u32', 'v_subb_co_u32'):
            I.w = I.w + regs_of(ops[1])
            srcs = ops[2:]
        for o in srcs:
            I.r += regs_of(o)
        if base.startswith('v_fmac') or base.startswith('v_dot2c') or base.startswith('v_permlane') or base in ('v_writelane_b32',):
            I.r += regs_of(ops[0])
        if base.startswith('v_permlane'):
            I.w = I.w + regs_of(ops[1])
        if base.startswith('v_cmpx'):
            I.w = I.w + [('exec', 0)]
        if base == 'v_cndmask_b32' and len(ops) == 3:
            I.r += [('vcc', 0)]
    elif op.startswith('ds_'):
        I.cls = 'ds'
        if op.startswith('ds_read') or 'permute' in op or 'swizzle' in op:
            I.w = regs_of(ops[0])
            for o in ops[1:]:
                I.r += regs_of(o)
        else:
            for o in ops:
                I.r += regs_of(o)
    elif op.startswith('buffer_') or op.startswith('global_'):
        I.cls = 'vmem'
        is_lds = (' lds' in (' ' + mods)) or '_lds_' in op
        I.lds_dma = is_lds
        if is_lds:
            for o in ops:
                I.r += regs_of(o)
            I.r += [('m0', 0)]
        elif '_load' in op:
            I.w = regs_of(ops[0])
            for o in ops[1:]:
                I.r += regs_of(o)
        elif op in ('buffer_wbl2', 'buffer_inv'):
            pass
        else:
            for o in ops:
                I.r += regs_of(o)
            if 'atomic' in op and 'sc0' in mods:
                I.w = regs_of(ops[0])
    elif op == 's_waitcnt':
        I.cls = 'wait'
        w = {}
        for m in re.finditer(r'(vmcnt|lgkmcnt|expcnt)\((\d+)\)', rest):
            w[m.group(1)] = int(m.group(2))
        I.wait = w
    elif op == 's_nop':
        I.cls = 'nop'
        I.nop = int(ops[0], 0) + 1
    elif op.startswith('s_load') or op.startswith('s_buffer_load') or op in ('s_memtime', 's_memrealtime') or op.startswith('s_atomic'):
        I.cls = 'smem'
        I.w = regs_of(ops[0])
        for o in ops[1:]:
            I.r += regs_of(o)
    elif op.startswith('s_'):
        I.cls = 'salu'
        if op.startswith('s_cmp') or op.startswith('s_cbranch') or op in ('s_branch', 's_barrier', 's_endpgm', 's_setprio', 's_sleep', 's_bitcmp1_b32', 's_bitcmp0_b32', 's_set_gpr_idx_off'):
            for o in ops:
                I.r += regs_of(o)
        else:
            I.w = regs_of(ops[0]) if op != 's_set_gpr_idx_on' else [('m0', 0)]
            for o in ops[1:]:
                I.r += regs_of(o)
            if 'saveexec' in op:
                I.w = I.w + [('exec', 0)]
    else:
        raise ValueError('unknown op: ' + t)
    return I


def check(lines, name='trace', verbose=True, dummy=()):
    probs = []
    pos = 0
    last_valu_w = {}
    last_trans_w = {}
    last_mfma_w = {}
    last_mfma_c = {}
    last_valu_sw = {}
    last_m0 = -100
    last_exec_valu = -100
    store_data = {}
    vm_q = []
    lg_q = []
    smem_out = False
    RAWD = {4: 8, 8: 12}
    OVL = {4: 6, 8: 10}
    WARC = {4: 3, 8: 7}

    def bad(I, msg):
        probs.append(f'{name}: [{I.text}] {msg}')

    for ln in lines:
        I = parse(ln)
        if I is None:
            continue
        pend = set()
        for q in vm_q:
            pend |= q
        for q in lg_q:
            pend |= q
        for r in I.r + I.w:
            if r in pend and r not in dummy:
                bad(I, f'touches {r} still pending from memory op')
                break
        dist = lambda p: pos - p - 1
        if I.cls == 'mfma':
            for r in I.r:
                if r in last_valu_w and dist(last_valu_w[r]) < 2:
                    bad(I, f'VALU->MFMA {r} dist {dist(last_valu_w[r])} < 2')
            for r in I.srcA + I.srcB:
                if r in last_mfma_w:
                    p, ps, _ = last_mfma_w[r]
                    if dist(p) < RAWD[ps]:
                        bad(I, f'MFMA D->A/B {r} dist {dist(p)} < {RAWD[ps]}')
            for r in I.srcC:
                if r in last_mfma_w:
                    p, ps, dt = last_mfma_w[r]
                    if dt == tuple(I.srcC) and ps == I.passes:
                        continue
                    if dist(p) < OVL[ps]:
                        bad(I, f'MFMA D->C overlap {r} dist {dist(p)} < {OVL[ps]}')
            if tuple(I.w) != tuple(I.srcC):
                for r in I.w:
                    if r in last_mfma_w:
                        p, ps, dt = last_mfma_w[r]
                        if dist(p) < OVL[ps]:
                            bad(I, f'MFMA D->D WAW {r} dist {dist(p)} < {OVL[ps]}')
            if dist(last_exec_valu) < 4:
                bad(I, 'VALU exec write -> MFMA < 4')
        elif I.cls in ('valu', 'ds', 'vmem'):
            for r in I.r + I.w:
                if r in last_mfma_w:
                    p, ps, _ = last_mfma_w[r]
                    if dist(p) < RAWD[ps]:
                        bad(I, f'MFMA D->{I.cls} {r} dist {dist(p)} < {RAWD[ps]}')
            if I.cls == 'valu':
                for r in I.w:
                    if r in last_mfma_c:
                        p, ps = last_mfma_c[r]
                        if dist(p) < WARC[ps]:
                            bad(I, f'MFMA C WAR {r} dist {dist(p)} < {WARC[ps]}')
                    if r in store_data and dist(store_data[r]) < 2:
                        bad(I, f'store data WAR {r}')
                base = I.op.replace('_e32', '').replace('_e64', '')
                if base not in TRANS:
                    for r in I.r:
                        if r in last_trans_w and dist(last_trans_w[r]) < 1:
                            bad(I, f'trans->VALU {r}')
                for r in I.r:
                    if r[0] in ('s', 'vcc') and r in last_valu_sw and dist(last_valu_sw[r]) < 2:
                        bad(I, f'VALU sgpr write -> VALU read {r}')
                if base.startswith('v_permlane') or 'dpp' in I.text or 'row_' in I.text or 'quad_perm' in I.text:
                    for r in I.r:
                        if r in last_valu_w and dist(last_valu_w[r]) < 2:
                            bad(I, f'VALU->permlane/dpp {r}')
                if base in ('v_readfirstlane_b32', 'v_readlane_b32'):
                    for r in I.r:
                        if r in last_valu_w and dist(last_valu_w[r]) < 1:
                            bad(I, f'VALU->readlane {r}')
                    if dist(last_exec_valu) < 4:
                        bad(I, 'exec write -> readlane')
            else:
                for r in I.w:
                    if r in store_data and dist(store_data[r]) < 1:
                        bad(I, f'store data WAR {r}')
            if I.cls == 'vmem':
                for r in I.r:
                    if r[0] == 's' and r in last_valu_sw and dist(last_valu_sw[r]) < 5:
                        bad(I, f'VALU sgpr write -> VMEM {r}')
                if I.lds_dma and dist(last_m0) < 1:
                    bad(I, 'm0 write -> LDS DMA')
        if I.cls == 'mfma':
            for r in I.w:
                last_mfma_w[r] = (pos, I.passes, tuple(I.w))
                last_valu_w.pop(r, None)
            for r in I.srcC:
                last_mfma_c[r] = (pos, I.passes)
        elif I.cls == 'valu':
            base = I.op.replace('_e32', '').replace('_e64', '')
            for r in I.w:
                if r[0] in ('v', 'a'):
                    last_valu_w[r] = pos
                    last_mfma_w.pop(r, None)
                    if base in TRANS:
                        last_trans_w[r] = pos
                    else:
                        last_trans_w.pop(r, None)
                elif r[0] == 'exec':
                    last_exec_valu = pos
                else:
                    last_valu_sw[r] = pos
        elif I.cls == 'ds':
            lg_q.append(set(I.w))
        elif I.cls == 'smem':
            lg_q.append(set(I.w))
            smem_out = True
        elif I.cls == 'vmem':
            vm_q.append(set(I.w))
            if '_store' in I.op and ('x4' in I.op or 'x3' in I.op):
                d = I.ops[0] if I.op.startswith('buffer') else I.ops[1]
                for r in regs_of(d):
                    store_data[r] = pos
        elif I.cls == 'salu':
            if ('m0', 0) in I.w:
                last_m0 = pos
            for r in I.w:
                last_valu_sw.pop(r, None)
        elif I.cls == 'wait':
            if 'vmcnt' in I.wait:
                n = I.wait['vmcnt']
                if len(vm_q) > n:
                    vm_q = vm_q[len(vm_q) - n:] if n else []
            if 'lgkmcnt' in I.wait:
                n = I.wait['lgkmcnt']
                if smem_out and n > 0:
                    pass
                else:
                    if len(lg_q) > n:
                        lg_q = lg_q[len(lg_q) - n:] if n else []
                    if n == 0:
                        smem_out = False
        if len(vm_q) > 63:
            probs.append(f'{name}: vmcnt overflow (>63 outstanding) at [{I.text}]')
            vm_q = vm_q[-63:]
        pos += I.nop
    if verbose:
        for p in probs[:40]:
            print('HAZARD', p)
        if len(probs) > 40:
            print('...', len(probs), 'problems')
    return probs


def interleave(spine, fillers_by_gap):
    out = list(fillers_by_gap.get(-1, []))
    for i, s in enumerate(spine):
        out.append(s)
        out += fillers_by_gap.get(i, [])
    return out


def kd(name, vgpr, sgpr, accum, extra=''):
    return f""".p2align 6
.amdhsa_kernel {name}
  .amdhsa_next_free_vgpr {vgpr}
  .amdhsa_next_free_sgpr {sgpr}
  .amdhsa_accum_offset {accum}
  .amdhsa_group_segment_fixed_size 0
  .amdhsa_kernarg_size 96
  .amdhsa_user_sgpr_count 2
  .amdhsa_user_sgpr_kernarg_segment_ptr 1
  .amdhsa_system_sgpr_workgroup_id_x 1
{extra}.end_amdhsa_kernel
"""


def khead(name):
    return f""".globl {name}
.p2align 8
.type {name},@function
{name}:
"""


def stamp_begin(sb=90):
    return [f's_memrealtime s[{sb}:{sb + 1}]', f's_memtime s[{sb + 2}:{sb + 3}]']


def stamp_mid(n):
    return [f's_memtime s[{80 + 2 * n}:{81 + 2 * n}]']


def stamp_end(wsoff_kernarg, slot_base, sb=90, v=2, idreg='s2'):
    t = sb + 4
    return ['s_memtime s[86:87]', 's_waitcnt vmcnt(0) lgkmcnt(0)', f's_memrealtime s[{t}:{t + 1}]', f's_memtime s[{t + 2}:{t + 3}]',
            f's_load_dwordx2 s[{t + 6}:{t + 7}], s[0:1], {wsoff_kernarg}', 's_waitcnt lgkmcnt(0)',
            f's_sub_u32 s{t + 2}, s{t + 2}, s{sb + 2}',
            f's_sub_u32 s80, s80, s{sb + 2}', f's_sub_u32 s82, s82, s{sb + 2}', f's_sub_u32 s84, s84, s{sb + 2}', f's_sub_u32 s86, s86, s{sb + 2}',
            f'v_mov_b32 v{v}, s{sb}', f'v_mov_b32 v{v + 1}, s{t}', f'v_mov_b32 v{v + 2}, s{t + 2}', f'v_mov_b32 v{v + 3}, 0',
            f'v_mov_b32 v{v + 4}, s80', f'v_mov_b32 v{v + 5}, s82', f'v_mov_b32 v{v + 6}, s84', f'v_mov_b32 v{v + 7}, s86',
            f's_add_u32 s{t + 4}, {idreg}, {slot_base}', f's_lshl_b32 s{t + 4}, s{t + 4}, 5', f's_add_u32 s{t + 4}, s{t + 4}, 0xF000000',
            f'v_mov_b32 v{v + 8}, s{t + 4}',
            'v_cmp_eq_u32 vcc, 0, v0', f's_and_saveexec_b64 s[{t + 4}:{t + 5}], vcc', 's_cbranch_execz 4',
            f'global_store_dwordx4 v{v + 8}, v[{v}:{v + 3}], s[{t + 6}:{t + 7}]',
            f'global_store_dwordx4 v{v + 8}, v[{v + 4}:{v + 7}], s[{t + 6}:{t + 7}] offset:16', 's_waitcnt vmcnt(0)']


def stamp_init():
    return ['s_lshl_b32 s100, s2, 2', 's_add_u32 s100, s100, s20', 's_lshl_b32 s100, s100, 6', 's_lshl_b32 s101, s100, 1', 's_add_u32 s101, s101, 0xF200000', 's_add_u32 s100, s100, 0xF100000']


RT = False


def stamp_at(k):
    return ['s_memrealtime s[84:85]' if RT else 's_memtime s[84:85]', 's_waitcnt lgkmcnt(0)', 's_sub_u32 s84, s84, s90' if RT else 's_sub_u32 s84, s84, s92', 'v_mov_b32 v63, s84', 'v_mov_b32 v62, s100',
            f'global_store_dword v62, v63, s[12:13] offset:{4 * k}']


def stamp_loop(sreg):
    return ['s_memtime s[84:85]', 's_waitcnt lgkmcnt(0)', 's_sub_u32 s84, s84, s92', 'v_mov_b32 v63, s84', f's_lshl_b32 s85, {sreg}, 2',
            's_add_u32 s85, s85, s101', 'v_mov_b32 v62, s85', 'global_store_dword v62, v63, s[12:13]']
```

```python
from asmlib import *
from layout import *

NAME = 'proj_kernel'
NJOBS = 432
STMOD = ''
WNT = ''
XNT = ''
LDS = 131072
MF = 'v_mfma_f32_16x16x32_bf16'
PFI = 'buffer_load_dword v45, v46, s[68:71], s72 offen'


def acc(i, j):
    t = i * 8 + j
    return ('v', 64 + 4 * t) if t < 48 else ('a', 128 + 4 * (t - 48))


def xf(b, i):
    return ('a', 64 * b + 4 * i)


def wf(b, j):
    return ('a', 64 * b + 32 + 4 * j)


def reads(buf, par, s):
    L = []
    for n in range(8):
        L.append(f'ds_read_b128 {R(xf(buf, n), 4)}, v{32 + s} offset:{par * 32768 + n * 2048}')
        k, r = wf(buf, n)
        for u in range(2):
            L.append(f'ds_read_b64_tr_b16 {R((k, r + 2 * u), 2)}, v{34 + n} offset:{par * 32768 + s * 16384 + u * 2048}')
    return L


def dmas(par):
    L = []
    for ii in range(8):
        pre = [f's_add_u32 m0, s25, {par * 32768 + (ii // 4) * 4096}'] if ii % 4 == 0 else []
        L.append((pre, f'buffer_load_dwordx4 v{24 + ii}, s[8:11], s19 offen offset:{(ii % 4) * 1024}{WNT} lds'))
    for ii in range(8):
        pre = [f's_add_u32 m0, s24, {par * 32768 + (ii // 4) * 4096}'] if ii % 4 == 0 else []
        L.append((pre, f'buffer_load_dwordx4 v{16 + ii}, s[4:7], s18 offen offset:{(ii % 4) * 1024}{XNT} lds'))
    return L


def mfmas(vtype, buf):
    L = []
    for i in range(8):
        for j in range(8):
            c = R(acc(i, j), 4)
            x, w = R(xf(buf, i), 4), R(wf(buf, j), 4)
            L.append(f'{MF} {c}, {x}, {w}, {c}' if vtype else f'{MF} {c}, {w}, {x}, {c}')
    return L


def half_loop(vtype, p, tag, dma_gap=5, dma0=1, pf=True):
    top = [f's_waitcnt vmcnt({1 if pf else 0}) lgkmcnt(0)', 's_barrier']
    fill = {}
    def add(g, x):
        fill.setdefault(g, []).append(x)
    add(-1, 's_cmp_lt_u32 s21, s22')
    add(0, 's_cselect_b32 s6, s16, 0')
    add(0, 's_cselect_b32 s10, s17, 0')
    rd = reads(0, 1 - p, 0)
    for n, x in enumerate(rd):
        add(2 + 2 * n, x)
    rd = reads(1, 1 - p, 1)
    for n, x in enumerate(rd):
        add(64 + 2 + 2 * n, x)
    dm = dmas(p)
    for n, (pre, x) in enumerate(dm):
        g = dma0 + n * dma_gap
        g = g | 1
        assert g < 126
        for y in pre:
            add(g - 1, y)
        add(g, x)
    gl = (dma0 + 15 * dma_gap) | 1
    add(gl + 1, 's_add_u32 s18, s18, 128')
    add(gl + 1, 's_add_u32 s19, s19, s23')
    if pf:
        add(gl + 2, 's_cmp_lt_u32 s21, s74')
        add(gl + 2, 's_cselect_b32 s70, s75, 0')
        add(gl + 4, PFI)
        add(gl + 5, 's_add_u32 s72, s72, s73')
    spA = mfmas(vtype, 1)
    spB = mfmas(vtype, 0)
    fa = {g: v for g, v in fill.items() if g < 64}
    fb = {g - 64: v for g, v in fill.items() if g >= 64}
    A = top + interleave(spA, fa)
    A += ['s_cmp_gt_u32 s21, s22', f's_cbranch_scc1 {tag}_epi', 's_add_u32 s21, s21, 1']
    B = ['s_waitcnt lgkmcnt(0)'] + interleave(spB, fb)
    return A, B


def epilogue(vtype, fix, stamps=False):
    L = []
    n = 0
    for o in range(4):
        for q in range(8):
            t0, t1 = (acc(2 * o, q), acc(2 * o + 1, q)) if vtype else (acc(q, 2 * o), acc(q, 2 * o + 1))
            tb = 48 + 4 * (n % 4)
            src = []
            for (k, r) in (t0, t1):
                for e in range(4):
                    if k == 'a':
                        tmp = 2 + len(src)
                        L.append(f'v_accvgpr_read_b32 v{tmp}, a{r + e}')
                        src.append(f'v{tmp}')
                    else:
                        src.append(f'v{r + e}')
            if fix and not vtype:
                for e in range(8):
                    L.append(f'v_mul_f32 {src[e]}, s78, {src[e]}')
            for d in range(4):
                L.append(f'v_cvt_pk_bf16_f32 v{tb + d}, {src[2 * d]}, {src[2 * d + 1]}')
            if fix:
                if vtype and q % 2 == 1:
                    for d in range(4):
                        L.append(f'v_and_or_b32 v{tb + d}, v{tb + d}, v43, v44')
                if not vtype:
                    for d in (2, 3):
                        L.append(f'v_and_b32 v{tb + d}, v{tb + d}, v43')
            if q == 0:
                L.append('s_mov_b32 s30, s26' if o == 0 else 's_add_u32 s30, s30, s29')
                L.append('s_mov_b32 s31, s30')
                so = 's31'
            elif q % 2 == 1:
                L.append('s_add_u32 s36, s31, s28')
                so = 's36'
            else:
                L.append('s_add_u32 s31, s31, s27')
                so = 's31'
            L.append(f'buffer_store_dwordx4 v[{tb}:{tb + 3}], v42, s[12:15], {so} offen{STMOD}')
            n += 1
    if stamps:
        L += stamp_end(WS, 0)
    L.append('s_endpgm')
    return L


def gen(dma_gap=5, stamps=False, pfd=3, order=1):
    N = NAME
    P = []
    a = P.append
    a(f's_cmp_ge_u32 s2, {NJOBS}')
    a(f's_cbranch_scc1 {N}_exit')
    if stamps:
        P += stamp_begin()
    a(f's_load_dwordx4 s[40:43], s[0:1], {A_X}')
    a(f's_load_dwordx4 s[44:47], s[0:1], {B_X}')
    a(f's_load_dwordx4 s[48:51], s[0:1], {B_WQ}')
    a(f's_load_dwordx2 s[52:53], s[0:1], {B_WUV}')
    a(f's_load_dwordx2 s[12:13], s[0:1], {WS}')
    a('v_and_b32 v1, 63, v0')
    a('v_lshrrev_b32 v2, 6, v0')
    a('s_mov_b32 s7, 0x20000')
    a('s_mov_b32 s11, 0x20000')
    a('v_readfirstlane_b32 s20, v2')
    a('s_mov_b32 s15, 0x20000')
    a(f's_mov_b32 s14, {PART}')
    if order:
        a('s_add_u32 s3, s2, 256')
        a('s_sub_u32 s54, s2, 176')
        a('s_cmp_lt_u32 s2, 176')
        a('s_cselect_b32 s3, s3, s54')
    else:
        a('s_mov_b32 s3, s2')
    a('s_and_b32 s54, s3, 7')
    a('s_lshr_b32 s55, s3, 3')
    a('s_mov_b32 s34, 64')
    a('s_mov_b32 s35, 0')
    a('s_mov_b32 s79, 0'); a('s_mov_b32 s78, 1.0')
    a('s_mov_b32 s33, 8192')
    a('s_waitcnt lgkmcnt(0)')
    a('s_cmp_ge_u32 s3, 384')
    a(f's_cbranch_scc1 {N}_jobA')
    a('s_and_b32 s56, s55, 1')
    a('s_lshl_b32 s57, s54, 1')
    a('s_add_u32 s56, s56, s57')
    a('s_lshl_b32 s58, s56, 9')
    a('s_lshl_b32 s59, s56, 20')
    a('s_cmp_ge_u32 s3, 256')
    a(f's_cbranch_scc1 {N}_jobQ')
    a('s_lshr_b32 s60, s55, 2')
    a('s_and_b32 s76, s55, 3'); a('s_lshl_b32 s76, s76, 6'); a('s_mov_b32 s77, 31')
    a('s_mov_b32 s4, s46'); a('s_mov_b32 s5, s47')
    a('s_mov_b32 s32, 2048')
    a('s_mov_b32 s22, 16')
    a(f's_mov_b32 s16, {2048 * 2048}')
    a(f's_mov_b32 s17, {1024 * 8192}')
    a('s_lshl_b32 s61, s60, 17')
    a('s_add_u32 s26, s59, s61')
    a('s_mov_b32 s62, 65536')
    a('s_bitcmp1_b32 s55, 1')
    a(f's_cbranch_scc1 {N}_jobV')
    a('s_mov_b32 s8, s50'); a('s_mov_b32 s9, s51')
    a(f'{N}_ktypeB:')
    a('s_mov_b32 s37, 0')
    a('s_mov_b32 s27, 16384'); a('s_mov_b32 s28, 8192'); a('s_mov_b32 s29, 1024')
    a('s_mov_b32 s63, 4096')
    a(f's_branch {N}_common')
    a(f'{N}_jobV:')
    a('s_mov_b32 s8, s52'); a('s_mov_b32 s9, s53')
    a(f's_add_u32 s26, s26, {VF}')
    a('s_mov_b32 s37, 1')
    a('s_mov_b32 s27, 2048'); a('s_mov_b32 s28, 1024'); a('s_mov_b32 s29, 16384')
    a('s_mov_b32 s63, 8192')
    a(f's_branch {N}_common')
    a(f'{N}_jobQ:')
    a('s_sub_u32 s60, s55, 32')
    a('s_lshr_b32 s60, s60, 1')
    a('s_and_b32 s76, s55, 1'); a('s_lshl_b32 s76, s76, 7'); a('s_mov_b32 s77, 63')
    a('s_mov_b32 s4, s44'); a('s_mov_b32 s5, s45')
    a('s_mov_b32 s8, s48'); a('s_mov_b32 s9, s49')
    a('s_mov_b32 s32, 896')
    a('s_mov_b32 s22, 7')
    a(f's_mov_b32 s16, {2048 * 896}')
    a(f's_mov_b32 s17, {448 * 8192}')
    a('s_lshl_b32 s61, s60, 17')
    a('s_add_u32 s26, s59, s61')
    a(f's_add_u32 s26, s26, {QF}')
    a('s_mov_b32 s79, 1'); a(f's_mov_b32 s78, {f32bits(LOG2E / 16)}')
    a('s_mov_b32 s62, 65536')
    a(f's_branch {N}_ktypeB')
    a(f'{N}_jobA:')
    a('s_mov_b32 s60, s54')
    a('s_sub_u32 s56, s55, 48')
    a('s_and_b32 s76, s56, 3'); a('s_lshl_b32 s76, s76, 6'); a('s_mov_b32 s77, 31')
    a('s_mov_b32 s4, s40'); a('s_mov_b32 s5, s41')
    a('s_mov_b32 s8, s42'); a('s_mov_b32 s9, s43')
    a('s_mov_b32 s32, 896')
    a('s_mov_b32 s33, 2688')
    a('s_mov_b32 s34, 56')
    a('s_mov_b32 s22, 7')
    a(f's_mov_b32 s16, {2048 * 896}')
    a(f's_mov_b32 s17, {448 * 2688}')
    a('s_mul_i32 s58, s56, 448')
    a('s_lshl_b32 s26, s56, 20')
    a(f's_add_u32 s26, s26, {QA}')
    a('s_lshl_b32 s61, s60, 14')
    a('s_add_u32 s26, s26, s61')
    a('s_mov_b32 s62, 8192')
    a('s_mov_b32 s63, 524288')
    a('s_mov_b32 s35, 1')
    a('s_mov_b32 s79, 1')
    a('s_mov_b32 s28, 256')
    a('s_cmp_ge_u32 s56, 4')
    a(f's_cbranch_scc1 {N}_jobAV')
    a('s_mov_b32 s37, 0')
    a('s_mov_b32 s27, 2048'); a('s_mov_b32 s29, 131072')
    a(f's_mov_b32 s78, {f32bits(LOG2E * 28 ** -0.5)}')
    a('s_cmp_lt_u32 s56, 2')
    a(f's_cbranch_scc1 {N}_common')
    a('s_mov_b32 s78, 1.0')
    a('s_mov_b32 s35, 2')
    a('s_mov_b32 s28, 128')
    a(f's_branch {N}_common')
    a(f'{N}_jobAV:')
    a('s_mov_b32 s37, 1')
    a('s_mov_b32 s27, 131072'); a('s_mov_b32 s29, 2048')
    a(f'{N}_common:')
    a('s_mul_i32 s61, s60, s32')
    a('s_lshl_b32 s61, s61, 8')
    a('s_add_u32 s4, s4, s61'); a('s_addc_u32 s5, s5, 0')
    a('s_sub_u32 s16, s16, s61')
    a('s_add_u32 s8, s8, s58'); a('s_addc_u32 s9, s9, 0')
    a('s_sub_u32 s17, s17, s58')
    a('s_mov_b32 s6, s16'); a('s_mov_b32 s10, s17')
    a('s_lshl_b32 s23, s33, 6')
    a('s_lshl_b32 s24, s20, 13')
    a('s_add_u32 s25, s24, 65536')
    a('s_mov_b32 s18, 0'); a('s_mov_b32 s19, 0')
    a('v_lshrrev_b32 v2, 5, v1')
    a('s_lshl_b32 s61, s20, 4')
    a('v_add_u32 v3, s61, v2')
    a('v_mul_lo_u32 v3, v3, s33')
    a('v_bfe_u32 v4, v1, 1, 4')
    a('v_xor_b32 v4, v4, v2')
    a('v_and_b32 v5, 1, v4')
    a('v_lshlrev_b32 v5, 5, v5')
    a('v_and_b32 v6, 1, v1')
    a('v_lshl_add_u32 v5, v6, 4, v5')
    a('v_add_u32 v3, v3, v5')
    a('v_lshrrev_b32 v4, 1, v4')
    for var in range(4):
        a(f'v_xor_b32 v5, {var}, v4')
        a(f'v_mul_lo_u32 v5, v5, s34')
        a(f'v_add_u32 v{6 + var}, v3, v5')
    a('s_lshl_b32 s61, s33, 1')
    a('s_mov_b32 s64, 0')
    for ii in range(8):
        var = (ii & 1) + 2 * (ii >> 2)
        if ii:
            a('s_add_u32 s64, s64, s61')
        a(f's_sub_u32 s65, s64, {(ii % 4) * 1024}')
        a(f'v_add_u32 v{24 + ii}, s65, v{6 + var}')
    a('v_lshrrev_b32 v2, 3, v1')
    a('s_lshl_b32 s61, s20, 6')
    a('v_add_u32 v2, s61, v2')
    a('v_mul_lo_u32 v2, v2, s32')
    a('v_and_b32 v3, 7, v1')
    a('v_lshrrev_b32 v4, 4, v1')
    a('v_xor_b32 v3, v3, v4')
    a('v_lshlrev_b32 v3, 4, v3')
    a('v_xor_b32 v5, 64, v3')
    a('v_add_u32 v3, v2, v3')
    a('v_add_u32 v5, v2, v5')
    a('s_lshl_b32 s61, s32, 3')
    a('s_mov_b32 s64, 0')
    for ii in range(8):
        if ii:
            a('s_add_u32 s64, s64, s61')
        a(f's_sub_u32 s65, s64, {(ii % 4) * 1024}')
        a(f'v_add_u32 v{16 + ii}, s65, v{5 if ii & 1 else 3}')
    for st in range(2):
        for pre, x in dmas(st):
            for y in pre:
                a(y); a('s_nop 0')
            a(x)
        a('s_add_u32 s18, s18, 128')
        a('s_add_u32 s19, s19, s23')
    if pfd:
        a('s_mov_b32 s71, 0x20000')
        a(f's_sub_u32 s74, s22, {pfd - 1}')
        a('s_and_b32 s61, s20, 1')
        a('s_cmp_ge_u32 s20, 2')
        a(f's_cbranch_scc1 {N}_pfw')
        a('s_mov_b32 s68, s4'); a('s_mov_b32 s69, s5'); a('s_mov_b32 s75, s16'); a('s_mov_b32 s73, 128')
        a('s_add_u32 s64, s77, 1'); a('s_mul_i32 s64, s64, s61'); a('s_add_u32 s64, s64, s76')
        a('v_and_b32 v46, s77, v1')
        a('v_add_u32 v46, s64, v46')
        a('v_mul_lo_u32 v46, v46, s32')
        a(f's_branch {N}_pfd')
        a(f'{N}_pfw:')
        a('s_mov_b32 s68, s8'); a('s_mov_b32 s69, s9'); a('s_mov_b32 s75, s17'); a('s_mov_b32 s73, s23')
        a('s_lshl_b32 s64, s60, 3'); a('s_lshl_b32 s61, s61, 2'); a('s_add_u32 s64, s64, s61')
        a('v_bfe_u32 v46, v1, 2, 2')
        a('v_add_u32 v46, s64, v46')
        a('v_mul_lo_u32 v46, v46, s33')
        a('v_and_b32 v2, 3, v1')
        a('v_lshl_add_u32 v46, v2, 7, v46')
        a(f'{N}_pfd:')
        a('s_mov_b32 s70, s75')
        a('s_lshl_b32 s72, s73, 1')
        for d in range(pfd):
            a(PFI)
            a('s_add_u32 s72, s72, s73')
    a('s_lshr_b32 s66, s20, 1')
    a('s_and_b32 s67, s20, 1')
    a('v_and_b32 v2, 15, v1')
    a('v_lshrrev_b32 v3, 1, v2')
    a('v_xor_b32 v3, v3, v4')
    a('v_lshlrev_b32 v3, 4, v3')
    a('v_lshl_add_u32 v3, v2, 7, v3')
    a('s_lshl_b32 s61, s66, 14')
    a('v_add_u32 v32, s61, v3')
    a('v_xor_b32 v33, 64, v32')
    a('v_lshrrev_b32 v3, 2, v2')
    a('v_lshl_add_u32 v5, v4, 3, v3')
    a('v_lshlrev_b32 v5, 9, v5')
    a('v_and_b32 v6, 1, v4')
    a('v_lshl_add_u32 v6, v6, 2, v3')
    a('v_lshl_add_u32 v5, v6, 5, v5')
    a('v_and_b32 v6, 3, v1')
    a('v_lshl_add_u32 v5, v6, 3, v5')
    a('s_lshl_b32 s61, s67, 8')
    a('s_add_u32 s61, s61, 65536')
    a('v_add_u32 v34, s61, v5')
    for j in range(1, 8):
        a(f'v_xor_b32 v{34 + j}, {32 * j}, v34')
    a('s_mul_i32 s61, s66, s62'); a('s_add_u32 s26, s26, s61')
    a('s_mul_i32 s61, s67, s63'); a('s_add_u32 s26, s26, s61')
    a('v_lshlrev_b32 v42, 4, v1')
    a('v_mov_b32 v43, -1')
    a('s_cmp_eq_u32 s35, 0')
    a(f's_cbranch_scc1 {N}_lm_done')
    a('v_lshlrev_b32 v42, 9, v4')
    a('v_lshl_add_u32 v42, v2, 4, v42')
    a('s_cmp_eq_u32 s35, 1')
    a(f's_cbranch_scc1 {N}_lm1')
    a('v_and_b32 v5, 8, v1')
    a('v_lshl_add_u32 v42, v5, 4, v42')
    a(f'{N}_lm1:')
    a('v_mov_b32 v44, 0')
    a('s_cmp_eq_u32 s37, 0')
    a('s_cselect_b32 s61, 48, 12')
    a('v_mov_b32 v5, v2')
    a(f's_cbranch_scc0 {N}_lm2')
    a('v_mov_b32 v5, v1')
    a(f'{N}_lm2:')
    a('v_cmp_gt_u32 vcc, s61, v5')
    a('v_mov_b32 v6, 0x3f803f80')
    a('s_nop 0')
    a('v_cndmask_b32 v43, 0, -1, vcc')
    a('v_cmp_eq_u32 vcc, 12, v2')
    a('s_nop 1')
    a('v_cndmask_b32 v44, v44, v6, vcc')
    a(f'{N}_lm_done:')
    for t in range(64):
        k, r = acc(t // 8, t % 8)
        for e in range(4):
            a(f'v_mov_b32 v{r + e}, 0' if k == 'v' else f'v_accvgpr_write_b32 a{r + e}, 0')
    if stamps:
        P += stamp_mid(0)
    a(f's_waitcnt vmcnt({16 + pfd})')
    a('s_barrier')
    if stamps:
        P += stamp_mid(1)
    P += reads(0, 0, 0)
    a('s_mov_b32 s21, 2')
    body = {}
    for vt in (0, 1):
        tag = f'{N}_t{vt}'
        A0, B0 = half_loop(vt, 0, tag, dma_gap, pf=bool(pfd))
        A1, B1 = half_loop(vt, 1, tag, dma_gap, pf=bool(pfd))
        body[vt] = (A0, B0, A1, B1)
    a('s_cmp_eq_u32 s37, 0')
    a(f's_cbranch_scc0 {N}_t1_entry')
    a(f's_branch {N}_t0_entry')
    out = list(P)
    for vt in (0, 1):
        tag = f'{N}_t{vt}'
        A0, B0, A1, B1 = body[vt]
        Bent = [x for x in B1 if not ('buffer_load' in x or 'm0' in x or x.startswith('s_add_u32 s18') or x.startswith('s_add_u32 s19') or 's72' in x or 's74' in x or 's70' in x)]
        out += ['.p2align 6', f'{tag}_entry:'] + Bent + [f'{tag}_loop:'] + A0 + B0 + A1 + B1 + [f's_branch {tag}_loop']
        out += [f'{tag}_epi:'] + (stamp_mid(2) if stamps else []) + ['s_nop 7', 's_cmp_eq_u32 s79, 0', f's_cbranch_scc0 {tag}_epifix']
        out += epilogue(vt, False, stamps) + [f'{tag}_epifix:'] + epilogue(vt, True, stamps)
        tr = P + Bent + A0 + B0 + A1 + B1 + A0 + ['s_nop 7', 's_cmp_eq_u32 s35, 0'] + epilogue(vt, True)
        assert not check(tr, tag, dummy={('v', 45)})
    out += [f'{N}_exit:', 's_endpgm']
    text = khead(N) + '\n'.join(out) + '\n'
    return dict(name=N, text=text, grid=NJOBS, block=256, lds=LDS, vgpr=448, sgpr=102, accum=256)
```

```python
import re
from asmlib import *
from sched import Plan, resolve_lgw
from layout import *
import gemm1, gemm2, attna4, fin2
from gemm1 import reads, dmas, PFI
from gemm2 import half_loop, dec_kv_x, dec_kv_w, epi_kv, voff_x, voff_w, pf_setup, mfmas
from attnb import (S, P, O, RING, NEGM, Sched, softmax_items, max_items, xreduce, mask_code, r1_code, r2_code, rgap, rgap2,
                   add_waits, CT, OA, MF, TH, BARG, BARG2, D1G, NP1)

NAME = 'mega_kernel'
LDS = 163840
WT = ' sc0 sc1'
SPIN = 200000
FUSE = True
TLBW = 0
WARM = False
PF2START = -5
SKIP = True
AINV = False
VNT = ''
NE = 2
DCNT = [0]
SEQ = [sum({'P': 0, 'S': 1, 'D': 2}[c] << (2 * i) for i, c in enumerate(q)) for q in ('DDDDSSS', 'PSSSDPP')]
D1PRO = 1
QST = False
TST = False
GDMA = 5
TOUCH = False
TASKS = {15: [('B', 0)], 14: [('B', 1), ('A', 4)], 13: [('B', 2), ('A', 7)], 12: [('B', 3), ('A', 9), ('A', 13)],
         11: [('B', 4), ('A', 14), ('B', 15)], 10: [('A', 5)], 9: [('B', 5), ('A', 0)], 8: [('B', 6), ('A', 2), ('A', 6)],
         7: [('B', 7), ('A', 12), ('B', 13)], 6: [('B', 8), ('A', 3), ('B', 14)], 5: [('A', 11)], 4: [('B', 9), ('A', 1)],
         3: [('B', 10), ('A', 15)], 2: [('B', 11), ('B', 12), ('A', 8)], 1: [], 0: [('A', 10)]}
VERB = True
NZERO = 40
STARTPF = 0
DUTYSW = 3
PROST = False
NSTORE = ((0, 0, 0, 8, 8, 8, 8), (13, 13, 6, 0, 0, 0, 0))
LD = ' sc1'
ACNT = {10: 1, 9: 1, 8: 1, 7: 1, 6: 1, 5: 2, 4: 2, 3: 2, 2: 1, 1: 2, 0: 2}


def Q(a, s): return 192 + 32 * a + 4 * s
def XQ(st, a, ks): return 16 * st + 8 * ks + 4 * a
XV = (14, 15, 59, 61)
PFQ = 'buffer_load_dword v45, v47, s[80:83], s86 offen ; tag=pf'
def QACC(dt, a): return 128 + 8 * dt + 4 * a
def QRING(f): return 64 + 4 * (f % 16)
KS = lambda slot: 3 - slot
CSLOT = [3, 2, 0, 1, 3, 2, 0]
QSLOT = [2, 3, 0, 2, 3, 0, 2]
XSL = [2, 3, 0, 1, 2, 3, 0]
XOFF = [0, 16384, 98304, 114688]


def kread(slot, f): return f'ds_read_b128 a[{RING(f)}:{RING(f) + 3}], v17 offset:{(KS(slot) - 2) * 32768 + f * 1024}'
def vread(slot, f): return f'ds_read_b128 a[{RING(f)}:{RING(f) + 3}], v16 offset:{slot * 32768 + ((f % 2) * 16 + f // 2) * 1024}'


def qk_mfmas(b, first=False):
    L = []
    for kt in range(4):
        for a in range(2):
            for s in range(8):
                d = vr(S(b, kt, a), 4)
                c = d if s else ('0' if first else vr(NEGM(a), 4))
                L.append(f'{MF} {d}, {ar(RING(kt * 8 + s), 4)}, {vr(Q(a, s), 4)}, {c}')
    return L


def pv_mfmas(b):
    L = []
    for dt in range(16):
        for a in range(2):
            for kg in range(2):
                o = ar(O(dt, a), 4)
                L.append(f'{MF} {o}, {ar(RING(2 * dt + kg), 4)}, {vr(P(b, kg, a), 4)}, {o}')
    return L


def dma_phys(isv, phys, tag=''):
    L = []
    t = f' ; tag={tag}' if tag else ''
    for i in range(8):
        pre = [f's_add_u32 m0, s18, {phys * 32768 + (i // 4) * 4096}'] if i % 4 == 0 else []
        if isv:
            L.append((pre, f'buffer_load_dwordx4 v{56 + i // 4}, s[8:11], s17 offen offset:{(i % 4) * 1024}{LD}{VNT} lds{t}'))
        else:
            L.append((pre, f'buffer_load_dwordx4 v{48 + i}, s[4:7], s16 offen offset:{(i % 4) * 1024}{LD} lds{t}'))
    return L, ('s_add_u32 s17, s17, 32768' if isv else 's_add_u32 s16, s16, s26')


def dma_wq(phys, tag):
    L = []
    for ii in range(8):
        pre = [f's_add_u32 m0, s18, {phys * 32768 + (ii // 4) * 4096}'] if ii % 4 == 0 else []
        L.append((pre, f'buffer_load_dwordx4 v{24 + ii}, s[8:11], s19 offen offset:{(ii % 4) * 1024} lds ; tag={tag}'))
    return L, 's_add_u32 s19, s19, s23'


def dma_x(st):
    L = []
    for ii in range(4):
        pre = [f's_add_u32 m0, s25, {XOFF[XSL[st]]}'] if ii == 0 else []
        L.append((pre, f'buffer_load_dwordx4 v{XV[ii]}, s[68:71], s65 offen offset:{ii * 1024} lds ; tag=x{st}'))
    return L, 's_add_u32 s65, s65, 128'


def x_reads(st):
    return [f'ds_read_b128 {ar(XQ(st, a, ks), 4)}, v{(43 if XSL[st] >= 2 else 32) + ks} offset:{(XSL[st] % 2) * 16384 + a * 2048}' for ks in range(2) for a in range(2)]


def put_group(sc, grp_adv, g0, gap):
    grp, adv = grp_adv
    g = g0
    for pre, x in grp:
        for y in pre:
            sc.put(g - 1, y)
        sc.put(g, x)
        g += gap
    sc.put(g - gap, adv)


def flat_group(grp_adv):
    grp, adv = grp_adv
    L = []
    for pre, x in grp:
        for y in pre:
            L += [y, 's_nop 0']
        L.append(x)
    return L + [adv]


def switch_code():
    L = ['s_mov_b32 s4, s48', 's_mov_b32 s5, s49', f's_mov_b32 s6, {256 * 896}', 's_mov_b32 s16, 0', 's_mov_b32 s26, 128']
    for i in range(8):
        L.append(f'v_add_u32 v{48 + i}, {i * 8 * 896 - (i % 4) * 1024}, v160')
    return L


def fix_vm(lines, vm0, limit=60):
    vm = list(vm0)
    out = []
    for ln in lines:
        if ln.startswith('VMWAIT'):
            idx = max(max(i for i, t in enumerate(vm) if t == tag) if tag in vm else -1 for tag in ln.split()[1:])
            out.append(f's_waitcnt vmcnt({len(vm) - idx - 1}) lgkmcnt(0)' if idx >= 0 else 's_waitcnt lgkmcnt(0)')
            vm = vm[idx + 1:]
            continue
        I = parse(ln)
        if I is not None and I.cls == 'vmem' and 'v62, v63' not in ln and 'tag=skip' not in ln:
            if len(vm) >= limit:
                out.append('s_waitcnt vmcnt(40)')
                vm = vm[len(vm) - 40:]
            vm.append(ln.split('tag=')[1] if 'tag=' in ln else 'x')
        out.append(ln)
    return out, vm


def signal_code(off, inc=1, base='s[52:53]'):
    return [f'v_mov_b32 v3, {off}', f'v_mov_b32 v2, {inc}', 's_mov_b64 exec, 1', f'global_atomic_add v3, v2, {base} sc1', 's_mov_b64 exec, -1']


def spin_code(lab, vd, va, target, mask=-1):
    return [f's_mov_b32 s62, {SPIN}', f'{lab}spin:', f'v_readfirstlane_b32 s61, {vd}', f's_and_b32 s61, s61, {mask}', f's_cmp_ge_u32 s61, {target}',
            f's_cbranch_scc1 {lab}ok', 's_sleep 4', f'global_load_dword {vd}, {va}, s[52:53] sc1', 's_waitcnt vmcnt(0)',
            's_sub_u32 s62, s62, 1', 's_cmp_lg_u32 s62, 0', f's_cbranch_scc1 {lab}spin', f'{lab}ok:']


D1 = 76
NPAIR1 = 7


NF = 8


def plan_reads(pl, base, cur, nxt, kind, last_tgt=40, bar=47):
    free = (lambda f: 16 * (f // 8) + 8 + f % 8) if kind == 'K' else (lambda f: 4 * (f // 2) + 3)
    pfree = (lambda f: 4 * (f // 2) + 3 - 64) if kind == 'K' else (lambda f: 16 * (f // 8) + 8 + f % 8 - 64)
    waits = [3, 15, 19, 31, 35] if kind == 'K' else [7, 15, 23, 31, 39]
    need = (lambda f: 16 * (f // 8) + 4 * ((f % 8) // 4) - 1) if kind == 'K' else (lambda f: 8 * (f // 4) - 1)
    prev = None
    for f in range(NF, 32):
        lo = max(0, (free(f - 16) if f >= 16 else pfree(f + 16)) + 0)
        hi = min(need(f) - 4, bar - 5 - (31 - f) // 2)
        prev = pl.add(cur(f), base + lo, base + max(lo, ((f - NF) * last_tgt) // (31 - NF)), deps=[prev] if prev else [], hi=base + hi)
    if nxt:
        for f in range(NF):
            prev = pl.add(nxt(f), base + max(bar + 1, free(16 + f)), base + bar + 1 + (f * (61 - bar - 1)) // (NF - 1), deps=[prev], hi=base + (55 + f if f < 4 else 59 + (f - 4)))
    for g in waits:
        pl.fix('LGW 4' if kind == 'K' else 'LGW 8', base + g, last=True)


NTR = 15
TBAR = 52


def plan_tr(pl, cur, nxt, base=0):
    prev = None
    if cur:
        for n in range(NTR, 64):
            prev = pl.fix(cur[n], base + n - NTR)
        for k in range(1, 7):
            pl.fix('LGW 8', base + 8 * k - 1, last=True)
        if not nxt:
            pl.fix('LGW 8', base + 55, last=True)
    if nxt:
        for n in range(NTR):
            pl.fix(nxt[n], base + TBAR + 1 + (n * (63 - TBAR)) // NTR)


def plan_dma(pl, grp_adv, lo, t0, t1, hi):
    grp, adv = grp_adv
    prev = None
    for i, (pre, x) in enumerate(grp):
        t = t0 + (i * (t1 - t0)) // (len(grp) - 1)
        deps = [prev] if prev else []
        if pre:
            m = pl.add('\n'.join(pre), max(lo - 1, -1), t - 6, deps=deps, sep=0, hi=hi - (len(grp) - i))
            deps = [m]
        prev = pl.add(x, lo, t, deps=deps, hi=hi - (len(grp) - 1 - i))
    pl.add(adv, lo, t1 + 1, deps=[prev], sep=0)


def plan_softmax(pl, b, pairs, lo, t0, t1, hi_add=None, hi_cvt=lambda kg: None):
    it = softmax_items(b)
    pe = pa = None
    n = len(pairs)
    for k, q in enumerate(pairs):
        e0, e1, a0, cv, a1 = [x for _, x in it[5 * q:5 * q + 5]]
        ta = t0 + ((2 * k) * (t1 - t0)) // (2 * n)
        tb = t0 + ((2 * k + 1) * (t1 - t0)) // (2 * n)
        h = hi_cvt(q // 8)
        x0 = pl.add(e0, lo, ta, deps=[pe] if pe else [], hi=None if h is None else h - 2)
        x1 = pe = pl.add(e1, lo, tb, deps=[x0], hi=None if h is None else h - 1)
        y0 = pl.add(a0, lo, ta + 1, deps=[x0] + ([pa] if pa else []), hi=hi_add)
        pa = pl.add(a1, lo, tb + 1, deps=[x1, y0], hi=hi_add)
        pl.add(cv, lo, tb + 1, deps=[x1], hi=h)


def iteration(p, tag, masked):
    pl = Plan(128)
    pl.fix('LGW 4', -1)
    plan_reads(pl, 0, lambda f: kread(1 - p, f), lambda f: vread(p, f), 'K')
    plan_reads(pl, 64, lambda f: vread(p, f), lambda f: kread(p, f), 'V')
    pl.fix('LGW 8', 63, last=True)
    pl.fix('; PH', 127, last=True)
    for base in (0, 64):
        pl.fix('s_waitcnt vmcnt(16) lgkmcnt(0)\ns_barrier', base + 47)
    mk = []
    if masked:
        mk = [pl.fix('; MASK', 63)]
    plan_dma(pl, dma_phys(1, 1 - p), 0, 1, 44, 46)
    plan_dma(pl, dma_phys(0, KS(1 - p)), 65, 66, 108, 110)
    prev = {}
    mx = max_items(1 - p)
    for i, x in enumerate(mx):
        I = parse(x)
        kq = max((r[1] - S(1 - p, 0, 0)) // 4 for r in I.r if r[1] >= 64)
        lo = 64 if masked else 8 * kq + 7 + 5
        acc = I.w[0]
        prev[acc] = pl.add(x, lo, max(lo, 30 + 2 * i), deps=[prev[acc]] if acc in prev else [], sep=1, hi=D1 - 5)
    m = pl.add('v_max_f32 v23, v21, v22', 64, D1 - 4, deps=list(prev.values()), hi=D1 - 4)
    c = pl.add('v_cmp_lt_f32 vcc, s22, v23', 64, D1 - 3, deps=[m], hi=D1 - 3)
    pl.fix(f's_cbranch_vccnz {tag}_r1\n; SPLIT', D1, deps=[c])
    plan_softmax(pl, p, range(NPAIR1, 16), 0, 0, 56, hi_add=D1 - 1, hi_cvt=lambda kg: 61)
    plan_softmax(pl, 1 - p, range(NPAIR1), D1 + 1, D1 + 1, 124)
    pl.add('s_add_u32 s19, s19, 1', 80, 112)
    L = interleave(qk_mfmas(1 - p) + pv_mfmas(p), pl.run())
    if masked:
        k = L.index('; MASK')
        L[k:k + 1] = (switch_code() if masked == 2 else []) + mask_code(1 - p)
    elif VERB:
        print('iteration overflow', pl.over, 'instrs', len(L))
    return L


def wread(addr_lo, addr_hi, phys, off, f):
    v = addr_hi if phys >= 2 else addr_lo
    return [f'ds_read_b64_tr_b16 a[{RING(f) + 2 * u}:{RING(f) + 2 * u + 1}], v{v} offset:{(phys % 2) * 32768 + off + u * 2048}' for u in range(2)]


def wo_sm(c, f): return (f // 4, f % 4) if c == 0 else (f % 8, f // 8)
def wo_read(c, f): return wread(161 + wo_sm(c, f)[1], 165 + wo_sm(c, f)[1], CSLOT[c], wo_sm(c, f)[0] * 4096, f)
def wq_read(st, f): return wread(16 + f % 8, 34 + f % 8, QSLOT[st], (f // 16) * 16384 + ((f % 16) // 8) * 256, f)


def norm_items(s):
    L = []
    for a in range(2):
        t = 4 + 8 * 0
        for h in range(2):
            L += [f'v_accvgpr_read_b32 v{t + 4 * h + e}, a{O(2 * s + h, a) + e}' for e in range(4)]
        L += [f'v_mul_f32 v{t + e}, v{t + e}, v{20 + 2 * a}' for e in range(8)]
        L += [f'v_cvt_pk_bf16_f32 v{CT(a, s) + d}, v{t + 2 * d}, v{t + 2 * d + 1}' for d in range(4)]
    return L


def store_items(c):
    b = c % 2
    L = []
    n = 0
    for a in range(2):
        for mp in range(2):
            tb = (4, 8, 12, 28)[n]
            for h in range(2):
                r = OA(b, 2 * mp + h, a)
                L.append(f'v_cvt_pk_bf16_f32 v{tb + 2 * h}, v{r}, v{r + 1}')
                L.append(f'v_cvt_pk_bf16_f32 v{tb + 2 * h + 1}, v{r + 2}, v{r + 3}')
            L.append(f'buffer_store_dwordx4 v[{tb}:{tb + 3}], v{58 if a else 16}, s[12:15], s46 offen offset:{mp * 1024}{WT}')
            n += 1
    L.append('s_add_u32 s46, s46, 2048')
    return L


def tail_code(N, asetup):
    TS = lambda k: SB(k) if TST else []
    T = TS(3) + ['VMWAIT V', 's_barrier']
    T += [vread(1, f) for f in range(NF)]
    items = softmax_items(1)[5 * NPAIR1:]
    ex = [x for k, x in items if k == 'e']
    ot = [x for k, x in items if k != 'e']
    T += ex[:2]
    for i in range(0, len(ex), 2):
        T += ex[i + 2:i + 4] + (['s_nop 0'] if i + 2 >= len(ex) else []) + ot[3 * (i // 2):3 * (i // 2) + 3]
    wo = lambda c: [x for f in range(32) for x in wo_read(c, f)]
    pl = Plan(64)
    pl.fix('LGW 8', -1)
    plan_reads(pl, 0, lambda f: vread(1, f), None, 'V')
    adds = [pl.fix('; PH', -1)]
    last = []
    for aa in range(2):
        prev = adds[-1]
        g = aa
        for i, x in enumerate(y for y in xreduce(24 + aa, 'v_add_f32', 2 + aa) + [f'v_rcp_f32 v{20 + 2 * aa}, v{24 + aa}']
                              if not y.startswith('s_nop')):
            sp_ = 2 if ('permlane' in x or 'permlane' in prev.text) else 1
            g += sp_
            prev = pl.add(x, 0, 0, deps=[prev], sep=sp_, hi=g)
        last.append(prev)
    plan_dma(pl, dma_phys(0, CSLOT[2], 'c2'), 1, 2, 44, 60)
    pl.fix('VMWAIT c0\ns_barrier', 47)
    for n in range(NTR):
        pl.fix(wo(0)[n], 48 + n)
    NPRE = 3
    prev = last
    for s in range(NPRE):
        ch = pl.chain(norm_items(s), max(12, 8 * s + 12), 12 + 17 * s, 28 + 17 * s, deps=prev, sep=0)
        ch[0].sep = 1
        for i, it in enumerate(ch):
            it.hi = min(62, 16 + 17 * s + (i * 16) // 40)
        prev = ch[-1:]
    T += TS(4)
    T.append('s_nop 1')
    T += ['; PVS'] + interleave(pv_mfmas(1), pl.run()) + ['; PVE']
    T.append('s_nop 1')
    T += TS(5)
    for c in range(7):
        pl = Plan(64)
        sp = []
        for f, aa in ([(f, aa) for f in range(32) for aa in range(2)] if c == 0 else
                      [(4 * g + i, aa) for g in range(8) for aa in range(2) for i in range(4)]):
            s, mt = wo_sm(c, f)
            d = vr(OAm(c % 2, mt, aa), 4)
            sp.append(f'{MF} {d}, {ar(RING(f), 4)}, {vr(CT(aa, s), 4)}, {d if s else 0}')
        pl.fix('LGW 8', -1)
        plan_tr(pl, wo(c), wo(c + 1) if c < 6 else None)
        if c == 1:
            pl.fix('v_mov_b32 v60, 64', 46); pl.fix('global_load_dword v59, v60, s[52:53] sc1 ; tag=poll', 49)
        if c == 2:
            pl.fix(f'VMWAIT c3 poll\nv_readfirstlane_b32 s61, v59\ns_cmp_lt_u32 s61, 48\ns_cbranch_scc1 {N}_achk\n{N}_achkr:\n' + ('buffer_inv sc1 ; tag=inv\n' if AINV else '') + 's_barrier', TBAR)
        elif c == 3 and AINV:
            pl.fix('VMWAIT c4 inv\ns_barrier', TBAR)
        elif c < 6:
            pl.fix(f'VMWAIT c{c + 1}\ns_barrier', TBAR)
        if c == 3:
            pl.chain(asetup, 0, 0, 60)
        if c in (4, 5):
            fl = attna4.first_loads()
            fl[-1] += ' ; tag=aq'
            per = (len(fl) + 1) // 2
            prev = None
            for i, x in enumerate(fl[(c - 4) * per:(c - 3) * per]):
                g = 1 + (5 * i) // 2
                prev = pl.add(x, g, g, deps=[prev] if prev else [], sep=0, hi=g)
        if c <= 3:
            grp, adv = dma_phys(0, CSLOT[c + 3], f'c{c + 3}')
            for i, (pre, x) in enumerate(grp):
                for y in pre:
                    pl.fix(y, 6 * i + 1)
                pl.fix(x, 6 * i + 2)
            pl.fix(adv, 46)
        if c == 0:
            it = [x for s in range(NPRE, 8) for x in norm_items(s)]
            prev = None
            for i, x in enumerate(it):
                s = NPRE + i // 40
                g = min((i * 54) // len(it), 8 * s - 3)
                prev = pl.add(x, g, g, deps=[prev] if prev else [], sep=0, hi=g)
        else:
            prev = None
            si = store_items(c - 1)
            for i, x in enumerate(si):
                g = 5 + (i * 58) // len(si)
                prev = pl.add(x, 5, g - 4, deps=[prev] if prev else [], sep=0, hi=g if 'store' in x else 63)
        T += interleave(sp, pl.run())
        T += TS(6 + c) if c in (0, 1, 2) else []
    T += TS(9)
    T += ['s_nop 7'] + store_items(6) + ['s_cmp_eq_u32 s59, 0', f's_cbranch_scc1 {N}_end', 'VMWAIT aq']
    T, _ = resolve_lgw(T, [])
    T, _ = fix_vm(T, ['c0'] * 8 + ['V'] * 8 + ['c1'] * 8)
    return T


def OAm(b, mt, a): return 192 + 32 * b + 8 * mt + 4 * a
OA = OAm


PKBASE = {g: ('v', 128 + 32 * g) for g in range(4)}


def pack_code(vtype, fix):
    from gemm1 import acc
    L = []
    for g in (2, 3, 1, 0):
        if g == 1:
            L += [f'v_mov_b32 v{28 if False else 10}, v10'][:0] + ['ZERO']
        for n in (range(7, -1, -1) if g == 1 else range(8)):
            t0, t1 = (16 * g + n, 16 * g + n + 8) if vtype else (16 * g + 2 * n, 16 * g + 2 * n + 1)
            src = []
            for t in (t0, t1):
                k, r = acc(t // 8, t % 8)
                for e in range(4):
                    if k == 'a':
                        L.append(f'v_accvgpr_read_b32 v{2 + len(src)}, a{r + e}')
                        src.append(f'v{2 + len(src)}')
                    else:
                        src.append(f'v{r + e}')
            if fix and not vtype:
                L += [f'v_mul_f32 {x}, s78, {x}' for x in src]
            tb = PKBASE[g][1] + 4 * n
            for d in ((3, 2, 1, 0) if g == 1 else range(4)):
                L.append(f'v_cvt_pk_bf16_f32 v{tb + d}, {src[2 * d]}, {src[2 * d + 1]}')
            if fix and vtype and n % 2 == 1:
                L += [f'v_and_or_b32 v{tb + d}, v{tb + d}, v43, v44' for d in range(4)]
            if fix and not vtype:
                L += [f'v_and_b32 v{tb + d}, v{tb + d}, v43' for d in (2, 3)]
    k = L.index('ZERO')
    del L[k]
    for i in range(8):
        L.insert(k + 9 * i, f'v_mfma_f32_32x32x16_bf16 a[{128 + 16 * i}:{143 + 16 * i}], v[10:13], v[10:13], 0')
    L = [f'v_mov_b32 v{10 + i}, 0' for i in range(4)] + L
    L += ['s_mov_b32 s43, 4096', f's_mov_b32 s44, {4096 ^ 12288}'] if vtype else ['s_mov_b32 s43, 8192', 's_mov_b32 s44, 0']
    if vtype:
        L += ['s_mov_b32 s73, s28', 's_mov_b32 s74, s27', 's_lshl_b32 s76, s27, 1', 's_mov_b32 s27, s29']
    else:
        L += ['s_mov_b32 s73, s29', 's_lshl_b32 s74, s29, 1', 's_mov_b32 s76, s28']
    L += ['s_mov_b32 s72, 0', 's_add_u32 s75, s74, s73', 's_add_u32 s77, s76, s73', 's_add_u32 s78, s76, s74', 's_add_u32 s79, s76, s75']
    return L


def pk_stores():
    L = []
    for g in (0, 1, 2, 3):
        dk, db = PKBASE[g]
        for n in range(8):
            pre = ['s_add_u32 s26, s26, s27'] if (n == 0 and g) else []
            L.append(pre + [f's_add_u32 s31, s26, s{72 + n}',
                            f'buffer_store_dwordx4 {R((dk, db + 4 * n), 4)}, v42, s[12:15], s31 offen{WT} ; tag=st'])
    return L


STAMPS = False
def SA(k): return stamp_at(k) if STAMPS else []
def SB(k): return [] if PROST else SA(k)


def qw_reads():
    return [f'ds_read_b64_tr_b16 a[{QRING(f) + 2 * u}:{QRING(f) + 2 * u + 1}], v{16 + f % 8} offset:{(f // 16) * 16384 + ((f % 16) // 8) * 256 + u * 2048}'
            for f in range(32) for u in range(2)]


def qx_reads(ks): return [f'ds_read_b128 {ar(8 * ks + 4 * a, 4)}, v{32 + ks} offset:{a * 2048}' for a in range(2)]


def qproj_head(N):
    L = []
    a = L.append
    a('s_lshl_b32 s61, s67, 8')
    for j in range(8):
        a(f'v_subrev_u32 v{16 + j}, s61, v{34 + j}')
        a(f'v_add_u32 v{34 + j}, 0xffff0000, v{16 + j}')
    L += ['v_and_b32 v2, 15, v1', 'v_lshrrev_b32 v3, 1, v2', 'v_lshrrev_b32 v4, 4, v1', 'v_xor_b32 v3, v3, v4', 'v_lshlrev_b32 v3, 4, v3',
          'v_lshl_add_u32 v3, v2, 7, v3', 'v_add_u32 v43, s25, v3', 'v_xor_b32 v44, 64, v43',
          'v_add_u32 v32, 98304, v43', 'v_add_u32 v33, 98304, v44', 's_mov_b32 s42, 0']
    a(f's_cmp_ge_u32 s55, {32 - 4 * NE}'); a(f's_cbranch_scc1 {N}_early'); a(f'{N}_late:')
    early = [f'{N}_early:', 's_waitcnt vmcnt(12)'] + [x for grp in pk_stores() for x in grp]
    early += ['s_waitcnt vmcnt(0)', 's_barrier', 's_mov_b32 s42, 128', 's_cmp_eq_u32 s20, 0', f's_cbranch_scc0 {N}_late'] + signal_code('s3') + [f's_branch {N}_late']
    a('s_lshl_b32 s21, s41, 1'); a('s_add_u32 s6, s21, 2'); a('s_lshl_b32 s6, s6, 15')
    a('s_lshl_b32 s61, s56, 20'); a('s_add_u32 s4, s12, s61'); a('s_addc_u32 s5, s13, 0')
    a('s_sub_u32 s4, s4, 16384'); a('s_subb_u32 s5, s5, 0'); a('s_add_u32 s6, s6, 16384')
    a('s_mov_b32 s16, 16384'); a('s_mov_b32 s17, 0')
    a('v_lshlrev_b32 v2, 4, v1'); a('v_add_u32 v56, s18, v2'); a('v_add_u32 v57, 4096, v56')
    for i in range(8):
        a(f'v_mov_b32 v{48 + i}, v{56 + i // 4}')
    L += ['s_xor_b32 s28, s18, 16384', 's_xor_b32 s29, s25, 8192', 's_mov_b32 s33, 0', 's_mov_b32 s34, 65536', 's_mov_b32 s35, 0',
          's_mov_b32 s36, 98304', 's_mov_b32 s37, 16384',
          f's_mov_b32 s38, {hex(SEQ[0])}', 's_cmp_ge_u32 s20, 2', f's_cselect_b32 s38, {hex(SEQ[1])}, s38', 's_cselect_b32 s40, 0x21, 0x1f', 's_cselect_b32 s47, -1, 1',
          f's_mul_i32 s45, s47, {32 * 8192}', f's_mul_i32 s46, s47, {64 * 896}', 's_lshl_b32 s47, s47, 14']
    L += SB(1)
    a('VMWAIT x0')
    a('s_barrier')
    L += SB(2)
    L += qx_reads(0)
    L += flat_group(dma_x(2))
    L += qw_reads()[:NTR]
    L += ['s_cmp_ge_u32 s20, 2', f's_cbranch_scc1 {N}_qP']
    return L, early


def qproj_body(N, kind):
    pl = Plan(64)
    sp = []
    for f in range(32):
        ks, dt = f // 16, f % 16
        for aa in range(2):
            d = ar(QACC(dt, aa), 4)
            sp.append(f'{MF} {d}, {ar(QRING(f), 4)}, {ar(8 * ks + 4 * aa, 4)}, {d}')
    pl.fix('LGW 8', -1)
    qr = qw_reads()
    plan_tr(pl, qr, qr)
    for i, x in enumerate(qx_reads(1)):
        pl.fix(x, i)
    cw = sum(q << (4 * i) for i, q in enumerate([6, 0, 4, 6, 0, 4, 6]))
    cx = sum(q << (4 * i) for i, q in enumerate([7, 0, 1, 6, 7, 0, 1]))
    nx = pl.chain(['s_lshl_b32 s24, s33, 2', f's_lshr_b32 s32, {hex(cw)}, s24', f's_lshr_b32 s39, {hex(cx)}, s24', 's_and_b32 s32, s32, 15', 's_and_b32 s39, s39, 15',
                   's_lshl_b32 s39, s39, 14', 'v_add_u32 v32, s39, v43', 'v_add_u32 v33, s39, v44', 's_lshl_b32 s32, s32, 14'], 3, 3, 26)
    for i, it in enumerate(nx):
        it.hi = 14 + 2 * i
    for j in range(8):
        pl.add(f'v_add_u32 v{16 + j}, s32, v{34 + j}', 35 + 2 * j, 35 + 2 * j, deps=[nx[-1]], hi=TBAR - 1)
    rot_lo = TBAR + 1
    if kind == 'D':
        gs = [g for g in range(2, 63) if g not in (TBAR - 1, TBAR, TBAR + 1) and g % 8 != 7]
        gs = [gs[(i * (len(gs) - 1)) // 23] for i in range(24)]
        n = 0
        for so, dl, m0s, prv, srd, regs, cn in (('s65', 's46', ('s25', 's29'), 's37', 's[68:71]', XV, 4),
                                                ('s19', 's45', ('s18', 's28'), 's35', 's[8:11]', [24 + i for i in range(8)], 8)):
            for w in range(2):
                for i in range(cn):
                    g = gs[n]
                    pre = []
                    if i == 0 and w:
                        pre.append(f's_add_u32 s30, {so}, {dl}')
                    if i % 4 == 0:
                        pre.append(f's_add_u32 m0, {m0s[w]}, {prv}' if i == 0 else 's_add_u32 m0, m0, 4096')
                    if pre:
                        gp = g - 1 if g - 1 not in (TBAR - 1, TBAR) else TBAR - 2
                        assert n == 0 or gp >= gs[n - 1]
                        pl.fix('\n'.join(pre), gp, last=True)
                    pl.fix(f'buffer_load_dwordx4 v{regs[i]}, {srd}, {"s30" if w else so} offen offset:{(i % 4) * 1024} lds', g)
                    n += 1
        cnt = sum(g < TBAR for g in gs)
        DCNT[0] = 24 - cnt
    elif kind == 'P':
        cnt = 0
    else:
        for k in range(6):
            g = 2 + 8 * k
            T = 64 + 8 * (k % 2)
            pre = 's_cmp_lt_u32 s42, 128\ns_cselect_b32 s31, s26, 0x7ff00000\n' if k % 2 == 0 else ''
            pl.fix(pre + 's_set_gpr_idx_on s42, gpr_idx(SRC0)\n' + '\n'.join(f'v_mov_b64 {vr(T + 2 * i, 2)}, {vr(128 + 2 * i, 2)}' for i in range(4)) +
                   '\ns_set_gpr_idx_off', g, last=True)
            pl.fix('s_add_u32 s42, s42, 8', g + 1, last=True)
            for e in range(2):
                pl.fix(f'buffer_store_dwordx4 {vr(T + 4 * e, 4)}, v42, s[12:15], s31 offen offset:{(2 * (k % 2) + e) * 1024}{WT}', g + 2 + 3 * e)
            if k % 2:
                pl.fix('s_add_u32 s26, s26, s43', g + 6, last=True); pl.fix('s_xor_b32 s43, s43, s44', g + 7)
        pl.fix('s_min_u32 s42, s42, 128', 50, last=True)
        cnt = 12
    pl.fix('s_bitcmp0_b32 s40, s33', TBAR - 1, last=True)
    pl.fix(f's_cbranch_scc1 {N}_q{kind}nw\ns_waitcnt vmcnt({cnt})\n{N}_q{kind}nw:\ns_waitcnt vmcnt(36) lgkmcnt(0)\ns_barrier\n' + '\n'.join(qx_reads(0)), TBAR)
    pl.chain(['s_add_u32 s19, s19, s23', 's_add_u32 s65, s65, 128', 's_mov_b32 s35, s34', 's_mov_b32 s34, s32', 's_mov_b32 s37, s36', 's_mov_b32 s36, s39',
              'S33', 's_lshr_b32 s38, s38, 2', 's_and_b32 s24, s38, 3', 's_cmp_ge_u32 s33, 5\ns_cselect_b32 s24, 3, s24'], 42, 42, 60)
    for it in pl.items:
        if it.text == 'S33':
            it.text, it.lo = 's_add_u32 s33, s33, 1', TBAR + 1
    pl.fix(f's_cmp_eq_u32 s24, {(1, 1, 2)["PSD".index(kind)]}', 63, last=True)
    L = interleave(sp, pl.run())
    if VERB:
        print('qproj body', kind, 'overflow', pl.over, 'instrs', len(L))
    return L


def conv_items(s):
    L = []
    for aa in range(2):
        t = 128 + 8 * aa
        L += [f'v_accvgpr_read_b32 v{t + e}, a{QACC(2 * s + e // 4, aa) + e % 4}' for e in range(8)]
        L += [f'v_mul_f32 v{t + e}, s60, v{t + e}' for e in range(8)]
        L += [f'v_cvt_pk_bf16_f32 v{Q(aa, s) + d}, v{t + 2 * d}, v{t + 2 * d + 1}' for d in range(4)]
    return L


def zero16(k, r): return f'v_mfma_f32_32x32x16_bf16 {k}[{r}:{r + 15}], v[10:13], v[10:13], 0'


def qproj_loop(N, pend):
    (S_, pe), (D_, pe2), (P_, pe3) = [resolve_lgw(qproj_body(N, k), pend) for k in 'SDP']
    assert pe == pend and pe2 == pend and pe3 == pend
    if STAMPS and QST:
        S_, D_, P_ = [X[:-1] + stamp_loop('s33') + X[-1:] for X in (S_, D_, P_)]
    k0 = []
    for w in range(2):
        for i in range(8):
            if i % 4 == 0:
                k0 += [f's_add_u32 m0, {"s28" if w else "s18"}, {KS(0) * 32768 + (i // 4) * 4096}', 's_nop 0']
            k0.append(f'buffer_load_dwordx4 v{48 + i}, s[4:7], {"s30" if w else "s16"} offen offset:{(i % 4) * 1024}{LD} lds')
    glue5 = [f's_add_u32 s8, s4, {VF + 16384}', 's_addc_u32 s9, s5, 0', 's_sub_u32 s10, s6, 16384', 's_cmp_lt_u32 s20, 2', f's_cbranch_scc1 {N}_qS',
             's_lshl_b32 s61, s56, 2', 'v_mov_b32 v3, s61', 'global_load_dword v2, v3, s[52:53] sc1']
    glue6 = ['v_readfirstlane_b32 s61, v2', 's_add_u32 s30, s16, s47', 's_and_b32 s61, s61, 255', f's_cmp_lt_u32 s61, {2 * NE}', f's_cbranch_scc1 {N}_chk', f'{N}_chkr:'] + k0
    rare = [f'{N}_chk:'] + spin_code(N + '_q', 'v2', 'v3', 2 * NE, 255) + [f's_branch {N}_chkr']
    conv = ['s_add_u32 s16, s16, 32768', f's_mov_b32 s60, {f32bits(LOG2E / 16)}', 's_mov_b32 s61, s60',
            'v_lshlrev_b32 v16, 4, v1', 'v_add_u32 v17, 0x10000, v16', 'v_add_u32 v58, 14336, v16',
            'v_lshrrev_b32 v2, 4, v1', 'v_lshlrev_b32 v2, 2, v2', 'v_and_b32 v3, 15, v1', 'v_sub_u32 v20, v2, v3',
            f's_mov_b32 s22, {TH}', 's_lshl_b32 s24, s20, 5', 's_mov_b32 s19, 1', 's_mov_b32 s26, 32768']
    conv += conv_items(0)
    conv += SB(10) + ['s_cmp_lt_u32 s20, 2', f's_cbranch_scc1 {N}_k0w', 's_waitcnt vmcnt(0)', f'{N}_k0w:', 's_waitcnt vmcnt(36) lgkmcnt(0)', 's_barrier'] + SB(11)
    code = ([f'{N}_qD:'] + D_ + [f's_cbranch_scc1 {N}_qD', f's_branch {N}_qN',
             f'{N}_qP:'] + P_ + [f's_cbranch_scc0 {N}_qN',
             f'{N}_qS:'] + S_ + [f's_cbranch_scc1 {N}_qS',
             f'{N}_qN:', 's_cmp_eq_u32 s24, 1', f's_cbranch_scc1 {N}_qS', 's_cmp_eq_u32 s24, 2', f's_cbranch_scc1 {N}_qD',
             's_cmp_eq_u32 s33, 6', f's_cbranch_scc1 {N}_qG6', 's_cmp_eq_u32 s33, 7', f's_cbranch_scc1 {N}_qX'] + glue5 + [f's_branch {N}_qP',
             f'{N}_qG6:', 's_cmp_lt_u32 s20, 2', f's_cbranch_scc1 {N}_qS'] + glue6 + [f's_branch {N}_qP', f'{N}_qX:'] + conv)
    nw = lambda X: [x for x in X if not (x.startswith('s_waitcnt vmcnt') and 'lgkm' not in x)]
    trL = D_ * 4 + S_ + glue5[:3] + nw(S_) * 2 + nw(conv)
    trH = P_ + nw(S_) * 3 + nw(D_) + glue5 + P_ + glue6 + nw(P_) + conv
    return code, rare, trL, trH


def qproj_tail(N):
    L, rare = [], []
    a = L.append
    pl = Plan(64)
    k0r = lambda f: f'ds_read_b128 {ar(QRING(f), 4)}, v17 offset:{(KS(0) - 2) * 32768 + ((f % 4) * 8 + f // 4) * 1024}'
    L += [k0r(f) for f in range(9)] + [zero16('a', 16 * i) for i in range(4)]
    if WARM:
        L += ['s_lshl_b32 s44, s2, 2', 's_add_u32 s44, s44, s20', 's_mul_i32 s45, s44, 28', 'v_min_u32 v2, 27, v1', 'v_add_u32 v2, s45, v2', 'v_lshlrev_b32 v2, 7, v2',
              's_mov_b32 s80, s48', 's_mov_b32 s81, s49', f's_mov_b32 s82, {4096 * 896}', 'buffer_load_dword v45, v2, s[80:83], 0 offen',
              's_lshl_b32 s45, s44, 2', 'v_and_b32 v2, 3, v1', 'v_add_u32 v2, s45, v2', 'v_lshlrev_b32 v2, 7, v2',
              's_mov_b32 s80, s50', 's_mov_b32 s81, s51', f's_mov_b32 s82, {448 * 896}', 'buffer_load_dword v45, v2, s[80:83], 0 offen']
    pl.fix('LGW 8', -1)
    for f in range(9, 32):
        pl.fix(k0r(f), max(((f - 9) * 40) // 22, 2 * (f - 16) + 1))
    for k in range(1, 6):
        pl.fix('LGW 8', 8 * k - 1, last=True)
    pl.fix('LGW 16', 47, last=True)
    plan_dma(pl, dma_phys(0, KS(1), 'k1'), 0, 1, 28, 40)
    plan_dma(pl, dma_phys(1, 0, 'v0'), 30, 31, 60, 62)
    for s_ in range(1, 8):
        for i, x in enumerate(conv_items(s_)):
            pl.fix(x, 8 * (s_ - 1) + (i * 6) // 40)
    sp = []
    for f in range(32):
        for aa in range(2):
            d = vr(S(0, f % 4, aa), 4)
            sp.append(f'{MF} {d}, {ar(QRING(f), 4)}, {vr(Q(aa, f // 4), 4)}, {d if f >= 4 else 0}')
    fl = []
    fl += ['s_lshl_b32 s44, s56, 2', 'v_mov_b32 v60, s44']
    fl += ['s_lshl_b32 s44, s41, 3', 's_lshl_b32 s45, s20, 1', 's_add_u32 s44, s44, s45',
           's_lshl_b32 s46, s56, 7', 's_add_u32 s46, s46, s44', 's_mul_i32 s46, s46, 14336', f's_add_u32 s46, s46, {PART}',
           f's_mul_i32 s47, s56, {256 * 896}', 's_add_u32 s48, s48, s47', 's_addc_u32 s49, s49, 0',
           'v_lshrrev_b32 v2, 3, v1', 's_lshl_b32 s47, s20, 6', 'v_add_u32 v2, s47, v2', 'v_mul_u32_u24 v2, 896, v2',
           'v_lshrrev_b32 v3, 4, v1', 'v_lshlrev_b32 v4, 1, v3', 'v_and_b32 v5, 7, v1', 'v_xor_b32 v4, v4, v5',
           'v_lshl_add_u32 v160, v4, 4, v2',
           'v_bfe_u32 v4, v1, 2, 2', 'v_lshl_add_u32 v5, v3, 2, v4', 'v_lshrrev_b32 v6, 1, v5', 'v_and_b32 v6, 3, v6',
           'v_lshlrev_b32 v5, 7, v5', 'v_lshl_add_u32 v5, v6, 5, v5', 'v_and_b32 v6, 3, v1', 'v_lshl_add_u32 v161, v6, 3, v5']
    fl += [f'v_xor_b32 v{161 + j}, {32 * j}, v161' for j in range(1, 4)] + [f'v_add_u32 v{165 + j}, 0x10000, v{161 + j}' for j in range(4)]
    k = fl.index('s_add_u32 s48, s48, s47')
    fl[k:k + 2] = ['\n'.join(fl[k:k + 2])]
    pl.chain(fl, 0, 6, 62)
    L += interleave(sp, pl.run())
    L += [zero16('a', 64 + 16 * i) for i in range(4)]
    a('s_barrier')
    a('s_cmp_lg_u32 s21, 0')
    a(f's_cbranch_scc1 {N}_nomask0')
    L += switch_code() + mask_code(0)
    a(f'{N}_nomask0:')
    L += flat_group(dma_phys(0, KS(0), 'k2'))
    L += ['s_nop 7']
    L += max_items(0) + r1_code(0, True)
    for k, x in softmax_items(0)[:5 * NPAIR1]:
        a(x)
        if k == 'e':
            a('s_nop 0')
    a('s_waitcnt vmcnt(16)')
    a('s_barrier')
    L += ['s_cmp_eq_u32 s20, 0', f's_cbranch_scc0 {N}_sig2r', f's_cmp_ge_u32 s55, {32 - 4 * NE}', f's_cbranch_scc1 {N}_sig2r'] + signal_code('s3', 256) + [f'{N}_sig2r:']
    L += [kread(1, f) for f in range(NF)]
    return L, rare


def pre_issue(full):
    L = ['s_waitcnt lgkmcnt(0)', f's_load_dwordx2 s[68:69], s[0:1], {B_X}', f's_load_dwordx2 s[48:49], s[0:1], {B_WO}', f's_load_dwordx2 s[50:51], s[0:1], {A_WO}']
    if full:
        L += [f's_load_dwordx2 s[8:9], s[0:1], {B_WQ}', 's_mov_b32 s33, 8192', 's_mov_b32 s34, 64', 's_lshl_b32 s17, s56, 9'] + voff_w()[:-1]
    L += ['s_lshl_b32 s18, s20, 13', 's_lshr_b32 s41, s55, 1', 's_sub_u32 s41, 15, s41', f's_mul_i32 s61, s41, {128 * 896}',
          f's_mov_b32 s70, {192 * 896}', 's_lshl_b32 s25, s20, 12', 's_add_u32 s25, s25, 32768', f's_mov_b32 s65, {64 * 896}',
          'v_lshrrev_b32 v2, 3, v1', 's_lshl_b32 s64, s20, 5', 'v_add_u32 v2, s64, v2', 'v_mul_u32_u24 v2, 896, v2',
          'v_and_b32 v3, 7, v1', 'v_lshrrev_b32 v4, 4, v1', 'v_xor_b32 v3, v3, v4', 'v_lshlrev_b32 v3, 4, v3', 'v_xor_b32 v4, 64, v3',
          f'v_add_u32 v{XV[0]}, v2, v3', 'v_add_u32 v4, v2, v4', f'v_add_u32 v{XV[1]}, {8 * 896 - 1024}, v4',
          f'v_add_u32 v{XV[2]}, {16 * 896 - 2048}, v{XV[0]}', f'v_add_u32 v{XV[3]}, {24 * 896 - 3072}, v4',
          's_waitcnt vmcnt(0) lgkmcnt(0)' if False else 's_waitcnt lgkmcnt(0)', 's_add_u32 s68, s68, s61', 's_addc_u32 s69, s69, 0',
          f's_sub_u32 s68, s68, {64 * 896}', 's_subb_u32 s69, s69, 0']
    if full:
        L += ['s_add_u32 s8, s8, s17', 's_addc_u32 s9, s9, 0', f's_sub_u32 s10, {448 * 8192}, s17']
        L += flat_group(dma_wq(QSLOT[0], 'w0')) + flat_group(dma_wq(QSLOT[1], 'w1'))
    L += flat_group(dma_x(0)) + flat_group(dma_x(1))
    L += ['s_mul_i32 s86, s87, 3'] + [PFQ, 's_add_u32 s86, s86, s87'] * 4
    return L


PF2I = 'buffer_load_dword v45, v47, s[80:83], s86 offen'


def GW(p, j, s): return 64 * p + 8 * j + 4 * s
def GX(i, s): return 192 + 8 * i + 4 * s


def g_xreads(par, rows): return [f'ds_read_b128 {ar(GX(i, s), 4)}, v{32 + s} offset:{par * 32768 + i * 2048}' for i in rows for s in range(2)]
def g_wreads(par): return [f'ds_read_b64_tr_b16 {ar(GW(par, j, s) + 2 * u, 2)}, v{34 + j} offset:{par * 32768 + s * 16384 + u * 2048}'
                           for j in range(8) for s in range(2) for u in range(2)]


def g_mfmas(vt, par, rows):
    from gemm1 import acc
    L = []
    for i in rows:
        for j in range(8):
            for s in range(2):
                c, x, w = R(acc(i, j), 4), ar(GX(i, s), 4), ar(GW(par, j, s), 4)
                L.append(f'{MF} {c}, {x}, {w}, {c}' if vt else f'{MF} {c}, {w}, {x}, {c}')
    return L


def g_zero(): return [f'v_mov_b32 v{10 + i}, 0' for i in range(4)] + ['s_nop 1'] + [zero16('v', 64 + 16 * i) for i in range(12)] + [zero16('a', 128 + 16 * i) for i in range(4)]


def gemm_half(vt, p, tag):
    pl = Plan(128)
    pl.fix(f's_cbranch_scc1 {tag}_hk{p}\n{tag}_hkr{p}:', 0)
    xr = g_xreads(1 - p, range(4))
    rd = xr[:2] + g_wreads(1 - p) + xr[2:]
    dg = [2 + 4 * n for n in range(15)] + [61]
    rg = [g for g in range(1, 60) if g not in dg][:len(rd)]
    for x, g in zip(rd, rg):
        pl.fix(x, g)
    for n, (pre, x) in enumerate(dmas(p)):
        if pre:
            pl.fix(pre[0], dg[n] - 1)
        pl.fix(x, dg[n])
    pl.fix('s_add_u32 s19, s19, s23', 33)
    pl.fix('s_add_u32 s18, s18, 128\ns_cmp_eq_u32 s21, s38', 62, last=True)
    pl.fix(f's_cbranch_scc1 {tag}_epi\ns_add_u32 s21, s21, 1\n; CUT\ns_waitcnt lgkmcnt(0)', 63)
    pl.chain(g_xreads(1 - p, range(4, 8)), 64, 66, 100, sep=1)
    q1 = pl.fix(PFI, 71)
    q2 = pl.fix(PF2I, 79)
    pl.fix('s_add_u32 s72, s72, s73', 73)
    pl.fix('s_add_u32 s86, s86, s87', 81)
    pl.fix('s_cmp_eq_u32 s21, s39', 126, last=True)
    pl.fix('s_waitcnt vmcnt(2) lgkmcnt(0)\ns_barrier', 127)
    L = interleave(g_mfmas(vt, p, range(4, 8)) + g_mfmas(vt, 1 - p, range(4)), pl.run())
    k = L.index('; CUT')
    return L[:k], L[k + 1:]


def gen(dma_gap=5, stamps=False, pfd=2):
    gemm1.STMOD = WT + ' ; tag=st'
    global STAMPS
    STAMPS = stamps
    N = NAME
    P_ = []
    a = P_.append
    a('s_cmp_ge_u32 s2, 256')
    a(f's_cbranch_scc1 {N}_exit')
    if stamps:
        P_ += stamp_begin()
    a(f's_load_dwordx4 s[44:47], s[0:1], {B_X}')
    a(f's_load_dwordx4 s[48:51], s[0:1], {B_WQ}')
    a(f's_load_dwordx2 s[52:53], s[0:1], {B_WUV}')
    a(f's_load_dwordx4 s[40:43], s[0:1], {A_X}')
    a(f's_load_dwordx2 s[12:13], s[0:1], {WS}')
    a('v_lshrrev_b32 v2, 6, v0')
    a('v_and_b32 v1, 63, v0')
    a('s_mov_b32 s7, 0x20000')
    a('v_readfirstlane_b32 s20, v2')
    a('s_mov_b32 s11, 0x20000'); a('s_mov_b32 s15, 0x20000'); a('s_mov_b32 s71, 0x20000')
    a(f's_mov_b32 s14, {PART_END}')
    a('s_and_b32 s54, s2, 7'); a('s_lshr_b32 s55, s2, 3')
    a('s_and_b32 s56, s55, 1'); a('s_lshl_b32 s57, s54, 1'); a('s_add_u32 s56, s56, s57')
    a('s_lshl_b32 s24, s20, 13'); a('s_add_u32 s25, s24, 65536')
    a('s_lshr_b32 s66, s20, 1'); a('s_and_b32 s67, s20, 1')
    a('s_mov_b32 s32, 2048'); a('s_mov_b32 s33, 8192'); a('s_mov_b32 s34, 64')
    vx, vw = voff_x(), voff_w()
    P_ += vx[:-1] + vw[:-1]
    a('s_waitcnt lgkmcnt(0)')
    if stamps and PROST:
        P_ += stamp_init() + SA(0)
    P_ += dec_kv_x() + dec_kv_w() + vx[-1:] + vw[-1:]
    a(f's_load_dwordx2 s[52:53], s[0:1], {DBG}')
    PF_MARK = len(P_)
    a('s_and_b32 s76, s55, 3'); a('s_lshl_b32 s76, s76, 6')
    P_ += pf_setup(N, 'pf0', 's32', 's33', ('s4', 's5'), ('s8', 's9'), 's16', 's17', 's3', 's76', '31')
    a('s_mov_b32 s72, 0')
    for d in range(pfd + 2):
        a(PFI)
        if d < pfd + 1:
            a('s_add_u32 s72, s72, s73')
    a('v_lshrrev_b32 v4, 4, v1')
    a('v_and_b32 v2, 15, v1'); a('v_lshrrev_b32 v3, 1, v2'); a('v_xor_b32 v3, v3, v4'); a('v_lshlrev_b32 v3, 4, v3')
    a('v_lshl_add_u32 v3, v2, 7, v3'); a('s_lshl_b32 s61, s66, 14'); a('v_add_u32 v32, s61, v3'); a('v_xor_b32 v33, 64, v32')
    a('v_lshrrev_b32 v3, 2, v2'); a('v_lshl_add_u32 v5, v4, 3, v3'); a('v_lshlrev_b32 v5, 9, v5'); a('v_and_b32 v6, 1, v4')
    a('v_lshl_add_u32 v6, v6, 2, v3'); a('v_lshl_add_u32 v5, v6, 5, v5'); a('v_and_b32 v6, 3, v1'); a('v_lshl_add_u32 v5, v6, 3, v5')
    a('s_lshl_b32 s61, s67, 8'); a('s_add_u32 s61, s61, 65536'); a('v_add_u32 v34, s61, v5')
    for j in range(1, 8):
        a(f'v_xor_b32 v{34 + j}, {32 * j}, v34')
    a('s_mov_b32 s38, 17'); a('s_mov_b32 s35, 0'); a('s_mov_b32 s78, 1.0'); a('v_mov_b32 v43, -1')
    a('s_mov_b32 s39, 14')
    a('s_cmp_ge_u32 s55, 26'); a(f's_cbranch_scc1 {N}_jobA')
    a('s_mov_b32 s89, 0')
    a('s_lshr_b32 s57, s55, 1'); a('s_sub_u32 s64, 15, s57'); a('s_and_b32 s57, s57, 7')
    a('s_mov_b32 s76, 0'); a('s_mov_b32 s77, 63')
    a(f's_mul_i32 s61, s64, {128 * 896}')
    a('s_add_u32 s40, s44, s61'); a('s_addc_u32 s41, s45, 0'); a(f's_mov_b32 s42, {128 * 896}')
    a('s_lshl_b32 s61, s56, 9')
    a('s_add_u32 s44, s48, s61'); a('s_addc_u32 s45, s49, 0'); a(f's_sub_u32 s48, {448 * 8192}, s61')
    a('s_mov_b32 s43, 8192'); a('s_mov_b32 s49, 64')
    a('s_lshl_b32 s3, s56, 2')
    a(f's_branch {N}_dec_done')
    a(f'{N}_jobA:')
    a('s_mov_b32 s89, 1'); a('s_mov_b32 s3, 64')
    a('s_mov_b32 s57, s54')
    a('s_sub_u32 s64, s55, 26')
    a('s_and_b32 s76, s64, 3'); a('s_lshl_b32 s76, s76, 6'); a('s_mov_b32 s77, 31')
    a('s_mul_i32 s61, s64, 448')
    a('s_add_u32 s44, s42, s61'); a('s_addc_u32 s45, s43, 0'); a(f's_sub_u32 s48, {448 * 2688}, s61')
    a(f's_mul_i32 s61, s57, {256 * 896}')
    a('s_add_u32 s40, s40, s61'); a('s_addc_u32 s41, s41, 0'); a(f's_sub_u32 s42, {2048 * 896}, s61')
    a('s_mov_b32 s43, 2688'); a('s_mov_b32 s49, 56')
    a('s_lshl_b32 s58, s64, 20'); a(f's_add_u32 s58, s58, {QA}'); a('s_lshl_b32 s61, s57, 14'); a('s_add_u32 s58, s58, s61')
    a('s_lshl_b32 s61, s66, 13'); a('s_add_u32 s58, s58, s61'); a('s_lshl_b32 s61, s67, 19'); a('s_add_u32 s58, s58, s61')
    a('s_mov_b32 s35, 1'); a('s_mov_b32 s60, 256')
    a('s_mov_b32 s63, 1'); a('s_mov_b32 s59, 131072'); a('s_mov_b32 s62, 2048')
    a('s_cmp_ge_u32 s64, 4'); a(f's_cbranch_scc1 {N}_dec_done')
    a('s_mov_b32 s63, 0'); a('s_mov_b32 s59, 2048'); a('s_mov_b32 s62, 131072')
    a(f's_mov_b32 s78, {f32bits(LOG2E * 28 ** -0.5)}')
    a('s_cmp_lt_u32 s64, 2'); a(f's_cbranch_scc1 {N}_dec_done')
    a('s_mov_b32 s78, 1.0'); a('s_mov_b32 s35, 2'); a('s_mov_b32 s60, 128')
    a(f'{N}_dec_done:')
    a('s_cmp_eq_u32 s2, 255'); a(f's_cbranch_scc0 {N}_noclr')
    a('v_and_b32 v2, 31, v1'); a('v_lshlrev_b32 v2, 7, v2'); a(f'v_add_u32 v2, {FLG}, v2'); a('v_mov_b32 v3, 0')
    a(f'global_store_dword v2, v3, s[12:13]{WT}')
    a(f'{N}_noclr:')
    if TLBW:
        sizes = [2048 * 896, 448 * 2688, 448 * 896, 2048 * 896, 2048 * 2048, 448 * 8192, 1024 * 8192, 1024 * 8192, 4096 * 896, 2048 * 1792]
        a('s_sub_u32 s61, s55, 12'); a('s_cmp_lt_u32 s61, 10'); a(f's_cbranch_scc0 {N}_notw'); a('s_cmp_eq_u32 s20, 3'); a(f's_cbranch_scc0 {N}_notw')
        a('s_lshl_b32 s61, s61, 3'); a('s_load_dwordx2 s[28:29], s[0:1], s61')
        a(f's_mov_b32 s30, {sizes[0]}')
        for i in range(1, 10):
            a(f's_cmp_eq_u32 s61, {8 * i}'); a(f's_cselect_b32 s30, {sizes[i]}, s30')
        a('s_mov_b32 s31, 0x20000'); a('v_lshlrev_b32 v2, 17, v1'); a('s_waitcnt lgkmcnt(0)')
        a('buffer_load_dword v45, v2, s[28:31], 0 offen')
        a(f'{N}_notw:')
    a('s_mov_b32 s50, 896')
    if stamps:
        P_ += stamp_init()
    if STARTPF:
        a(f's_waitcnt vmcnt({pfd + 1 - (STARTPF - 1)})')
    d0 = dmas(0)
    D0 = []
    for pre, x in d0[8:] + d0[:8]:
        for y in pre:
            D0 += [y, 's_nop 0']
        D0.append(x)
    D0 += ['s_add_u32 s18, s18, 128', 's_add_u32 s19, s19, s23']
    if D1PRO:
        for pre, x in dmas(1):
            for y in pre:
                D0 += [y, 's_nop 0']
            D0.append(x)
        D0 += ['s_add_u32 s18, s18, 128', 's_add_u32 s19, s19, s23']
    if stamps and PROST:
        D0 = D0 + SA(1)
    if STARTPF:
        P_ += D0
    else:
        P_[PF_MARK:PF_MARK] = D0
    warm = pf_setup(N, 'pfw', 's50', 's43', ('s40', 's41'), ('s44', 's45'), 's42', 's48', 's57', 's76', 's77')
    ren = {'s68': 's80', 's69': 's81', 's70': 's82', 's75': 's82', 's73': 's87', 'v46': 'v47'}
    for x in warm:
        for k_, v_ in ren.items():
            x = re.sub(rf'\b{k_}\b', v_, x)
        a(x)
    a('s_mov_b32 s83, 0x20000'); a(f's_mul_i32 s86, s87, {PF2START}')
    P_ += epi_kv(N, 'e0')
    if TLBW > 1:
        P_ += ['s_lshr_b32 s61, s55, 1', 's_sub_u32 s61, 15, s61', 's_lshl_b32 s61, s61, 3', 's_lshl_b32 s64, s56, 7', 's_add_u32 s61, s61, s64',
               's_lshl_b32 s64, s20, 1', 's_add_u32 s61, s61, s64', 's_mul_i32 s61, s61, 14336', f's_add_u32 s61, s61, {PART}',
               's_mov_b64 exec, 1', f'buffer_store_dword v1, v42, s[12:15], s26 offen{WT}', f'buffer_store_dword v1, v42, s[12:15], s61 offen{WT}',
               's_mov_b64 exec, -1']
    a('s_mov_b32 s21, 2')
    P_ += g_zero()
    if TOUCH:
        P_ += ['s_mov_b64 exec, 0', 's_cmp_eq_u32 s20, 1', f's_cbranch_scc1 {N}_qproj', 's_cmp_eq_u32 s20, 2', f's_cbranch_scc1 {N}_qH',
               's_cmp_eq_u32 s20, 3', f's_cbranch_scc1 {N}_qT', 's_cmp_eq_u32 s37, 0', f's_cbranch_scc1 {N}_t0_epi', f's_branch {N}_t1_epi',
               f'{N}_warm:', 's_mov_b64 exec, -1']
    PAD = [f's_cbranch_execz {N}_warm'] if TOUCH else []
    a('s_cmp_eq_u32 s37, 0')
    a(f's_cbranch_scc0 {N}_t1_entry')
    ENT = [f's_waitcnt vmcnt({pfd + 2 + 16}) lgkmcnt(0)', 's_barrier'] + g_xreads(0, range(4)) + g_wreads(0)
    out = list(P_)
    P_ = [x for x in P_ if 'exec' not in x] + ENT
    far = []

    def hk_near(lab):
        return ['s_cmp_eq_u32 s21, 14', f's_cbranch_scc0 {lab}_b', 's_mov_b32 s86, 0', 's_mov_b32 s70, 0', 's_mov_b32 s39, 16', f's_branch {lab}_r',
                f'{lab}_b:', 's_cmp_eq_u32 s89, 0', f's_cbranch_scc0 {lab}_far',
                's_mov_b32 s8, s44', 's_mov_b32 s9, s45', 's_mov_b32 s10, s48', 's_mov_b32 s6, 0', 's_mov_b32 s19, 0', f's_branch {lab}_r']

    def hk_far(lab):
        return (['s_cmp_eq_u32 s21, 16', f's_cbranch_scc0 {lab}_c',
                 's_mov_b32 s4, s40', 's_mov_b32 s5, s41', 's_mov_b32 s32, 896', 's_mov_b32 s16, s42',
                 's_mov_b32 s8, s44', 's_mov_b32 s9, s45', 's_mov_b32 s17, s48', 's_mov_b32 s33, s43', 's_mov_b32 s34, s49',
                 's_mov_b32 s39, 18'] + voff_x() + voff_w() + [f's_branch {lab}_r',
                 f'{lab}_c:', 's_cmp_eq_u32 s21, 18', f's_cbranch_scc0 {lab}_d', 's_mov_b32 s39, 23',
                 's_cmp_eq_u32 s20, 0', f's_cbranch_scc0 {lab}_r', 's_lshl_b32 s61, s56, 2'] + signal_code('s61') + [f's_branch {lab}_r',
                 f'{lab}_d:', 's_mov_b32 s6, 0', 's_mov_b32 s10, 0', 's_mov_b32 s82, 0', f's_branch {lab}_r'])

    nx = ['s_mov_b32 s26, s58', 's_mov_b32 s27, s59', 's_mov_b32 s28, s60', 's_mov_b32 s29, s62', 's_mov_b32 s37, s63',
          's_mov_b32 s79, 1', 's_mov_b32 s38, 24', 's_add_u32 s21, s21, 1',
          'v_lshrrev_b32 v4, 4, v1', 'v_and_b32 v2, 15, v1',
          'v_lshlrev_b32 v42, 9, v4', 'v_lshl_add_u32 v42, v2, 4, v42',
          's_cmp_eq_u32 s35, 1', f's_cbranch_scc1 {N}_lm1',
          'v_and_b32 v5, 8, v1', 'v_lshl_add_u32 v42, v5, 4, v42',
          f'{N}_lm1:', 'v_mov_b32 v44, 0', 's_cmp_eq_u32 s37, 0', 's_cselect_b32 s61, 48, 12', 'v_mov_b32 v5, v2',
          f's_cbranch_scc0 {N}_lm2', 'v_mov_b32 v5, v1',
          f'{N}_lm2:', 'v_cmp_gt_u32 vcc, s61, v5', 'v_mov_b32 v6, 0x3f803f80', 's_nop 0', 'v_cndmask_b32 v43, 0, -1, vcc',
          'v_cmp_eq_u32 vcc, 12, v2', 's_nop 1', 'v_cndmask_b32 v44, v44, v6, vcc'] + g_zero() + [
          's_cmp_eq_u32 s37, 0', f's_cbranch_scc0 {N}_t1_bz', f's_branch {N}_t0_bz']
    can = ['x0'] * 4 + ['x1'] * 4 + ['pf'] * 4
    QH, early = qproj_head(N)
    QH, vmh = fix_vm(QH, can)
    QH, pendh = resolve_lgw(QH, [])
    QL, qrare, trL, trH = qproj_loop(N, pendh)
    qrare += early
    QT, rr = qproj_tail(N)
    QT, pend = resolve_lgw(QT, [])
    qrare += rr
    qp = QH + trL + QT
    vm_in = ['w0'] * 8 + ['x'] * 6 + ['w1'] * 8 + ['x'] * 5
    QPres = None
    dm = {('v', 45)}
    for vt in (0, 1):
        tag = f'{N}_t{vt}'
        A0, B0 = gemm_half(vt, 0, tag)
        A1, B1 = gemm_half(vt, 1, tag)
        if gemm2.LOOPST:
            A0[3:3] = stamp_loop('s21'); A1[3:3] = stamp_loop('s21')
        Bent = Bz = B1
        out += [f'{tag}_entry:'] + ENT + [f'{tag}_bz:'] + B1 + A0 + B0 + A1 + [f's_branch {tag}_bz']
        h0 = [x.replace(f'{tag}_h0_r', f'{tag}_hkr0') for x in hk_near(f'{tag}_h0')]
        out += [f'{tag}_hk0:'] + h0
        far += [f'{tag}_h0_far:'] + [x.replace(f'{tag}_h0_r', f'{tag}_hkr0') for x in hk_far(f'{tag}_h0')]
        far += [f'{tag}_hk1:'] + [x.replace(f'{tag}_h1_r', f'{tag}_hkr1') for x in hk_far(f'{tag}_h1')]
        st0 = SB(0)
        p_i, vm1 = fix_vm(pre_issue(False), ['w1'] * 8 + ['x'] * 8)
        e_p = gemm1.epilogue(vt, False, False)[:-1]
        p_f, vm2 = fix_vm(pre_issue(True), ['x'] * 16)
        k_p, k_f = pack_code(vt, False), pack_code(vt, True)
        for v in (vm1, vm2):
            assert v[-len(can):] == can[-len(v):], v
        QPres = qp
        out += [f'{tag}_epi:'] + PAD + ['s_cmp_eq_u32 s89, 0', f's_cbranch_scc0 {tag}_epi2'] + st0 + p_i + k_p + ([f's_branch {N}_qproj'] if vt == 0 else [])
        far += [f'{tag}_epi2:', 's_cmp_eq_u32 s79, 0', f's_cbranch_scc0 {tag}_epifix', 's_nop 7'] + e_p + [f's_branch {N}_next']
        far += [f'{tag}_epifix:'] + st0 + p_f + k_f + [f's_branch {N}_qproj']
        G1 = P_ + Bent + A0 + B0 + A1
        assert not check(G1 + ['s_nop 7'] + e_p + nx + Bz + A0 + B0 + A1 + B1 + A0 + p_f + k_f + qp, tag, dummy=dm)
        assert not check(G1 + p_i + k_p + qp, tag + 'b', dummy=dm)
        assert not check(G1 + p_i + k_p + QH + trH + QT, tag + 'c', dummy=dm)
        i = A0.index(f'{tag}_hkr0:')
        assert not check(P_ + Bent + A0[:i] + hk_near('x') + hk_far('x') + A0[i:] + B0 + A1, tag + 'hk', dummy=dm)
    far += [f'{N}_next:'] + nx
    its = {}
    for key, p, m in (('i0', 0, 0), ('i1', 1, 0), ('m1', 1, 2), ('m0', 0, 1)):
        L, pe = resolve_lgw(iteration(p, f'{N}_{key}', m), pend)
        assert pe == pend, 'ring not periodic'
        k = L.index('; SPLIT')
        its[key] = (L[:k], L[k + 1:], p)
    cnt = [ACNT.get(15 - r, 0) for r in range(16)]
    start = [sum(cnt[:r]) for r in range(16)]
    assert sum(cnt) == 16
    pc = sum(c << (2 * r) for r, c in enumerate(cnt))
    ps = sum(s << (4 * r) for r, s in enumerate(start) if s < 16)
    asetup = ['s_lshr_b32 s57, s55, 1', 's_lshl_b32 s58, s57, 1', f's_lshr_b32 s59, {hex(pc)}, s58', 's_and_b32 s59, s59, 3',
              f's_mov_b32 s60, {hex(ps & 0xffffffff)}', f's_mov_b32 s61, {hex(ps >> 32)}', 's_lshl_b32 s58, s57, 2', 's_lshr_b64 s[60:61], s[60:61], s58',
              's_and_b32 s41, s60, 15', 's_lshl_b32 s76, s21, 6', f's_add_u32 s76, s76, {fin2.FB}',
              's_lshl_b32 s77, s41, 7', f's_add_u32 s77, s77, {fin2.FA}'] + attna4.setup() + ['s_cmp_eq_u32 s59, 0\ns_cselect_b32 s66, 0, s66\ns_cselect_b32 s70, 0, s70']
    T = tail_code(N, asetup)
    st1 = SB(12)
    st2 = SB(14)
    full = lambda k: its[k][0] + its[k][1]
    out += [f'{N}_qproj:'] + PAD + QH + QL + QT + st1 + ['s_cmp_eq_u32 s21, 0', f's_cbranch_scc1 {N}_m0']
    out += ['.p2align 6', f'{N}_loop:'] + full('i0') + [f'{N}_i0_end:', 's_cmp_eq_u32 s19, s21', f's_cbranch_scc1 {N}_m1']
    out += full('i1') + [f'{N}_i1_end:', f's_sub_u32 s61, s19, {4 * NE - 5}', 's_cmp_gt_u32 s61, 2', f's_cbranch_scc1 {N}_loop', 's_cmp_eq_u32 s20, 0', f's_cbranch_scc0 {N}_loop',
                         's_cmp_eq_u32 s61, 2', f's_cbranch_scc1 {N}_l2chk',
                         'global_load_dword v59, v60, s[52:53] sc1',
                         f's_branch {N}_loop', f'{N}_l2chk:'] + spin_code(N + '_l2', 'v59', 'v60', (16 - 2 * NE) * 256) + [f's_branch {N}_loop']
    def lite(seg, rd):
        L = ['NOP' if 'mfma' in x else x for x in seg if not (x.startswith('ds_read_b128') and f', {rd} ' in x)]
        L[0:0] = ['s_nop 7']
        real = lambda X: ['s_nop 0' if x == 'NOP' else x for x in X]
        i = 0
        while i < len(L):
            if L[i] == 'NOP' and not [p for p in check(real(L[:i] + L[i + 1:]), verbose=False) if 'pending' not in p]:
                del L[i]
            else:
                i += 1
        return real(L) + ['s_nop 1']

    def cut(L):
        mf = [i for i, x in enumerate(L) if 'mfma' in x]
        e = mf[63] + 1
        while not L[e].startswith('s_nop 7') and not L[e].startswith('s_mov_b32 s4,'):
            e += 1
        return L[:mf[32]], L[mf[32]:e], L[e:]
    skip = []
    M1, M0, T2 = full('m1'), full('m0'), list(T)
    if SKIP:
        a1, b1, c1 = cut(M1)
        a0, b0, c0 = cut(M0)
        M1 = a1 + ['s_cmp_eq_u32 s20, 0', f's_cbranch_scc1 {N}_k1'] + b1 + [f'{N}_k1r:'] + c1
        M0 = ['s_cmp_lt_u32 s20, 2', f's_cbranch_scc1 {N}_k0a'] + a0 + ['s_cmp_eq_u32 s20, 2', f's_cbranch_scc1 {N}_k0b'] + b0 + [f'{N}_k0r:'] + c0
        i, j = T2.index('; PVS'), T2.index('; PVE')
        pv = T2[i + 1:j]
        T2[i:j + 1] = ['s_cmp_lt_u32 s20, 2', f's_cbranch_scc1 {N}_kt'] + pv + [f'{N}_ktr:']
        skip = ([f'{N}_k1:'] + lite(b1, 'v17') + [f's_branch {N}_k1r', f'{N}_k0a:'] + lite(a0, 'v17') + [f'{N}_k0b:'] + lite(b0, 'v17') +
                [f's_branch {N}_k0r', f'{N}_kt:'] + lite(pv, 'v16') + [f's_branch {N}_ktr'])
        pre = QPres + full('i0')
        assert not check(pre + a1 + lite(b1, 'v17') + c1 + lite(a0 + b0, 'v17') + c0 + T[:i] + lite(pv, 'v16') + T[j:], N + 'skip0', dummy=dm)
        assert not check(pre + full('m1') + a0 + lite(b0, 'v17') + c0 + T, N + 'skip2', dummy=dm)
    out += [f'{N}_m1:'] + M1 + [f'{N}_m1_end:', f'{N}_m0:'] + M0 + [f'{N}_m0_end:'] + SB(13) + T2 + st2
    rare = skip + list(qrare)
    for key, (h, r, p) in its.items():
        rare += [f'{N}_{key}_r1:'] + r1_code(1 - p) + r + r2_code() + [f's_branch {N}_{key}_end']
        assert not check(QPres + (full('i0') if p else []) + h + r1_code(1 - p) + r + r2_code() + full('i0' if p else 'i1'), N + key + 'rare', dummy=dm)
    assert not check(QPres + full('i0') + full('i1') + full('i0') + full('m1') + full('m0') + T, N + 'B', dummy=dm)
    it, arare = attna4.item(N + 'A', WT)
    rare += [f'{N}_achk:'] + spin_code(N + '_a', 'v59', 'v60', 48) + [f's_branch {N}_achkr']
    out += [f's_mov_b32 s22, {attna4.TH}', 's_mov_b32 s62, 65536'] + SB(15)
    k = it.index('s_and_b32 s72, s72, 0xffff')
    it[k:k] = ['s_cmp_eq_u32 s19, 1', f's_cbranch_scc1 {N}_psig', f'{N}_psigr:']
    rare += [f'{N}_psig:'] + signal_code('s76', 1, 's[12:13]') + [f's_branch {N}_psigr']
    out += [f'{N}_anext:'] + it + ['s_xor_b32 s62, s62, 32768', 's_sub_u32 s59, s59, 1', 's_mov_b32 s76, s77', 's_add_u32 s77, s77, 128',
                                   's_waitcnt vmcnt(2)', 's_cmp_lg_u32 s59, 0', f's_cbranch_scc1 {N}_anext', f'{N}_end:']
    if FUSE:
        ta, tb = fin2.task_a(N, SPIN), fin2.task_b(N, SPIN)
        nsl = max(len(v) for v in TASKS.values())
        assert sorted(t for v in TASKS.values() for t in v) == sorted([(k, q) for k in 'AB' for q in range(16)])
        F = ['s_waitcnt vmcnt(0)', 's_barrier', 's_cmp_eq_u32 s20, 0', f's_cbranch_scc0 {N}_fs'] + signal_code('s76', 4, 's[12:13]') + [f'{N}_fs:'] + SB(13) + ['s_cmp_ge_u32 s56, 14', f's_cbranch_scc1 {N}_fin'] + fin2.setup()
        F += ['s_lshr_b32 s57, s55, 1', 's_lshl_b32 s58, s57, 2', 's_lshl_b32 s57, s57, 1', 's_mov_b32 s41, s56', 's_mov_b32 s63, 0', f'{N}_tnext:']
        for sl in range(nsl):
            qt = sum((TASKS[15 - r][sl][1] if len(TASKS[15 - r]) > sl else 0) << (4 * r) for r in range(16))
            ty = sum(({'A': 1, 'B': 2}[TASKS[15 - r][sl][0]] if len(TASKS[15 - r]) > sl else 0) << (2 * r) for r in range(16))
            F += [f's_mov_b32 s60, {hex(qt & 0xffffffff)}', f's_mov_b32 s61, {hex(qt >> 32)}', f's_mov_b32 s78, {hex(ty)}',
                  f's_cmp_eq_u32 s63, {sl}', f's_cbranch_scc1 {N}_tgo']
        F += [f's_branch {N}_fin', f'{N}_tgo:', 's_add_u32 s63, s63, 1', 's_lshr_b64 s[60:61], s[60:61], s58', 's_and_b32 s40, s60, 15',
              's_lshr_b32 s78, s78, s57', 's_and_b32 s78, s78, 3', 's_cmp_eq_u32 s78, 0', f's_cbranch_scc1 {N}_fin',
              's_cmp_eq_u32 s78, 1', f's_cbranch_scc1 {N}_ta']
        F += tb + SB(14) + [f's_branch {N}_tnext', f'{N}_ta:'] + ta + SB(12) + [f's_branch {N}_tnext', f'{N}_fin:']
        assert not check(F, N + 'fin')
        out += F
    out += (stamp_end(WS, 0) if stamps else []) + ['s_endpgm'] + far + rare + arare
    out += [f'{N}_exit:', 's_endpgm']
    text = khead(N) + '\n'.join(out) + '\n'
    return dict(name=N, text=text, grid=256, block=256, lds=LDS, vgpr=512, sgpr=102, accum=256)
```
